```python
import torch

def _softmax(x, axis=-1):
    return torch.softmax(x, dim=axis)

def _gelu(x):
    return torch.nn.functional.gelu(x, approximate='tanh')

def _silu(x):
    return torch.nn.functional.silu(x)

def _sigmoid(x):
    return torch.sigmoid(x)

def _layernorm(x, axis=-1, eps=1e-05):
    m = x.mean(dim=axis, keepdim=True)
    v = x.var(dim=axis, keepdim=True, unbiased=False)
    return (x - m) / torch.sqrt(v + eps)

def _scatter_add(tgt, idx, src, axis=0):
    return tgt.clone().index_add_(axis, idx, src)

def _segment_sum(src, seg, n):
    out = torch.zeros((n,) + src.shape[1:], dtype=src.dtype)
    return out.index_add_(0, seg, src)

def _pad(x, pw):
    flat = tuple((v for pair in reversed(pw) for v in pair))
    return torch.nn.functional.pad(x, flat)
kernel_name = 'adaLN_cond__sliding_block_cached__mixer_channel_mlp__prompt'

def setup_inputs():

    _w = lambda a: (lambda t: t.to(torch.bfloat16) if t.is_floating_point() else t)(torch.as_tensor(a))

    def _A_setup():
        B, Sq, D = (1, 2048, 512)
        Hq, Hkv, Sk, Dh = (32, 8, 2048, 128)
        assert Hq % Hkv == 0, (Hq, Hkv)
        return {'x': _w((lambda *s: torch.randn(*s, dtype=torch.bfloat16) * 0.1)(B, Sq, D)), 'k_cache': _w((lambda *s: torch.randn(*s, dtype=torch.bfloat16) * 0.8)(B, Hkv, Sk, Dh)), 'v_cache': _w((lambda *s: torch.randn(*s, dtype=torch.bfloat16) * 1.6)(B, Hkv, Sk, Dh)), 'wq': _w((lambda *s: torch.randn(*s, dtype=torch.bfloat16) * 0.8)(D, Hq * Dh) * D ** (-0.5)), 'wo': _w((lambda *s: torch.randn(*s, dtype=torch.bfloat16) * 1.6)(Hq * Dh, D) * (Hq * Dh) ** (-0.5))}
    _A_in = _A_setup()

    def _B_setup():
        B, S, D, F = (1, 2048, 512, 1792)
        return {'x': _w((lambda *s: torch.randn(*s, dtype=torch.bfloat16) * 0.1)(B, S, D)), 'w1': _w((lambda *s: torch.randn(*s, dtype=torch.bfloat16) * 3.2)(D, F) * D ** (-0.5)), 'b1': _w((lambda *s: torch.randn(*s, dtype=torch.bfloat16) * 3.2)(F)), 'w2': _w((lambda *s: torch.randn(*s, dtype=torch.bfloat16) * 3.2)(F, D) * F ** (-0.5)), 'b2': _w((lambda *s: torch.randn(*s, dtype=torch.bfloat16) * 3.2)(D))}
    _B_in = _B_setup()
    return {'A_x': _A_in['x'], 'A_k_cache': _A_in['k_cache'], 'A_v_cache': _A_in['v_cache'], 'A_wq': _A_in['wq'], 'A_wo': _A_in['wo'], 'B_x': _B_in['x'], 'B_w1': _B_in['w1'], 'B_b1': _B_in['b1'], 'B_w2': _B_in['w2'], 'B_b2': _B_in['b2'], 'c': _w((lambda *s: torch.randn(*s, dtype=torch.bfloat16) * 0.2)(1, 512) * 8.0), 'w_mod': _w((lambda *s: torch.randn(*s, dtype=torch.bfloat16) * 0.2)(512, 6 * 512) * 512 ** (-0.5) * 8.0)}

def reference(A_x, A_k_cache, A_v_cache, A_wq, A_wo, B_x, B_w1, B_b1, B_w2, B_b2, c, w_mod):

    def _A_ref(x, k_cache, v_cache, wq, wo):
        B, Sq, D = x.shape
        Hq, Dh = (32, 128)
        Hkv, Sk = (k_cache.shape[1], k_cache.shape[2])
        W = min(4096, max(256, Sk // 4))
        rep = Hq // Hkv
        q = (lambda x, *d: x.permute(*d))((x @ wq).reshape(B, Sq, Hq, Dh), 0, 2, 1, 3)
        k = (lambda x, n, axis: torch.repeat_interleave(x, n, dim=axis))(k_cache[:, :, Sk - W:, :], rep, axis=1)
        v = (lambda x, n, axis: torch.repeat_interleave(x, n, dim=axis))(v_cache[:, :, Sk - W:, :], rep, axis=1)
        scores = torch.einsum('bhqd,bhkd->bhqk', q, k) * Dh ** (-0.5)
        p = _softmax(scores, axis=-1)
        o = torch.einsum('bhqk,bhkd->bhqd', p, v)
        return (lambda x, *d: x.permute(*d))(o, 0, 2, 1, 3).reshape(B, Sq, Hq * Dh) @ wo

    def _B_ref(x, w1, b1, w2, b2):
        y = _layernorm(x, axis=-1)
        h = _gelu(torch.einsum('bsd,df->bsf', y, w1) + b1)
        return torch.einsum('bsf,fd->bsd', h, w2) + b2
    x = A_x
    mod = (_silu(c) @ w_mod).reshape(c.shape[0], 6, 1, -1)
    sa, ca, ga, sb, cb, gb = (mod[:, 0].clone(), mod[:, 1].clone(), mod[:, 2].clone(), mod[:, 3].clone(), mod[:, 4].clone(), mod[:, 5].clone())
    h = _layernorm(x, axis=-1) * (1 + ca) + sa
    x = x + ga * _A_ref(h, A_k_cache, A_v_cache, A_wq, A_wo)
    h = _layernorm(x, axis=-1) * (1 + cb) + sb
    x = x + gb * _B_ref(h, B_w1, B_b1, B_w2, B_b2)
    return x
```

```python
import re

class Ins:
    __slots__ = ("text", "kind", "tag", "cost")
    def __init__(self, text, kind="op", tag=None, cost=1):
        self.text = text; self.kind = kind; self.tag = tag; self.cost = cost
    def __repr__(self): return f"<{self.kind}:{self.text}:{self.tag}>"

TRANS = ("v_exp_f32", "v_log_f32", "v_rcp_f32", "v_rsq_f32", "v_sqrt_f32", "v_sin_f32", "v_cos_f32")

def op(text):
    m = text.split()[0]
    return Ins(text, "op", None, 2 if m.startswith(TRANS) else 1)
def vm(text, tag): return Ins(text, "vm", tag)
def lg(text, tag): return Ins(text, "lg", tag)
def wvm(*tags): return Ins("", "wvm", tags)
def wlg(*tags): return Ins("", "wlg", tags)
def wall(): return Ins("s_waitcnt vmcnt(0) lgkmcnt(0)", "wall")
def wvm0(): return Ins("s_waitcnt vmcnt(0)", "wvm0")
def wlg0(): return Ins("s_waitcnt lgkmcnt(0)", "wlg0")
def label(name): return Ins(name + ":", "label", None, 0)
def raw(text): return Ins(text, "raw", None, 0)

class Prog:
    def __init__(self):
        self.items = []
    def add(self, *xs):
        for x in xs:
            if isinstance(x, (list, tuple)): self.add(*x)
            elif isinstance(x, str): self.items.append(op(x))
            else: self.items.append(x)
    def loop_begin(self, n): self.items.append(Ins("", "loop_begin", n, 0))
    def loop_end(self): self.items.append(Ins("", "loop_end", None, 0))
    def rare_begin(self): self.items.append(Ins("", "rare_begin", None, 0))
    def rare_end(self): self.items.append(Ins("", "rare_end", None, 0))

def interleave(mfmas, fillers, cap=2, start=0, lead=None):
    out = list(lead or [])
    q = []
    for f in fillers:
        if isinstance(f, tuple): q.append(f)
        else: q.append((f, start))
    q = [(op(f) if isinstance(f, str) else f, e) for f, e in q]
    i = 0
    for k, m in enumerate(mfmas):
        out.append(op(m) if isinstance(m, str) else m)
        used = 0
        while i < len(q) and q[i][1] <= k and (used + q[i][0].cost <= cap or used == 0):
            out.append(q[i][0]); used += q[i][0].cost; i += 1
    for f, e in q[i:]: out.append(f)
    return out

def trace(items):
    tr = []
    i = 0
    stack = []
    n = len(items)
    def run(lo, hi):
        i = lo
        while i < hi:
            it = items[i]
            if it.kind == "loop_begin":
                d = 1; j = i + 1
                while d:
                    if items[j].kind == "loop_begin": d += 1
                    if items[j].kind == "loop_end": d -= 1
                    j += 1
                for _ in range(it.tag): run(i + 1, j - 1)
                i = j
            elif it.kind == "rare_begin":
                j = i + 1
                while items[j].kind != "rare_end": j += 1
                i = j + 1
            else:
                tr.append(i); i += 1
    run(0, n)
    return tr

def resolve_waits(items):
    tr = trace(items)
    need = {}
    vmq, lgq = [], []
    for rnd in range(4):
        vmq, lgq = [], []
        changed = False
        for idx in tr:
            it = items[idx]
            if it.kind == "vm": vmq.append(it.tag)
            elif it.kind == "lg": lgq.append(it.tag)
            elif it.kind in ("wvm", "wlg"):
                q = vmq if it.kind == "wvm" else lgq
                mx = 63 if it.kind == "wvm" else 15
                last = -1
                for k, t in enumerate(q):
                    if t in it.tag: last = k
                if last >= 0:
                    nn = min(len(q) - 1 - last, mx)
                    if idx not in need or nn < need[idx]:
                        need[idx] = nn; changed = True
                if idx in need:
                    keep = need[idx]
                    if len(q) > keep: del q[:len(q) - keep]
            elif it.kind == "wall": vmq.clear(); lgq.clear()
            elif it.kind == "wvm0": vmq.clear()
            elif it.kind == "wlg0": lgq.clear()
        if not changed: break
    for idx, it in enumerate(items):
        if it.kind in ("wvm", "wlg"):
            if idx in need:
                it.text = f"s_waitcnt {'vmcnt' if it.kind == 'wvm' else 'lgkmcnt'}({need[idx]})"
            else:
                it.text = ""

def render(items):
    out = []
    for it in items:
        if it.text:
            out.append(it.text if it.kind in ("label", "raw") else "\t" + it.text)
    return "\n".join(out) + "\n"

REG = re.compile(r"^(-?)(\|?)([vas])(\d+)\|?$|^(-?)([vas])\[(\d+):(\d+)\]$")
def regs_of(tok):
    tok = tok.strip()
    if tok.startswith("abs(") : tok = tok[4:-1]
    if tok in ("vcc",): return [("s", 106), ("s", 107)]
    if tok == "vcc_lo": return [("s", 106)]
    if tok == "vcc_hi": return [("s", 107)]
    if tok == "m0": return [("s", 124)]
    if tok == "exec": return [("s", 126), ("s", 127)]
    m = REG.match(tok)
    if not m: return []
    if m.group(3): return [(m.group(3), int(m.group(4)))]
    return [(m.group(6), r) for r in range(int(m.group(7)), int(m.group(8)) + 1)]

def decode(text):
    parts = text.split(None, 1)
    mn = parts[0]
    rest = parts[1] if len(parts) > 1 else ""
    toks = [t.strip() for t in rest.split(",")] if rest else []
    mods = ""
    if toks:
        l = toks[-1].split()
        if l:
            toks[-1] = l[0]; mods = " ".join(l[1:])
    ops_ = []
    for t in toks:
        ops_.append(t)
    R = [regs_of(t.split()[0]) if t else [] for t in ops_]
    flat = lambda L: [x for y in L for x in y]
    if mn.startswith("v_mfma"):
        return "mfma", R[0], flat(R[1:4]), dict(A=R[1], B=R[2], C=R[3], passes=(4 if "16x16x32" in mn else 8))
    if mn.startswith("v_cmp"):
        return "valu", R[0], flat(R[1:]), dict(mn=mn)
    if mn.startswith(("v_readfirstlane", "v_readlane")):
        return "valu", R[0], flat(R[1:]), dict(mn=mn, rdlane=True)
    if mn.startswith("v_permlane"):
        return "valu", R[0] + R[1], R[0] + R[1], dict(mn=mn, perm=True)
    if mn.startswith("v_"):
        src = flat(R[1:])
        dst = list(R[0])
        if mn.startswith(("v_fmac", "v_pk_fmac", "v_writelane")): src += R[0]
        if mn.startswith(("v_add_co", "v_addc_co", "v_sub_co")): dst += R[1]; src = flat(R[2:])
        if mn.startswith("v_cndmask") and len(R) == 3: src += regs_of("vcc")
        dpp = "dpp" in mn or "row_" in text or "quad_perm" in text
        if dpp: src += R[0]
        return "valu", dst, src, dict(mn=mn, dpp=dpp, trans=mn.startswith(TRANS))
    if mn.startswith("buffer_load"):
        if re.search(r"\blds\b", text): return "vmem", [], flat(R) + regs_of("m0"), dict(mn=mn, dma=True)
        return "vmem", R[0], flat(R[1:]), dict(mn=mn)
    if mn.startswith("buffer_store"):
        return "vmem", [], flat(R), dict(mn=mn, data=R[0], wide=("x4" in mn or "x3" in mn))
    if mn.startswith("buffer_atomic"):
        return "vmem", (R[0] if " sc0" in text else []), flat(R), dict(mn=mn)
    if mn.startswith("ds_read"): return "ds", R[0], flat(R[1:]), dict(mn=mn)
    if mn.startswith("ds_write"): return "ds", [], flat(R), dict(mn=mn)
    if mn.startswith(("s_load", "s_memtime", "s_memrealtime")): return "smem", R[0], flat(R[1:]), dict(mn=mn)
    if mn == "s_nop": return "nop", [], [], dict(n=int(toks[0]) + 1)
    if mn.startswith(("s_waitcnt", "s_barrier", "s_branch", "s_cbranch", "s_endpgm", "s_sleep", "s_setprio")):
        return "ctl", [], [], dict(mn=mn)
    if mn.startswith("s_cmp") or mn.startswith("s_bitcmp"): return "salu", [], flat(R), dict(mn=mn)
    if mn.startswith("s_"):
        dst = list(R[0]) if R else []
        src = flat(R[1:])
        if "saveexec" in mn: dst += regs_of("exec")
        if mn.startswith(("s_bitset", "s_addk", "s_mulk")): src += R[0]
        return "salu", dst, src, dict(mn=mn)
    raise ValueError("cannot decode: " + text)

def check(items, tr=None, verbose=True):
    if tr is None: tr = trace(items)
    errs = []
    pos = 0
    last_valu_w = {}; last_trans_w = {}; last_mfma_w = {}; last_mfma_c = {}; last_salu_w = {}; store_data = {}
    vmq, lgq = [], []
    smem_pending = set()
    def err(msg, it): errs.append(f"{msg}: {it.text}")
    for idx in tr:
        it = items[idx]
        if not it.text or it.kind in ("label", "raw"): continue
        cls, dst, src, info = decode(it.text)
        if cls == "nop": pos += info["n"]; continue
        if it.text.startswith("s_waitcnt"):
            m = re.search(r"vmcnt\((\d+)\)", it.text)
            if m:
                k = int(m.group(1))
                if len(vmq) > k: del vmq[:len(vmq) - k]
            m = re.search(r"lgkmcnt\((\d+)\)", it.text)
            if m:
                k = int(m.group(1))
                if k == 0: smem_pending.clear()
                if len(lgq) > k: del lgq[:len(lgq) - k]
            pos += 1; continue
        touched = set(dst) | set(src)
        for q, nm in ((vmq, "vmcnt"), (lgq, "lgkmcnt")):
            for e in q:
                if e & touched and not (it.tag == "dummy"): err(f"register with pending load ({nm}) {sorted(e & touched)[:2]}", it)
        if smem_pending & touched: err("pending smem", it)
        def dist(table, r): return pos - table[r] - 1 if r in table else 99
        if cls == "mfma":
            for r in src:
                if dist(last_valu_w, r) < 2: err(f"VALU->MFMA {r}", it)
            for r in info["A"] + info["B"]:
                if r in last_mfma_w:
                    p, ps, blk = last_mfma_w[r]
                    if pos - p - 1 < (8 if ps == 4 else 12): err(f"MFMA D->A/B {r}", it)
            for r in info["C"]:
                if r in last_mfma_w:
                    p, ps, blk = last_mfma_w[r]
                    if blk != tuple(info["C"]) and pos - p - 1 < (6 if ps == 4 else 10): err(f"MFMA D->C partial {r}", it)
            for r in dst:
                if r in last_mfma_w:
                    p, ps, blk = last_mfma_w[r]
                    if tuple(info["C"]) != blk and pos - p - 1 < (6 if ps == 4 else 10): err(f"MFMA WAW {r}", it)
        if cls in ("valu", "vmem", "ds"):
            for r in touched:
                if r in last_mfma_w:
                    p, ps, blk = last_mfma_w[r]
                    if pos - p - 1 < (8 if ps == 4 else 12): err(f"MFMA D->{cls} {r} dist {pos-p-1}", it)
        if cls == "valu":
            for r in dst:
                if r in last_mfma_c:
                    p, ps = last_mfma_c[r]
                    if pos - p - 1 < (3 if ps == 4 else 7): err(f"MFMA C WAR {r}", it)
                if dist(store_data, r) < 2: err(f"store data WAR {r}", it)
            for r in src:
                if r[0] == "s" and dist(last_valu_w, r) < 2: err(f"VALU sgpr->VALU {r}", it)
                if not info.get("trans") and dist(last_trans_w, r) < 1: err(f"trans->VALU {r}", it)
                if info.get("trans") and dist(last_trans_w, r) < 1: err(f"trans->trans {r}", it)
                if (info.get("dpp") or info.get("perm")) and r[0] == "v" and dist(last_valu_w, r) < 2: err(f"VALU->DPP/perm {r}", it)
                if info.get("rdlane") and r[0] == "v" and dist(last_valu_w, r) < 1: err(f"VALU->readlane {r}", it)
        if cls in ("vmem", "ds"):
            for r in src:
                if r[0] == "s" and dist(last_valu_w, r) < 5 and cls == "vmem": err(f"VALU sgpr->VMEM {r}", it)
                if dist(last_trans_w, r) < 1: err(f"trans->mem {r}", it)
            if info.get("dma") and dist(last_salu_w, ("s", 124)) < 1: err("m0->dma", it)
            for r in dst:
                if dist(store_data, r) < 1: err(f"store data WAR(load) {r}", it)
        if cls == "salu":
            for r in src:
                if dist(last_valu_w, r) < 1 and r[0] == "s": err(f"VALU sgpr->SALU (pad) {r}", it)
        if cls == "valu":
            for r in dst:
                last_valu_w[r] = pos; last_mfma_w.pop(r, None)
                if info.get("trans"): last_trans_w[r] = pos
                else: last_trans_w.pop(r, None)
        elif cls == "mfma":
            for r in dst: last_mfma_w[r] = (pos, info["passes"], tuple(dst)); last_valu_w.pop(r, None)
            for r in info["C"]: last_mfma_c[r] = (pos, info["passes"])
        elif cls == "salu":
            for r in dst: last_salu_w[r] = pos; last_valu_w.pop(r, None)
        elif cls == "vmem":
            vmq.append(set(dst))
            if info.get("wide"):
                for r in info["data"]: store_data[r] = pos
        elif cls == "ds": lgq.append(set(dst))
        elif cls == "smem": smem_pending |= set(dst)
        pos += 1
    if verbose:
        seen = set()
        for e in errs:
            if e not in seen: print("HAZARD", e); seen.add(e)
    return errs
```

```python
import sys, math, argparse
from asmlib import *

NAME = "adaLN_cond__sliding_block_cached__mixer_channel_mlp__prompt"
KN = NAME + "_kernel"

WS_MODG = 0
WS_M2 = 4096
WS_MB = 1 << 20
MB_SZ = 147456
MB_P1, MB_P2, MB_Y = 0, 65536, 131072
WS_DUMP = 64 << 20
WS_STAMP = 60 << 20
WS_BYTES = 268435456
DBG_TEAM = 128
DBG_M2 = 160
SPIN = 1 << 15

L_A = 0
L_K = 65536
L_V = 98304
L_E0 = 131072
L_E1 = 147456
STAGES = [L_E0, L_E1, L_K, L_V, L_K + 16384, L_V + 16384]

S_X, S_K, S_V, S_WQ, S_WO, S_W1, S_W2, S_WS, S_DBG, S_OUT, S_TA, S_TB = [4 + 4*i for i in range(12)]
S_B1P, S_B2P = 52, 54
sW, sG, sRB, sRHO = 56, 57, 58, 59
sT0, sT1, sT2, sT3 = 60, 61, 62, 63
sSELLO, sSELHI = 96, 97
sSTAMP = 98
sSPIN, sBAD = 100, 101
sWQOFF, sKVOFF, sMB, sTEAM, sW4K, sW2K, sWOB, sW1B, sW2B, sPF, sLOOP, sPST, sGAT, sEX = 64, 65, 66, 67, 68, 69, 70, 71, 72, 73, 74, 75, 76, 78
sC1, sC2 = 80, 82
def srd(b): return f"s[{b}:{b+3}]"
def vr(b, n=1): return f"v{b}" if n == 1 else f"v[{b}:{b+n-1}]"
def ar(b, n=1): return f"a{b}" if n == 1 else f"a[{b}:{b+n-1}]"
def f32(x):
    import struct
    return "0x%08x" % struct.unpack("<I", struct.pack("<f", x))[0]

QSCALE = math.log2(math.e) / math.sqrt(128.0)
MF = "v_mfma_f32_16x16x32_bf16"

class Cfg:
    stamps = False
    dump = None
    force_fallback = False
cfg = Cfg()
P = Prog()
uid = [0]
def newlabel(s):
    uid[0] += 1
    return f"L_{s}_{uid[0]}"

A_STAMP = 252
def stamp(k):
    if not cfg.stamps: return
    P.add(Ins(f"s_memrealtime s[{sSTAMP}:{sSTAMP+1}]", "op"), wlg0(),
          f"s_mov_b64 exec, {1 << k}" if k < 7 else f"s_mov_b64 exec, 0x{1 << k:x}",
          f"v_accvgpr_write_b32 a{A_STAMP}, s{sSTAMP}", "s_mov_b64 exec, -1")

def dump_and_exit(regs):
    P.add(wall(), "s_nop 15")
    P.add(f"s_lshl_b32 s{sT0}, s2, 18", f"s_add_u32 s{sT0}, s{sT0}, {WS_DUMP}")
    assert 'v7' not in regs
    P.add("v_lshlrev_b32 v7, 2, v0")
    for i, r in enumerate(regs):
        P.add(vm(f"buffer_store_dword {r}, v7, {srd(S_WS)}, s{sT0} offen", "dump"), f"s_add_u32 s{sT0}, s{sT0}, 1024")
    P.add(wall(), "s_endpgm")

def dump_lds_and_exit(base, nbytes):
    P.add(wall(), "s_barrier")
    P.add(f"s_lshl_b32 s{sT0}, s2, 18", f"s_add_u32 s{sT0}, s{sT0}, {WS_DUMP}")
    P.add("v_lshlrev_b32 v7, 4, v0", f"v_add_u32 v6, {base}, v7")
    for i in range(nbytes // 4096):
        P.add(lg(f"ds_read_b128 v[8:11], v6", "d"), wlg0(),
              vm(f"buffer_store_dwordx4 v[8:11], v7, {srd(S_WS)}, s{sT0} offen", "dump"), f"s_add_u32 s{sT0}, s{sT0}, 4096",
              "v_add_u32 v6, 4096, v6", wvm0())
    P.add(wall(), "s_endpgm")

def mk_srd(b, p, nbytes):
    return [f"s_mov_b32 s{b}, s{p}", f"s_and_b32 s{b+1}, s{p+1}, 0xffff", f"s_mov_b32 s{b+2}, {nbytes}", f"s_mov_b32 s{b+3}, 0x20000"]

def unpack(dlo, dhi, src):
    return [f"v_lshlrev_b32 v{dlo}, 16, v{src}", f"v_and_b32 v{dhi}, 0xffff0000, v{src}"]

R = [32, 64, 96, 128, 160, 192]
XN = 128
FST = [224, 232]
V_WQ = 24
V_KD, V_VD = 20, 22
A_QACC = 0
A_HB = 128
V_KR, V_VR = 8, 12
V_P, V_S, V_NM, V_Q, V_O = 24, 32, 48, 64, 128
V_WD = 2
V_PF = 6
A_KF, A_VF, A_L, A_ONE, A_DUM, A_SEN = 160, 0, 224, 240, 244, 248
A_M2, A_XR, A_B2, A_B1 = 64, 96, 104, 112

def wq_load(t):
    b = R[t % 6]
    return [vm(f"buffer_load_dwordx4 {vr(b+4*j, 4)}, v{V_WQ+j}, {srd(S_WQ)}, s{sWQOFF_cur[0]} offen", f"wq{t}") for j in range(8)]
sWQOFF_cur = [sT3]

def prologue():
    a = P.add
    a(Ins("s_load_dwordx16 s[64:79], s[0:1], 0", "op"), Ins("s_load_dwordx8 s[80:87], s[0:1], 64", "op"),
      Ins("s_load_dwordx4 s[88:91], s[0:1], 96", "op"), Ins("s_load_dwordx2 s[92:93], s[0:1], 112", "op"))
    a("s_cmp_ge_u32 s2, 256", "s_cbranch_scc1 L_exit")
    if cfg.stamps:
        a(f"v_accvgpr_write_b32 a{A_STAMP}, 0")
    a("v_lshrrev_b32 v1, 6, v0", "v_and_b32 v2, 63, v0")
    a(f"s_and_b32 s{sT0}, s2, 3", f"v_readfirstlane_b32 s{sW}, v1")
    a(f"s_lshr_b32 s{sT1}, s2, 3", f"s_lshl_b32 s{sT0}, s{sT0}, 1", f"s_and_b32 s{sT2}, s{sT1}, 1", f"s_or_b32 s{sG}, s{sT0}, s{sT2}")
    a(f"s_lshr_b32 s{sRHO}, s{sT1}, 1", f"s_bfe_u32 s{sT0}, s2, 0x10002", f"s_lshl_b32 s{sT0}, s{sT0}, 4", f"s_or_b32 s{sRB}, s{sT0}, s{sRHO}")
    a("v_lshrrev_b32 v3, 2, v0", "v_and_b32 v4, 3, v0")
    a("v_lshlrev_b32 v5, 4, v3")
    a(f"v_mul_u32_u24 v6, {8*6144}, v3", "v_lshlrev_b32 v4, 4, v4", f"s_lshl_b32 s{sT0}, s2, 6", f"v_add3_u32 v6, v6, v4, s{sT0}")
    a("v_lshlrev_b32 v7, 4, v2")
    a(wlg0())
    stamp(0)
    a("s_cmp_ge_u32 s2, 96", "s_cbranch_scc1 L_noprod1")
    a(mk_srd(S_TB, 84, 1024), mk_srd(S_TA, 86, 512*6144))
    a(vm(f"buffer_load_dwordx4 {vr(R[1], 4)}, v5, {srd(S_TB)}, 0 offen", "wm"))
    for i in range(8):
        a(f"s_mov_b32 s{sT0}, {6144*i}", vm(f"buffer_load_dwordx4 {vr(R[2]+4*i, 4)}, v6, {srd(S_TA)}, s{sT0} offen", "wm"))
    a(label("L_noprod1"))
    a(mk_srd(S_X, 64, 2097152))
    a(f"s_lshl_b32 s{sT0}, s{sRB}, 2", f"s_add_u32 s{sT0}, s{sT0}, s{sW}", f"s_lshl_b32 s{sT0}, s{sT0}, 14")
    for i in range(16):
        if i and i % 4 == 0: a(f"s_add_u32 s{sT0}, s{sT0}, 4096")
        a(vm(f"buffer_load_dwordx4 {vr(XN+8*i+4, 4)}, v7, {srd(S_X)}, s{sT0} offen offset:{(i%4)*1024}", f"x{i}"))
    a(f"s_getpc_b64 s[{S_TB}:{S_TB+1}]")
    a(label("L_pc"))
    a(f"s_mov_b32 s{S_TB+2}, L_codeend-L_pc", f"s_mov_b32 s{S_TB+3}, 0x20000")
    a(f"s_bfe_u32 s{sT0}, s2, 0x20003", f"s_lshl_b32 s{sT0}, s{sT0}, 2", f"s_add_u32 s{sT0}, s{sT0}, s{sW}", f"s_lshl_b32 s{sT0}, s{sT0}, 12")
    a("v_lshlrev_b32 v3, 6, v2")
    a(vm(f"buffer_load_dword a{A_DUM}, v3, {srd(S_TB)}, s{sT0} offen", "dummy"))
    a(mk_srd(S_WQ, 70, 4194304))
    a("v_lshrrev_b32 v4, 4, v2", "v_and_b32 v5, 15, v2", "v_lshlrev_b32 v4, 16, v4", "v_lshlrev_b32 v5, 4, v5")
    a(f"s_lshl_b32 s{sT0}, s{sG}, 10", f"s_lshl_b32 s{sT1}, s{sW}, 8", f"s_add_u32 s{sT0}, s{sT0}, s{sT1}")
    a(f"v_add3_u32 v{V_WQ}, v4, v5, s{sT0}")
    for j in range(1, 8): a(f"v_add_u32 v{V_WQ+j}, {8192*j}, v{V_WQ}")
    a(f"s_lshl_b32 s{sT3}, s{sRHO}, 18")
    a(wq_load(0))
    a(mk_srd(S_K, 66, 4194304), mk_srd(S_V, 68, 4194304), mk_srd(S_WO, 72, 4194304), mk_srd(S_W1, 76, 512*3584),
      mk_srd(S_W2, 80, 1792*1024), mk_srd(S_WS, 92, WS_BYTES), mk_srd(S_DBG, 90, 256), mk_srd(S_OUT, 88, 2097152))
    a(f"s_mov_b64 s[{S_B1P}:{S_B1P+1}], s[78:79]", f"s_mov_b64 s[{S_B2P}:{S_B2P+1}], s[82:83]")
    a(f"s_mov_b32 s{sSELLO}, 0x05040100", f"s_mov_b32 s{sSELHI}, 0x07060302")
    a(f"s_lshl_b32 s{sT0}, s{sG}, 19", f"s_lshl_b32 s{sT1}, s{sRHO}, 13", f"s_add_u32 s{sT0}, s{sT0}, s{sT1}",
      f"s_and_b32 s{sT1}, s{sW}, 1", f"s_lshl_b32 s{sT1}, s{sT1}, 12", f"s_add_u32 s{sT0}, s{sT0}, s{sT1}", f"s_add_u32 s{sT0}, s{sT0}, {1536*256}")
    a(f"s_cmp_ge_u32 s{sW}, 2", "s_cbranch_scc1 L_wuv")
    a(vm(f"buffer_load_dword a{A_DUM}, v3, {srd(S_K)}, s{sT0} offen", "dummy"), "s_branch L_wud")
    P.rare_begin()
    a(label("L_wuv"), vm(f"buffer_load_dword a{A_DUM}, v3, {srd(S_V)}, s{sT0} offen", "dummy"))
    P.rare_end()
    a(label("L_wud"))
    a("s_cmp_ge_u32 s2, 96", "s_cbranch_scc1 L_noprod2")
    a("s_cmp_ge_u32 s2, 32", "s_cbranch_scc1 L_notag")
    a(f"s_lshl_b32 s{sT0}, s2, 7", f"s_add_u32 s{sT0}, s{S_WS}, s{sT0}", f"s_addc_u32 s{sT1}, s{S_WS+1}, 0")
    a(Ins(f"s_load_dwordx16 s[64:79], s[{sT0}:{sT1}], {WS_MODG}", "op"), Ins(f"s_load_dwordx16 s[80:95], s[{sT0}:{sT1}], {WS_MODG+64}", "op"))
    a(f"s_mov_b32 s{sT2}, 1", wlg0())
    for i in range(16):
        a(f"s_min_u32 s{sT0}, s{65+2*i}, 31", f"s_bitset1_b32 s{sT2}, s{sT0}")
    a(f"s_ff0_i32_b32 s{sBAD}, s{sT2}")
    a(f"s_cmp_lg_u32 s{sW}, 0", "s_cbranch_scc1 L_notag")
    P.rare_begin()
    a(f"v_mov_b32 v4, s{sBAD}", "v_mov_b32 v5, s2", "s_mov_b64 exec, 1")
    a(vm(f"buffer_store_byte v4, v5, {srd(S_DBG)}, 0 offen sc1", "ann"), "s_mov_b64 exec, -1")
    P.rare_end()
    a(label("L_notag"))
    C0, SV, AC, T = R[1], R[1]+4, R[1]+12, R[1]+20
    a(wvm("wm"))
    for d in range(4): a(unpack(SV+2*d, SV+2*d+1, C0+d))
    for i in range(8): a(f"v_mul_f32 v{T+i}, {f32(-math.log2(math.e))}, v{SV+i}")
    for i in range(8): a(f"v_exp_f32 v{T+i}, v{T+i}")
    for i in range(8): a(f"v_add_f32 v{T+i}, 1.0, v{T+i}")
    for i in range(8): a(f"v_rcp_f32 v{T+i}, v{T+i}")
    for i in range(8): a(f"v_mul_f32 v{SV+i}, v{SV+i}, v{T+i}")
    for d in range(4): a(f"v_cvt_pk_bf16_f32 v{C0+d}, v{SV+2*d}, v{SV+2*d+1}")
    for d in range(4): a(unpack(SV+2*d, SV+2*d+1, C0+d))
    for i in range(8):
        for c in range(4): a(unpack(T+2*c, T+2*c+1, R[2]+4*i+c))
        sel = "op_sel:[0,1] op_sel_hi:[1,1]" if i & 1 else "op_sel:[0,0] op_sel_hi:[1,0]"
        sel3 = "op_sel:[0,1,0] op_sel_hi:[1,1,1]" if i & 1 else "op_sel:[0,0,0] op_sel_hi:[1,0,1]"
        for c in range(4):
            if i == 0: a(f"v_pk_mul_f32 {vr(AC+2*c, 2)}, {vr(T+2*c, 2)}, {vr(SV+(i&~1), 2)} {sel}")
            else: a(f"v_pk_fma_f32 {vr(AC+2*c, 2)}, {vr(T+2*c, 2)}, {vr(SV+(i&~1), 2)}, {vr(AC+2*c, 2)} {sel3}")
    a("s_nop 1")
    for rot in (4, 8):
        for k in range(8): a(f"v_add_f32_dpp v{AC+k}, v{AC+k}, v{AC+k} row_ror:{rot} row_mask:0xf bank_mask:0xf")
    for k in range(4): a(f"v_permlane16_swap_b32 v{AC+k}, v{AC+k+4}")
    for k in range(4): a(f"v_add_f32 v{AC+k}, v{AC+k}, v{AC+k+4}")
    a("s_nop 0")
    for k in range(2): a(f"v_permlane32_swap_b32 v{AC+k}, v{AC+k+2}")
    for k in range(2): a(f"v_add_f32 v{AC+k}, v{AC+k}, v{AC+k+2}")
    a("v_and_b32 v4, 3, v2", "v_bfe_u32 v5, v2, 4, 1", "v_lshrrev_b32 v6, 5, v2", "v_lshlrev_b32 v4, 5, v4", "v_lshlrev_b32 v5, 4, v5", "v_lshlrev_b32 v6, 3, v6")
    a(f"s_lshl_b32 s{sT0}, s{sW}, 7", f"s_add_u32 s{sT0}, s{sT0}, {L_E1}", "v_or_b32 v4, v4, v5", f"v_add3_u32 v4, v4, v6, s{sT0}")
    a(lg(f"ds_write_b64 v4, {vr(AC, 2)}", "ms"), wlg0(), "s_barrier")
    a(f"s_cmp_lg_u32 s{sW}, 0", "s_cbranch_scc1 L_noprod2")
    a("v_and_b32 v4, 15, v2", "v_lshlrev_b32 v4, 3, v4", f"v_add_u32 v5, {L_E1}, v4")
    for w in range(4): a(lg(f"ds_read_b64 {vr(T+2*w, 2)}, v5 offset:{128*w}", "mr"))
    a(wlg0())
    a(f"v_pk_add_f32 {vr(T, 2)}, {vr(T, 2)}, {vr(T+2, 2)}", f"v_pk_add_f32 {vr(T+4, 2)}, {vr(T+4, 2)}, {vr(T+6, 2)}",
      f"v_pk_add_f32 {vr(T, 2)}, {vr(T, 2)}, {vr(T+4, 2)}", f"v_cvt_pk_bf16_f32 v{T}, v{T}, v{T+1}")
    a("s_cmp_ge_u32 s2, 32", "s_cbranch_scc1 L_m2st")
    P.rare_begin()
    a(f"v_mov_b32 v{T+1}, s{sBAD}", f"s_lshl_b32 s{sT0}, s2, 7", "s_mov_b64 exec, 0xffff")
    a(vm(f"buffer_store_dwordx2 {vr(T, 2)}, v4, {srd(S_WS)}, s{sT0} offen sc1", "gr"), "s_mov_b64 exec, -1", "s_branch L_noprod2")
    a(label("L_m2st"))
    a("v_bfe_u32 v4, v2, 1, 2", "v_bfe_u32 v5, v2, 3, 1", "v_and_b32 v6, 1, v2", "v_lshlrev_b32 v4, 6, v4", "v_lshlrev_b32 v5, 3, v5", "v_lshlrev_b32 v6, 2, v6", "v_or3_b32 v4, v4, v5, v6")
    a(f"s_and_b32 s{sT0}, s2, 15", f"s_lshl_b32 s{sT0}, s{sT0}, 8", f"s_sub_u32 s{sT1}, s2, 32", f"s_lshr_b32 s{sT1}, s{sT1}, 4", f"s_lshl_b32 s{sT1}, s{sT1}, 4",
      f"s_add_u32 s{sT0}, s{sT0}, s{sT1}", f"s_add_u32 s{sT0}, s{sT0}, {WS_M2}", "s_mov_b64 exec, 0xffff")
    a(vm(f"buffer_store_dword v{T}, v4, {srd(S_WS)}, s{sT0} offen sc1", "gr"), "s_mov_b64 exec, -1")
    P.rare_end()
    a(label("L_noprod2"))
    stamp(1)
    a(f"s_add_u32 s{sT3}, s{sT3}, 262144", f"s_and_b32 s{sT3}, s{sT3}, 0x3fffff")
    a("s_nop 1", wq_load(1))
    ST = R[2]
    TT = 8
    for i in range(16):
        b = XN + 8*i
        a(Ins(f"s_waitcnt vmcnt({(15-i) + 1 + 8 + 1 + 8})", "xwait", f"x{i}"))
        for d in range(4): a(unpack(b+2*d, b+2*d+1, b+4+d))
        t = TT + 4*(i & 1)
        a(f"v_pk_add_f32 {vr(t, 2)}, {vr(b, 2)}, {vr(b+2, 2)}", f"v_pk_mul_f32 {vr(t+2, 2)}, {vr(b, 2)}, {vr(b, 2)}",
          f"v_pk_add_f32 {vr(t, 2)}, {vr(t, 2)}, {vr(b+4, 2)}", f"v_pk_fma_f32 {vr(t+2, 2)}, {vr(b+2, 2)}, {vr(b+2, 2)}, {vr(t+2, 2)}",
          f"v_pk_add_f32 {vr(t, 2)}, {vr(t, 2)}, {vr(b+6, 2)}", f"v_pk_fma_f32 {vr(t+2, 2)}, {vr(b+4, 2)}, {vr(b+4, 2)}, {vr(t+2, 2)}",
          f"v_add_f32 v{ST+i}, v{t}, v{t+1}", f"v_pk_fma_f32 {vr(t+2, 2)}, {vr(b+6, 2)}, {vr(b+6, 2)}, {vr(t+2, 2)}",
          f"v_add_f32 v{ST+16+i}, v{t+2}, v{t+3}")
    stamp(2)
    a("s_nop 1")
    for h in (0, 16):
        for i in range(8): a(f"v_permlane32_swap_b32 v{ST+h+i}, v{ST+h+i+8}")
    for h in (0, 16):
        for i in range(8): a(f"v_add_f32 v{ST+h+i}, v{ST+h+i}, v{ST+h+i+8}")
    for h in (0, 16):
        for i in range(4): a(f"v_permlane16_swap_b32 v{ST+h+i}, v{ST+h+i+4}")
    for h in (0, 16):
        for i in range(4): a(f"v_add_f32 v{ST+h+i}, v{ST+h+i}, v{ST+h+i+4}")
    for rot in (8, 4, 2, 1):
        for h in (0, 16):
            for i in range(4): a(f"v_add_f32_dpp v{ST+h+i}, v{ST+h+i}, v{ST+h+i} row_ror:{rot} row_mask:0xf bank_mask:0xf")
    for i in range(4): a(f"v_mul_f32 v{ST+i}, {f32(1/512)}, v{ST+i}")
    for i in range(4): a(f"v_mul_f32 v{ST+4+i}, v{ST+i}, v{ST+i}")
    a(f"s_mov_b32 s{sT0}, {f32(1/512)}")
    for i in range(4): a(f"v_fma_f32 v{ST+4+i}, v{ST+16+i}, s{sT0}, -v{ST+4+i}")
    for i in range(4): a(f"v_max_f32 v{ST+4+i}, 0, v{ST+4+i}")
    for i in range(4): a(f"v_add_f32 v{ST+4+i}, {f32(1e-5)}, v{ST+4+i}")
    for i in range(4): a(f"v_rsq_f32 v{ST+4+i}, v{ST+4+i}")
    for i in range(4): a(f"v_mul_f32 v{ST+i}, -v{ST+i}, v{ST+4+i}")
    for G in range(4):
        for i in range(4):
            row = i + 4*G
            a(f"v_readlane_b32 s{64+2*row}, v{ST+4+i}, {16*G}", f"v_readlane_b32 s{65+2*row}, v{ST+i}, {16*G}")
    a(f"s_add_u32 s{sT3}, s{sT3}, 262144", f"s_and_b32 s{sT3}, s{sT3}, 0x3fffff")
    a(wq_load(2))
    for i in range(16):
        for d in range(4):
            b = XN + 8*i + 2*d
            a(f"v_pk_fma_f32 {vr(b, 2)}, {vr(b, 2)}, s[{64+2*i}:{65+2*i}], s[{64+2*i}:{65+2*i}] op_sel:[0,0,1] op_sel_hi:[1,0,1]")
    stamp(3)
    a("v_lshlrev_b32 v1, 4, v0", "v_lshrrev_b32 v3, 3, v0", f"s_mov_b32 s{sSPIN}, {SPIN}")
    a(label("L_poll"))
    a(vm(f"buffer_load_dwordx4 v[4:7], v1, {srd(S_WS)}, 0 offen sc1", "pl"), vm(f"buffer_load_ubyte v8, v3, {srd(S_DBG)}, 0 offen sc1", "pl"), wvm0())
    a("v_cmp_ne_u32 vcc, v5, v8", f"v_cmp_ne_u32 s[{sT0}:{sT1}], v7, v8", f"v_cmp_eq_u32 s[{sEX}:{sEX+1}], 0, v8", "s_nop 1",
      f"s_or_b64 vcc, vcc, s[{sT0}:{sT1}]", f"s_or_b64 vcc, vcc, s[{sEX}:{sEX+1}]", "s_cbranch_vccz L_polld",
      f"s_sub_u32 s{sSPIN}, s{sSPIN}, 1", f"s_cmp_lg_u32 s{sSPIN}, 0", "s_cbranch_scc1 L_poll")
    a(label("L_polld"))
    stamp(4)
    a(unpack(8, 9, 4), unpack(10, 11, 6))
    a(f"s_cmp_ge_u32 s{sW}, 2", f"s_cselect_b32 s{sT0}, 1.0, 0")
    for i in range(4): a(f"v_add_f32 v{8+i}, s{sT0}, v{8+i}")
    a("v_cvt_pk_bf16_f32 v4, v8, v9", "v_cvt_pk_bf16_f32 v6, v10, v11", unpack(8, 9, 4), unpack(10, 11, 6))
    for i in range(4): a(f"v_mul_f32 v{8+i}, {f32(QSCALE)}, v{8+i}")
    a(f"v_add_u32 v1, {L_E0}, v1", lg("ds_write_b128 v1, v[8:11]", "gs"))
    a("s_cmp_lt_u32 s2, 32", "s_cbranch_scc1 L_nom2", "s_cmp_ge_u32 s2, 96", "s_cbranch_scc1 L_nom2", f"s_cmp_lg_u32 s{sW}, 0", "s_cbranch_scc1 L_nom2")
    P.rare_begin()
    a(f"v_mov_b32 v4, 1", f"v_mov_b32 v5, {DBG_M2}", "s_mov_b64 exec, 1", vm(f"buffer_atomic_add v4, v5, {srd(S_DBG)}, 0 offen sc1", "x"), "s_mov_b64 exec, -1")
    P.rare_end()
    a(label("L_nom2"))
    a("v_lshlrev_b32 v1, 5, v2", f"v_add_u32 v1, {L_E0}, v1")
    a("v_lshrrev_b32 v3, 2, v2", f"v_subrev_u32 v3, s{sRHO}, v3", "v_and_b32 v3, 15, v3")
    a(wlg0(), "s_barrier")
    SA, GG = 4, 12
    a(lg(f"ds_read_b128 {vr(SA, 4)}, v1", "g"), lg(f"ds_read_b128 {vr(GG, 4)}, v1 offset:2048", "g"),
      lg(f"ds_read_b128 {vr(SA+4, 4)}, v1 offset:16", "g"), lg(f"ds_read_b128 {vr(GG+4, 4)}, v1 offset:2064", "g"))
    a("v_and_b32 v1, 1, v3", "v_lshlrev_b32 v3, 12, v3", "v_lshl_or_b32 v3, v1, 6, v3", "v_and_b32 v1, 3, v2",
      "v_lshl_or_b32 v3, v1, 8, v3", "v_lshl_or_b32 v3, v1, 4, v3", f"s_lshl_b32 s{sT0}, s{sW}, 10", f"v_or_b32 v3, s{sT0}, v3")
    a(wlg0())
    for ql in range(8):
        if ql: a(f"v_xor_b32 v1, {16*ql}, v3")
        for qh in range(2):
            b = XN + 8*(ql + 8*qh)
            for d in range(4): a(f"v_pk_fma_f32 {vr(b+2*d, 2)}, {vr(b+2*d, 2)}, {vr(GG+2*d, 2)}, {vr(SA+2*d, 2)}")
            for d in range(4): a(f"v_cvt_pk_bf16_f32 v{b+d}, v{b+2*d}, v{b+2*d+1}")
            a(lg(f"ds_write_b128 v{1 if ql else 3}, {vr(b, 4)} offset:{128*qh}", "hw"))
    a("v_lshrrev_b32 v6, 4, v2", "v_xor_b32 v4, v2, v6", "v_lshlrev_b32 v4, 4, v4", "v_xor_b32 v5, 64, v4")
    a(f"s_mov_b32 s{sWQOFF}, s{sT3}")
    sWQOFF_cur[0] = sWQOFF
    a(wlg0(), "s_barrier")
    stamp(5)

V_HR = 4
def perms(t, c):
    b = R[t % 6]; F = FST[c & 1]
    o = []
    for par, sel in ((0, sSELLO), (1, sSELHI)):
        for m in range(4):
            o.append(f"v_perm_b32 v{F+4*par+m}, v{b+4*(2*m+1)+c}, v{b+4*(2*m)+c}, s{sel}")
    return o
def hreads(t):
    return [lg(f"ds_read_b128 {ar(A_HB+16*(t&1)+4*qt, 4)}, v{V_HR+(t&1)} offset:{t*4096+qt*1024}", f"h{t}") for qt in range(4)]
def wq_adv(): return [f"s_add_u32 s{sWQOFF}, s{sWQOFF}, 262144", f"s_and_b32 s{sWQOFF}, s{sWQOFF}, 0x3fffff"]

def kv_dma(u, slot=None):
    s = u & 3
    return [f"s_add_u32 m0, s{sW2K}, {L_K+8192*s}", "s_nop 0",
            vm(f"buffer_load_dwordx4 v{V_KD}, {srd(S_K)}, s{sKVOFF} offen lds", f"kv{u//2 & 1}"),
            vm(f"buffer_load_dwordx4 v{V_KD+1}, {srd(S_K)}, s{sKVOFF} offen offset:1024 lds", f"kv{u//2 & 1}"),
            f"s_add_u32 m0, s{sW2K}, {L_V+8192*s}", "s_nop 0",
            vm(f"buffer_load_dwordx4 v{V_VD}, {srd(S_V)}, s{sKVOFF} offen lds", f"kv{u//2 & 1}"),
            vm(f"buffer_load_dwordx4 v{V_VD+1}, {srd(S_V)}, s{sKVOFF} offen offset:1024 lds", f"kv{u//2 & 1}"),
            f"s_add_u32 s{sKVOFF}, s{sKVOFF}, 8192"]

def fkey(dst, k, t1, t2):
    return [f"v_lshrrev_b32 v{t1}, 1, v{k}", f"v_xor_b32 v{t2}, v{t1}, v{k}", f"v_and_b32 v{t1}, 4, v{t1}", f"v_and_b32 v{t2}, 4, v{t2}",
            f"v_and_b32 v{dst}, 3, v{k}", f"v_lshl_or_b32 v{dst}, v{t2}, 1, v{dst}", f"v_or_b32 v{dst}, v{dst}, v{t1}"]

def addr_setup():
    t0, t1, t2, t3, t4 = 240, 241, 242, 243, 244
    o = []
    o += [f"s_lshl_b32 s{sW2K}, s{sW}, 11", f"s_lshl_b32 s{sW4K}, s{sW}, 12",
          f"s_lshl_b32 s{sKVOFF}, s{sG}, 19", f"s_add_u32 s{sKVOFF}, s{sKVOFF}, {1536*256}"]
    o += [f"v_lshrrev_b32 v{t0}, 4, v2", f"v_and_b32 v{t4}, 15, v2", f"s_lshl_b32 s{sT0}, s{sW}, 3", f"v_add_u32 v{t0}, s{sT0}, v{t0}"]
    for i in range(2):
        o += [f"v_add_u32 v{t3}, {4*i}, v{t0}", f"v_and_b32 v{t3}, 15, v{t3}"]
        o += fkey(V_KD+i, t3, t1, t2)
        o += [f"v_xor_b32 v{V_KD+i}, v{V_KD+i}, v{t4}", f"v_lshlrev_b32 v{V_KD+i}, 4, v{V_KD+i}", f"v_lshl_or_b32 v{V_KD+i}, v{t0}, 8, v{V_KD+i}"]
        o += [f"v_and_b32 v{t3}, 7, v{t3}", f"v_lshlrev_b32 v{t3}, 1, v{t3}", f"v_xor_b32 v{V_VD+i}, v{t3}, v{t4}",
              f"v_lshlrev_b32 v{V_VD+i}, 4, v{V_VD+i}", f"v_lshl_or_b32 v{V_VD+i}, v{t0}, 8, v{V_VD+i}"]
    o += fkey(t3, t4, t1, t2)
    o += [f"v_lshrrev_b32 v{t0}, 4, v2", f"v_lshlrev_b32 v{t1}, 2, v{t0}", f"v_xor_b32 v{t3}, v{t3}, v{t1}", f"v_lshlrev_b32 v{t3}, 4, v{t3}",
          f"v_lshl_or_b32 v{t3}, v{t4}, 8, v{t3}", f"v_add_u32 v{V_KR}, {L_K}, v{t3}"]
    for s in range(1, 4): o += [f"v_xor_b32 v{V_KR+s}, {16*s}, v{V_KR}"]
    o += [f"v_lshrrev_b32 v{t0}, 2, v2", f"v_and_b32 v{t1}, 7, v{t0}", f"v_and_b32 v{t2}, 3, v2", f"v_lshlrev_b32 v{t2}, 3, v{t2}",
          f"v_lshl_or_b32 v{t2}, v{t1}, 5, v{t2}", f"v_lshl_or_b32 v{t2}, v{t0}, 8, v{t2}", f"v_add_u32 v{V_VR}, {L_V}, v{t2}"]
    for dt in range(1, 8): o += [f"v_xor_b32 v{V_VR+dt}, {32*dt}, v{V_VR}"]
    o += [f"v_mov_b32 v{t0}, 0x3f803f80"] + [f"v_accvgpr_write_b32 a{A_ONE+i}, v{t0}" for i in range(4)]
    o += [f"v_accvgpr_write_b32 a{A_SEN+i}, -1" for i in range(4)]
    o += [f"s_lshl_b32 s{sT0}, s{sRB}, 3", f"s_mul_i32 s{sTEAM}, s{sT0}, {MB_SZ}", f"s_add_u32 s{sTEAM}, s{sTEAM}, {WS_MB}",
          f"s_mul_i32 s{sT0}, s{sG}, {MB_SZ}", f"s_add_u32 s{sMB}, s{sTEAM}, s{sT0}",
          f"s_mul_i32 s{sT0}, s{sW}, 36864", f"s_add_u32 s{sPF}, s{sMB}, s{sT0}",
          f"s_lshl_b32 s{sWOB}, s{sG}, 19", f"s_mul_i32 s{sW1B}, s{sG}, 448", f"s_mul_i32 s{sW2B}, s{sG}, {224*1024}", f"s_mov_b32 s{sBAD}, 0"]
    return o

def qproj():
    a = P.add
    for t in (3, 4, 5): a(wq_adv(), wq_load(t))
    a(hreads(0), perms(0, 0), wlg("h0"))
    extra = addr_setup()
    wu = warmups()
    for t in range(16):
        for c in range(4):
            F = FST[c & 1]
            mf = []
            for par in range(2):
                for qt in range(4):
                    d = ar(A_QACC + ((2*c+par)*4+qt)*4, 4)
                    mf.append(f"{MF} {d}, {vr(F+4*par, 4)}, {ar(A_HB+16*(t&1)+4*qt, 4)}, {d if t else 0}")
            fl = []
            if c < 3: pm = perms(t, c+1)
            elif t < 15: pm = [wvm(f"wq{t+1}")] + perms(t+1, 0)
            else: pm = []
            oth = []
            if c == 3 and t + 6 < 16: oth = wq_load(t+6)[:4]
            if c == 0 and 1 <= t and t + 5 < 16: oth = wq_load(t+5)[4:]
            if c == 1 and t < 15: oth = hreads(t+1)
            if c == 2 and t + 6 < 16: oth = wq_adv()
            if c in (1, 2) and t < 10:
                k = 4 if c == 1 else 6
                oth = oth + extra[:k]; extra = extra[k:]
            if t == 7 and c == 2: oth += [f"v_mov_b32 v246, {DBG_M2}", vm(f"buffer_load_dword v247, v246, {srd(S_DBG)}, 0 offen sc1", "m2c")]
            if 10 <= t <= 13 and c in (0, 2):
                assert not extra
                d = kv_dma(t - 10)
                oth += d[:4] if c == 0 else d[4:]
            if t >= 14 and wu:
                oth += wu[:6]; wu = wu[6:]
            merged = []
            while pm or oth:
                if pm: merged.append(pm.pop(0))
                if merged and isinstance(merged[-1], Ins) and merged[-1].kind == "wvm" and pm: merged.append(pm.pop(0)); continue
                if oth:
                    x = oth.pop(0); merged.append(x)
                    while isinstance(x, str) and (x.startswith("s_nop") or " m0," in x) and oth:
                        x = oth.pop(0); merged.append(x)
            lead = [wlg(f"h{t}")] if (c == 0 and t > 0) else []
            a(interleave(mf, merged, cap=2, lead=lead))
    assert not extra and not wu
    a(wvm("m2c"), "v_readfirstlane_b32 s60, v247", "s_nop 0", "s_cmp_eq_u32 s60, 64", "s_cbranch_scc1 L_m2ok")
    P.rare_begin()
    a(f"s_mov_b32 s{sSPIN}, {SPIN}", label("L_m2spin"), vm(f"buffer_load_dword v247, v246, {srd(S_DBG)}, 0 offen sc1", "x"), wvm0(),
      "v_readfirstlane_b32 s60, v247", "s_nop 0", "s_cmp_eq_u32 s60, 64", "s_cbranch_scc1 L_m2ok",
      f"s_sub_u32 s{sSPIN}, s{sSPIN}, 1", f"s_cmp_lg_u32 s{sSPIN}, 0", "s_cbranch_scc1 L_m2spin")
    P.rare_end()
    a(label("L_m2ok"))
    a(wvm("kv0", "kv1"), "s_barrier")
    stamp(6)

def KF(u, kt, s): return A_KF + 32*(u & 1) + 16*kt + 4*s
def VF(u, dt): return A_VF + 32*(u & 1) + 4*dt
def OA(dt, qt): return V_O + (dt*4 + qt)*4
def QF(s, qt): return V_Q + (s*4 + qt)*4
def kreads(u):
    return [lg(f"ds_read_b128 {ar(KF(u, kt, s), 4)}, v{V_KR+s} offset:{(u&3)*8192+kt*4096}", f"k{u&1}") for s in range(4) for kt in range(2)]
def vreads(u):
    return [lg(f"ds_read_b64_tr_b16 {ar(VF(u, dt)+2*hh, 2)}, v{V_VR+dt} offset:{(u&3)*8192+hh*4096}", f"v{u&1}") for dt in range(8) for hh in range(2)]
def qk(n):
    u, qt = divmod(n, 4)
    o = []
    for s in range(4):
        for kt in range(2):
            d = vr(V_S + 8*(n & 1) + 4*kt, 4)
            o.append(f"{MF} {d}, {ar(KF(u, kt, s), 4)}, {vr(QF(s, qt), 4)}, {d if s else vr(V_NM+4*qt, 4)}")
    return o
def pv(n):
    u, qt = divmod(n, 4)
    p = vr(V_P + 4*(n & 1), 4)
    o = []
    for dt in range(8):
        d = vr(OA(dt, qt), 4)
        o.append(f"{MF} {d}, {ar(VF(u, dt), 4)}, {p}, {d if u else 0}")
    d = ar(A_L + 4*qt, 4)
    o.append(f"{MF} {d}, {ar(A_ONE, 4)}, {p}, {d if u else 0}")
    return o
def sreg(n, i):
    if n < 4: return OA(2*n + (i >> 2), 3) + (i & 3)
    return V_S + 8*(n & 1) + i
def expo(n):
    e = [f"v_exp_f32 v{sreg(n, i)}, v{sreg(n, i)}" for i in range(8)]
    c = [f"v_cvt_pk_bf16_f32 v{V_P+4*(n&1)+i}, v{sreg(n, 2*i)}, v{sreg(n, 2*i+1)}" for i in range(4)]
    pre = [f"v_add_f32 v{sreg(n, i)}, v{sreg(n, i)}, v{V_NM+4*n}" for i in range(8)] if n < 4 else []
    return pre, e, c

def stage_dma(sig):
    st = STAGES[sig % 6]
    if sig < 32:
        p, t = divmod(sig, 16); S, vb, base, off = S_WO, V_WD, sWOB, t*32768 + 128*p
    elif sig < 48:
        pos = sig - 32; tb = 4*((pos >> 1) & 3) + 2*(pos >> 3) + (pos & 1)
        S, vb, base, off = S_W1, V_W1D, sW1B, tb*32*3584
    else:
        p, t = divmod(sig - 48, 7); S, vb, base, off = S_W2, V_WD, sW2B, t*32768 + 128*p
    return [f"s_add_u32 s{sT3}, s{base}, {off}", f"s_add_u32 m0, s{sW4K}, {st}", "s_nop 0"] + \
           [vm(f"buffer_load_dwordx4 v{vb+i}, {srd(S)}, s{sT3} offen offset:{1024*i} lds", f"st{sig}") for i in range(4)]

def prefill6():
    o = []
    for i in range(6):
        o.append(vm(f"buffer_store_dwordx4 {ar(A_SEN, 4)}, v{V_PF}, {srd(S_WS)}, s{sPF} offen offset:{1024*(i%3)} sc1", "pf"))
        if i % 3 == 2: o.append(f"s_add_u32 s{sPF}, s{sPF}, 3072")
    return o

def glue(lst):
    return lst

def muslot(n, extra=(), last_u=15):
    has_qk = 4 <= n + 2 <= 63
    mf = (qk(n+2) if has_qk else []) + pv(n)
    nq = 8 if has_qk else 0
    pre, e, c = expo(n+1) if n + 1 <= 63 else ([], [], [])
    u = n // 4 + 1
    ph = n % 4
    ds = []
    if u <= last_u:
        kr, vrd = kreads(u), vreads(u)
        if n < 4: kr = []
        if ph < 2: ds = kr[4*ph:4*ph+4] + vrd[2*ph:2*ph+2]
        else: ds = vrd[4+6*(ph-2):10+6*(ph-2)]
    oth = ds + list(extra)
    gaps = [[] for _ in mf]
    G = len(mf)
    seq = []
    ev = list(pre)
    for i in range(len(e)):
        ev.append(e[i])
        if i >= 2 and i % 2 == 0: ev.append(c[i//2 - 1])
    if c: ev.append("s_nop 0" if False else c[3])
    return mf, nq, ev, oth

def place(mf, ev, oth, lead, mid=None, nq=0):
    out = list(lead)
    ev = [op(x) if isinstance(x, str) else x for x in ev]
    oth = [op(x) if isinstance(x, str) else x for x in oth]
    G = len(mf)
    for k, m in enumerate(mf):
        if mid and k == nq: out += mid
        out.append(op(m))
        left = G - k
        tot = sum(x.cost for x in ev) + sum(x.cost for x in oth)
        cap = max(2, -(-tot // left))
        used = 0
        prefer_ev = (k % 2 == 0)
        while used < cap and (ev or oth):
            src = None
            order = (ev, oth) if prefer_ev else (oth, ev)
            for L in order:
                if L and (used + L[0].cost <= cap):
                    if L is ev and L[0].text.startswith("v_cvt") and out[-1].text.startswith("v_exp"): continue
                    src = L; break
            if src is None: break
            x = src.pop(0); out.append(x); used += x.cost
            while src is oth and oth and (" m0," in x.text or x.text.startswith("s_nop")):
                x = oth.pop(0); out.append(x); used += x.cost
    for x in ev:
        if x.text.startswith("v_cvt") and out[-1].text.startswith("v_exp"): out.append(op("s_nop 0"))
        out.append(x)
    out += oth
    return out

V_W1D, V_TR, V_LIN, V_PS, V_GA = 17, 8, 16, 21, 22
def normalize(qt):
    rl = V_NM + 2*qt
    o = [f"v_accvgpr_read_b32 v{rl}, a{A_L+4*qt}", f"v_cmp_nle_f32 vcc, v{rl}, v7", f"v_rcp_f32 v{rl}, v{rl}", "s_nop 0",
         f"s_or_b32 s{sBAD}, s{sBAD}, vcc_lo", f"s_or_b32 s{sBAD}, s{sBAD}, vcc_hi"]
    for u in range(4):
        x, y = OA(2*u, qt), OA(2*u+1, qt)
        for b in (x, x+2, y, y+2): o.append(f"v_pk_mul_f32 {vr(b, 2)}, {vr(b, 2)}, {vr(rl, 2)} op_sel_hi:[1,0]")
        o += [f"v_cvt_pk_bf16_f32 v{x}, v{x}, v{x+1}", f"v_cvt_pk_bf16_f32 v{x+1}, v{x+2}, v{x+3}",
              f"v_cvt_pk_bf16_f32 v{x+2}, v{y}, v{y+1}", f"v_cvt_pk_bf16_f32 v{x+3}, v{y+2}, v{y+3}"]
        o.append(lg(f"ds_write_b128 v1, {vr(x, 4)} offset:{u*4096+qt*1024}", "ow"))
    return o

def param_loads():
    o = []
    t = 32
    L = 31
    o += [f"v_and_b32 v{t}, 3, v{L}", f"v_bfe_u32 v{t+1}, v{L}, 3, 1", f"v_lshrrev_b32 v{t+2}, 4, v{L}", f"v_bfe_u32 v{t+3}, v{L}, 2, 1"]
    o += [f"v_lshlrev_b32 v{t+4}, 10, v{t+2}", f"v_lshl_or_b32 v{t+4}, v{t+1}, 8, v{t+4}", f"v_lshl_or_b32 v{t+4}, v{t}, 6, v{t+4}", f"s_mov_b32 s{sT0}, {WS_M2}"]
    for p in range(2):
        for vec in range(4):
            o.append(vm(f"buffer_load_dwordx4 {ar(A_M2+16*p+4*vec, 4)}, v{t+4}, {srd(S_WS)}, s{sT0} offen offset:{512*p+16*vec} sc1", "par"))
    o += [f"v_lshlrev_b32 v{t+5}, 8, v{t+2}", f"v_lshl_or_b32 v{t+5}, v{t+1}, 6, v{t+5}", f"v_lshl_or_b32 v{t+5}, v{t}, 3, v{t+5}"]
    o += mk_srd(S_TA, S_B2P, 1024)
    for p in range(2):
        for h in range(2):
            o.append(vm(f"buffer_load_dwordx2 {ar(A_B2+4*p+2*h, 2)}, v{t+5}, {srd(S_TA)}, 0 offen offset:{128*p+32*h}", "par"))
    o += [f"v_lshl_or_b32 v{t+6}, v{t+3}, 10, v{t+5}", f"s_lshl_b32 s{sT0}, s{sRB}, 2", f"s_add_u32 s{sT0}, s{sT0}, s{sW}", f"s_lshl_b32 s{sT0}, s{sT0}, 3",
          f"s_add_u32 s{sT0}, s{sT0}, s{sG}", f"s_lshl_b32 s{sT0}, s{sT0}, 11"]
    for p in range(2):
        for h in range(2):
            o.append(vm(f"buffer_load_dwordx2 {ar(A_XR+4*p+2*h, 2)}, v{t+6}, {srd(S_X)}, s{sT0} offen offset:{128*p+32*h}", "par"))
    o += [f"v_accvgpr_write_b32 a{A_B1+8}, v{t+6}"]
    o += mk_srd(S_TB, S_B1P, 3584)
    o += [f"v_lshlrev_b32 v{t+7}, 3, v{t+2}", f"s_lshl_b32 s{sT1}, s{sW}, 7", f"s_add_u32 s{sT1}, s{sT1}, s{sW1B}"]
    for e in range(4):
        o.append(vm(f"buffer_load_dwordx2 {ar(A_B1+2*e, 2)}, v{t+7}, {srd(S_TB)}, s{sT1} offen offset:{32*e}", "par"))
    return o

def warmups():
    o = []
    t = 240
    o += [f"v_lshlrev_b32 v{t}, 6, v2", f"s_lshl_b32 s{sT0}, s{sRHO}, 2", f"s_add_u32 s{sT0}, s{sT0}, s{sW}", f"s_lshl_b32 s{sT1}, s{sT0}, 13", f"s_add_u32 s{sT1}, s{sT1}, s{sWOB}"]
    o += [vm(f"buffer_load_dword a{A_DUM}, v{t}, {srd(S_WO)}, s{sT1} offen", "dummy"), f"s_add_u32 s{sT1}, s{sT1}, 4096",
          vm(f"buffer_load_dword a{A_DUM+1}, v{t}, {srd(S_WO)}, s{sT1} offen", "dummy")]
    o += [f"s_mul_i32 s{sT1}, s{sT0}, 3584", f"s_add_u32 s{sT1}, s{sT1}, s{sW2B}", vm(f"buffer_load_dword a{A_DUM+2}, v{t}, {srd(S_W2)}, s{sT1} offen", "dummy")]
    o += [f"v_lshrrev_b32 v{t+1}, 3, v2", f"v_and_b32 v{t+2}, 7, v2", f"v_mul_u32_u24 v{t+1}, 3584, v{t+1}", f"v_lshl_add_u32 v{t+1}, v{t+2}, 6, v{t+1}",
          f"s_mul_i32 s{sT1}, s{sT0}, {8*3584}", f"s_add_u32 s{sT1}, s{sT1}, s{sW1B}", vm(f"buffer_load_dword a{A_DUM+3}, v{t+1}, {srd(S_W1)}, s{sT1} offen", "dummy")]
    return o

def attention():
    a = P.add
    a(kreads(0))
    T = 32
    def conv(qt):
        o = []
        for s in range(4):
            for mm in (0, 2):
                t = T + 4*((2*s + mm//2) & 3)
                for k in range(4): o.append(f"v_accvgpr_read_b32 v{t+k}, a{A_QACC+((2*mm+k)*4+qt)*4+s}")
                o += [f"v_cvt_pk_bf16_f32 v{QF(s, qt)+mm}, v{t}, v{t+1}", f"v_cvt_pk_bf16_f32 v{QF(s, qt)+mm+1}, v{t+2}, v{t+3}"]
        return o
    def s0(qt):
        o = []
        for s in range(4):
            for kt in range(2):
                d = vr(OA(2*qt+kt, 3), 4)
                o.append(f"{MF} {d}, {ar(KF(0, kt, s), 4)}, {vr(QF(s, qt), 4)}, {d if s else 0}")
        return o
    def maxred(qt):
        r = [sreg(qt, i) for i in range(8)]
        m, t = V_NM + 4*qt, V_NM + 4*qt + 1
        return [f"v_max3_f32 v{m}, v{r[0]}, v{r[1]}, v{r[2]}", f"v_max3_f32 v{t}, v{r[3]}, v{r[4]}, v{r[5]}", f"v_max3_f32 v{m}, v{m}, v{r[6]}, v{r[7]}",
                f"v_max_f32 v{m}, v{m}, v{t}", f"v_mov_b32 v{t}, v{m}", "s_nop 1", f"v_permlane16_swap_b32 v{m}, v{t}", f"v_max_f32 v{m}, v{m}, v{t}",
                f"v_mov_b32 v{t}, v{m}", "s_nop 1", f"v_permlane32_swap_b32 v{m}, v{t}", f"v_max_f32 v{m}, v{m}, v{t}",
                f"v_mul_f32 v{m}, -1.0, v{m}", f"v_mov_b32 v{m+1}, v{m}", f"v_mov_b32 v{m+2}, v{m}", f"v_mov_b32 v{m+3}, v{m}"]
    a("s_nop 3", conv(0), kreads(1), wlg("k0"))
    for qt in range(4):
        fl = conv(qt+1) if qt < 3 else []
        a(interleave(s0(qt), fl, cap=6))
        if qt == 3: a(vreads(0))
        if qt >= 1: a(maxred(qt-1))
    a("v_lshrrev_b32 v1, 3, v2", "v_lshrrev_b32 v6, 4, v2", "v_and_b32 v7, 7, v2", "v_lshlrev_b32 v6, 1, v6", "v_xor_b32 v7, v7, v6", "v_lshlrev_b32 v7, 4, v7")
    a(f"v_accvgpr_write_b32 a{A_B1+9}, v7")
    a(f"s_lshl_b32 s{sT0}, s{sW}, 8", f"v_lshl_or_b32 v7, v1, 10, v7")
    a(maxred(3))
    lane = "v2"
    a(f"v_lshlrev_b32 v{V_PF}, 4, v2", f"s_lshl_b32 s{sT1}, s{sW}, 14", f"v_add_u32 v1, s{sT1}, v{V_PF}", f"s_lshl_b32 s{sT0}, s{sW}, 8")
    a(f"v_add_u32 v{V_WD}, s{sT0}, v7")
    for i in range(1, 4): a(f"v_add_u32 v{V_WD+i}, {7168*i}, v{V_WD}")
    a(f"v_mov_b32 v7, {f32(2.0**30) if not cfg.force_fallback else f32(1e-3)}")
    pre, e, c = expo(0)
    a(pre, e, "s_nop 0", c)
    stamp(7)
    def slot(n, extra=(), lead=(), ev_extra=()):
        mf, nq, ev, oth = muslot(n, extra)
        u, ph = divmod(n, 4)
        ld = list(lead)
        if n + 2 >= 4 and (n + 2) % 4 == 0 and n + 2 <= 63: ld.append(wlg(f"k{((n+2)//4) & 1}"))
        mid = [wlg(f"v{u & 1}")] if ph == 0 else None
        if mid and nq == 0: ld += mid; mid = None
        if nq == 0: ld.append(op("s_nop 1"))
        return place(mf, ev + list(ev_extra), oth, ld, mid, nq)
    a(slot(0, extra=stage_dma(0)), slot(1, extra=stage_dma(1)), slot(2), slot(3))
    a(f"s_mov_b32 s{sLOOP}, 3")
    a(raw(".p2align 6"))
    a(label("L_attn"))
    P.loop_begin(3)
    for n in range(4, 20):
        j8 = (n - 4) % 8
        lead, extra = [], []
        u0 = 2*((n - 4)//8) + 4
        if j8 == 0:
            lead = [wlg0(), wvm(f"kv{(u0//2 + 1) & 1}"), op("s_barrier")]
            extra = kv_dma(u0)
        elif j8 == 1: extra = kv_dma(u0 + 1)
        elif j8 == 2: extra = prefill6()[:4]
        elif j8 == 3: extra = prefill6()[4:]
        if n == 19: extra = [f"s_sub_u32 s{sLOOP}, s{sLOOP}, 1", f"s_cmp_lg_u32 s{sLOOP}, 0"]
        a(slot(n, extra=extra, lead=lead))
    a("s_cbranch_scc1 L_attn")
    P.loop_end()
    nrm = []
    for n in range(52, 64):
        lead, extra = [], []
        if n == 52:
            lead = [wlg0(), wvm("kv1"), op("s_barrier")]
            extra = stage_dma(2)
        if n == 53: extra = stage_dma(3)
        if n == 58:
            extra = [wvm("pf"), f"s_lshr_b32 s{sT0}, s{sRB}, 2", f"s_lshl_b32 s{sT0}, s{sT0}, 2", f"s_add_u32 s{sT0}, s{sT0}, {DBG_TEAM}",
                     f"s_and_b32 s{sT1}, s{sRB}, 3", f"s_lshl_b32 s{sT1}, s{sT1}, 3", f"s_lshl_b32 s{sT1}, 1, s{sT1}"]
        if n == 59:
            extra = [f"v_mov_b32 v{V_NM}, s{sT0}", f"v_mov_b32 v{V_NM+1}, s{sT1}", "s_mov_b64 exec, 1",
                     vm(f"buffer_atomic_add v{V_NM+1}, v{V_NM}, {srd(S_DBG)}, 0 offen sc1", "at"), "s_mov_b64 exec, -1"]
            a(extra); extra = []
        if n >= 61:
            mf, nq, ev, oth = muslot(n)
            nrm += normalize(n - 61)
            out = []
            body = place(mf, ev, [], [], None, nq) if n == 61 else None
            if n == 61:
                a(body)
            else:
                take = nrm[:22]; nrm = nrm[22:]
                a(place(mf, ev, take, [op("s_nop 1")], None, nq))
            continue
        a(slot(n, extra=extra, lead=lead))
    a(nrm, "s_nop 2", normalize(3))
    a(f"s_cmp_lg_u32 s{sBAD}, 0", "s_cbranch_scc1 L_fallback")
    a(label("L_fb_ret"))
    a(wlg0(), "s_barrier")
    stamp(8)

A_AF, A_BF = 0, 32
ACCX, ACCY = 128, 192
G0, G1 = 64, 96
def areads(sig):
    st = STAGES[sig % 6]
    hi = st >= L_E0
    off = st - (L_E0 if hi else L_K)
    return [lg(f"ds_read_b64_tr_b16 {ar(A_AF+16*(sig&1)+4*e+2*hh, 2)}, v{V_TR+4*hi+e} offset:{off+2048*hh}", f"a{sig}") for e in range(4) for hh in range(2)]
def breads(sig):
    if sig < 32: t, v = sig % 16, V_LIN
    elif sig < 48: t, v = sig - 32, V_YR
    else: t, v = (sig - 48) % 7, V_LIN
    return [lg(f"ds_read_b128 {ar(A_BF+16*(sig&1)+4*qt, 4)}, v{v} offset:{t*4096+qt*1024}", f"a{sig}") for qt in range(4)]
V_YR, V_YW = 23, 24
V_X1, V_B1F = 32, 48
def gstep(sig, acc, first, cinit=None, extra=(), next_reads=True, bnext=True):
    mf = []
    for e in range(4):
        for qt in range(4):
            d = vr(acc + (e*4+qt)*4, 4)
            c = d if not first else (0 if cinit is None else vr(cinit + 4*e, 4))
            mf.append(f"{MF} {d}, {ar(A_AF+16*(sig&1)+4*e, 4)}, {ar(A_BF+16*(sig&1)+4*qt, 4)}, {c}")
    fl = []
    if next_reads:
        fl += [wvm(f"st{sig+1}")] + areads(sig+1)
        if bnext: fl += breads(sig+1)
    if sig + 6 < 62: fl += stage_dma(sig+6)
    return place(mf, [], fl + list(extra), [wlg(f"a{sig}")])

def pack_store(acc, p, mboff):
    o = [f"s_lshl_b32 s{sPST}, s{sW}, 13", f"s_add_u32 s{sPST}, s{sPST}, s{sMB}", f"s_add_u32 s{sPST}, s{sPST}, {mboff+32768*p}"]
    for qt in range(4):
        if qt == 2: o.append(f"s_add_u32 s{sPST}, s{sPST}, 4096")
        for b in range(2):
            x, y = acc + (2*b*4+qt)*4, acc + ((2*b+1)*4+qt)*4
            o += [f"v_cvt_pk_bf16_f32 v{x}, v{x}, v{x+1}", f"v_cvt_pk_bf16_f32 v{x+1}, v{x+2}, v{x+3}",
                  f"v_cvt_pk_bf16_f32 v{x+2}, v{y}, v{y+1}", f"v_cvt_pk_bf16_f32 v{x+3}, v{y+2}, v{y+3}",
                  vm(f"buffer_store_dwordx4 {vr(x, 4)}, v{V_PS}, {srd(S_WS)}, s{sPST} offen offset:{(qt&1)*2048+b*1024} sc1", "ps")]
    return o

def gather_loads(buf, n, voff, soffs, tag):
    o = []
    for i in range(n):
        o += [f"s_add_u32 s{sGAT}, s{sTEAM}, {soffs(i)}", vm(f"buffer_load_dwordx4 {vr(buf+4*i, 4)}, v{voff}, {srd(S_WS)}, s{sGAT} offen sc1", tag)]
    return o
def gather_check(buf, n, voff, soffs, tag, tmp):
    a = P.add
    ok, again = newlabel("gok"), newlabel("gre")
    def allmax():
        o = [f"v_max3_u32 v{tmp}, v{buf}, v{buf+1}, v{buf+2}", f"v_max_u32 v{tmp+1}, v{buf+3}, v{buf+4}"]
        k = 5
        while k + 3 < 4*n:
            o += [f"v_max3_u32 v{tmp}, v{tmp}, v{buf+k}, v{buf+k+1}", f"v_max3_u32 v{tmp+1}, v{tmp+1}, v{buf+k+2}, v{buf+k+3}"]; k += 4
        assert 4*n - k == 3
        o += [f"v_max3_u32 v{tmp}, v{tmp}, v{buf+k}, v{buf+k+1}", f"v_max3_u32 v{tmp}, v{tmp}, v{tmp+1}, v{buf+k+2}", f"v_cmp_eq_u32 vcc, -1, v{tmp}"]
        return o
    a(wvm(tag), allmax(), f"s_cbranch_vccz {ok}")
    P.rare_begin()
    a(f"s_mov_b32 s{sSPIN}, {SPIN}", label(again))
    for i in range(n):
        sk = newlabel("gsk")
        b = buf + 4*i
        a(f"v_max3_u32 v{tmp}, v{b}, v{b+1}, v{b+2}", f"v_max_u32 v{tmp}, v{tmp}, v{b+3}", f"v_cmp_eq_u32 vcc, -1, v{tmp}", f"s_cbranch_vccz {sk}",
          f"s_add_u32 s{sGAT}, s{sTEAM}, {soffs(i)}", vm(f"buffer_load_dwordx4 {vr(b, 4)}, v{voff}, {srd(S_WS)}, s{sGAT} offen sc1", "x"), label(sk))
    a(wvm0(), allmax(), f"s_cbranch_vccz {ok}", f"s_sub_u32 s{sSPIN}, s{sSPIN}, 1", f"s_cmp_lg_u32 s{sSPIN}, 0", f"s_cbranch_scc1 {again}")
    P.rare_end()
    a(label(ok))

def sum8(buf, dst, tmp):
    o = []
    for g in range(8):
        for d in range(4):
            if g == 0: o += unpack(dst+2*d, dst+2*d+1, buf+d)
            else:
                t = tmp + 2*d
                o += unpack(t, t+1, buf+4*g+d)
        if g:
            for d in range(4): o.append(f"v_pk_add_f32 {vr(dst+2*d, 2)}, {vr(dst+2*d, 2)}, {vr(tmp+2*d, 2)}")
    return o

def aunpack(dst, asrc, n, tmp):
    o = [f"v_accvgpr_read_b32 v{tmp+i}, a{asrc+i}" for i in range(n)]
    for i in range(n): o += unpack(dst+2*i, dst+2*i+1, tmp+i)
    return o

def rowstats(x, t):
    o = [f"v_pk_add_f32 {vr(t, 2)}, {vr(x, 2)}, {vr(x+2, 2)}", f"v_pk_mul_f32 {vr(t+2, 2)}, {vr(x, 2)}, {vr(x, 2)}",
         f"v_pk_add_f32 {vr(t+4, 2)}, {vr(x+4, 2)}, {vr(x+6, 2)}", f"v_pk_mul_f32 {vr(t+6, 2)}, {vr(x+2, 2)}, {vr(x+2, 2)}"]
    for k in range(4, 16, 2):
        if k >= 8: o.append(f"v_pk_add_f32 {vr(t+4*((k>>1)&1), 2)}, {vr(t+4*((k>>1)&1), 2)}, {vr(x+k, 2)}")
        o.append(f"v_pk_fma_f32 {vr(t+2+4*((k>>1)&1), 2)}, {vr(x+k, 2)}, {vr(x+k, 2)}, {vr(t+2+4*((k>>1)&1), 2)}")
    o += [f"v_pk_add_f32 {vr(t, 2)}, {vr(t, 2)}, {vr(t+4, 2)}", f"v_pk_add_f32 {vr(t+2, 2)}, {vr(t+2, 2)}, {vr(t+6, 2)}",
          f"v_add_f32 v{t}, v{t}, v{t+1}", f"v_add_f32 v{t+1}, v{t+2}, v{t+3}"]
    for m in ("quad_perm:[1,0,3,2]", "quad_perm:[2,3,0,1]", "row_ror:8"):
        o += ["s_nop 0", f"v_add_f32_dpp v{t}, v{t}, v{t} {m} row_mask:0xf bank_mask:0xf", f"v_add_f32_dpp v{t+1}, v{t+1}, v{t+1} {m} row_mask:0xf bank_mask:0xf"]
    for sw in ("v_permlane16_swap_b32", "v_permlane32_swap_b32"):
        o += [f"v_mov_b32 v{t+2}, v{t}", f"v_mov_b32 v{t+3}, v{t+1}", "s_nop 0", f"{sw} v{t}, v{t+2}", f"{sw} v{t+1}, v{t+3}",
              f"v_add_f32 v{t}, v{t}, v{t+2}", f"v_add_f32 v{t+1}, v{t+1}, v{t+3}"]
    o += [f"v_mul_f32 v{t+2}, {f32(1/512)}, v{t}", f"v_mul_f32 v{t+1}, {f32(1/512)}, v{t+1}", f"v_fma_f32 v{t}, -v{t+2}, v{t+2}, v{t+1}",
          f"v_max_f32 v{t}, 0, v{t}", f"v_add_f32 v{t}, {f32(1e-5)}, v{t}", f"v_rsq_f32 v{t}, v{t}", "s_nop 0", f"v_mul_f32 v{t+1}, -v{t+2}, v{t}"]
    return o

def ring_addr_setup():
    L, t0, t1, t2 = 31, 28, 29, 30
    o = [f"v_and_b32 v{L}, 63, v0"]
    o += [f"v_lshrrev_b32 v{t0}, 2, v{L}", f"v_bfe_u32 v{t1}, v{L}, 3, 2", f"v_and_b32 v{t2}, 3, v{L}", f"v_lshlrev_b32 v{t2}, 3, v{t2}",
          f"v_lshl_or_b32 v{t2}, v{t1}, 5, v{t2}", f"v_lshl_or_b32 v{t2}, v{t0}, 7, v{t2}", f"s_add_u32 s{sT0}, s{sW4K}, {L_K}", f"v_add_u32 v{V_TR}, s{sT0}, v{t2}"]
    for e in range(1, 4): o.append(f"v_xor_b32 v{V_TR+e}, {32*e}, v{V_TR}")
    for e in range(4): o.append(f"v_add_u32 v{V_TR+4+e}, {L_E0-L_K}, v{V_TR+e}")
    o.append(f"v_lshlrev_b32 v{V_LIN}, 4, v{L}")
    return o
def ring_addr_setup2():
    L, t0, t1, t2 = 31, 28, 29, 30
    o = []
    o += [f"v_bfe_u32 v{t0}, v{L}, 1, 3", f"v_and_b32 v{t1}, 1, v{L}", f"v_lshrrev_b32 v{t2}, 4, v{L}", f"v_lshlrev_b32 v{V_PS}, 7, v{t0}",
          f"v_lshl_or_b32 v{V_PS}, v{t1}, 6, v{V_PS}", f"v_lshl_or_b32 v{V_PS}, v{t2}, 4, v{V_PS}"]
    o += [f"v_bfe_u32 v{t0}, v{L}, 3, 1", f"v_and_b32 v{t1}, 7, v{L}", f"v_lshlrev_b32 v{V_GA}, 13, v{t2}", f"v_lshl_or_b32 v{V_GA}, v{t0}, 10, v{V_GA}",
          f"v_lshl_or_b32 v{V_GA}, v{t1}, 4, v{V_GA}", f"s_lshl_b32 s{sT0}, s{sG}, 7", f"s_add_u32 s{sT0}, s{sT0}, s{sW2K}", f"v_add_u32 v{V_GA}, s{sT0}, v{V_GA}"]
    o += [f"v_accvgpr_read_b32 v{t0}, a{A_B1+9}", f"v_lshrrev_b32 v{t1}, 3, v{L}", f"v_mul_u32_u24 v{t1}, 3584, v{t1}", f"s_lshl_b32 s{sT0}, s{sW}, 7",
          f"v_add3_u32 v{V_W1D}, v{t0}, v{t1}, s{sT0}"]
    for i in range(1, 4): o.append(f"v_add_u32 v{V_W1D+i}, {(8*3584-1024)*i}, v{V_W1D}")
    o += [f"v_lshlrev_b32 v{t0}, 1, v{t2}", f"v_xor_b32 v{V_YR}, v{L}, v{t0}", f"v_lshlrev_b32 v{V_YR}, 4, v{V_YR}"]
    o += [f"v_lshrrev_b32 v{t0}, 3, v{L}", f"v_and_b32 v{t1}, 3, v{L}", f"v_bfe_u32 v{t2}, v{L}, 2, 1", f"v_lshlrev_b32 v{V_YW}, 12, v{t0}",
          f"v_lshl_or_b32 v{V_YW}, v{t1}, 8, v{V_YW}", f"v_lshl_or_b32 v{V_YW}, v{t2}, 4, v{V_YW}", f"v_lshl_or_b32 v{V_YW}, v{t1}, 5, v{V_YW}",
          f"s_lshl_b32 s{sT0}, s{sW}, 10", f"v_add_u32 v{V_YW}, s{sT0}, v{V_YW}"]
    for j in range(1, 4): o.append(f"v_xor_b32 v{V_YW+j}, {32*j}, v{V_YW}")
    return o

def team_check():
    a = P.add
    ok, sp = newlabel("tok"), newlabel("tsp")
    chk = [f"v_readfirstlane_b32 s{sT0}, v29", f"s_and_b32 s{sT1}, s{sRB}, 3", f"s_lshl_b32 s{sT1}, s{sT1}, 3", f"s_lshr_b32 s{sT0}, s{sT0}, s{sT1}",
           f"s_and_b32 s{sT0}, s{sT0}, 0xff", f"s_cmp_eq_u32 s{sT0}, 32", f"s_cbranch_scc1 {ok}"]
    a(wvm("tc"), chk)
    P.rare_begin()
    a(f"s_mov_b32 s{sSPIN}, {SPIN}", label(sp), vm(f"buffer_load_dword v29, v28, {srd(S_DBG)}, 0 offen sc1", "x"), wvm0(), chk,
      f"s_sub_u32 s{sSPIN}, s{sSPIN}, 1", f"s_cmp_lg_u32 s{sSPIN}, 0", f"s_cbranch_scc1 {sp}")
    P.rare_end()
    a(label(ok))

def oproj():
    a = P.add
    a(ring_addr_setup())
    a(stage_dma(4), wvm("st0"), areads(0), breads(0), stage_dma(5))
    ex = ring_addr_setup2() + param_loads()
    epi = []
    for sig in range(32):
        p, t = divmod(sig, 16)
        extra = []
        if p == 0 and ex:
            extra = ex[:8]; ex = ex[8:]
        if sig == 16:
            extra = [f"s_lshr_b32 s{sT0}, s{sRB}, 2", f"s_lshl_b32 s{sT0}, s{sT0}, 2", f"s_add_u32 s{sT0}, s{sT0}, {DBG_TEAM}", f"v_mov_b32 v28, s{sT0}",
                     vm(f"buffer_load_dword v29, v28, {srd(S_DBG)}, 0 offen sc1", "tc")]
        if sig == 16: epi = pack_store(ACCX, 0, MB_P1)
        if sig >= 17 and epi:
            extra = epi[:10]; epi = epi[10:]
        if sig == 28: team_check()
        if sig in (28, 29):
            g = gather_loads(G0, 8, V_GA, lambda i: i*MB_SZ + MB_P1, "g0")
            extra = g[:8] if sig == 28 else g[8:]
        a(gstep(sig, ACCX if p == 0 else ACCY, t == 0, extra=extra, bnext=(sig != 31)))
    assert not ex and not epi
    a("s_nop 3", pack_store(ACCY, 1, MB_P1))
    a(gather_loads(G1, 8, V_GA, lambda i: i*MB_SZ + MB_P1 + 32768, "g1"))
    stamp(9)

V_SUM, V_TMP, V_PA, V_PB = 128, 144, 160, 176
def ln2():
    a = P.add
    a(wlg("a32"), "s_barrier")
    a(aunpack(V_X1, A_XR, 8, V_TMP))
    for p in range(2): a(aunpack(V_PA+8*p, A_M2+16*p+0, 4, V_TMP))
    gather_check(G0, 8, V_GA, lambda i: i*MB_SZ + MB_P1, "g0", V_TMP)
    a(sum8(G0, V_SUM, V_TMP))
    G2, SB = 192, 208
    for p in range(2):
        a(aunpack(G2+8*p, A_M2+16*p+8, 4, V_TMP))
        a([f"v_add_f32 v{G2+8*p+i}, 1.0, v{G2+8*p+i}" for i in range(8)])
        a([f"v_cvt_pk_bf16_f32 v{V_TMP+i}, v{G2+8*p+2*i}, v{G2+8*p+2*i+1}" for i in range(4)])
        for i in range(4): a(unpack(G2+8*p+2*i, G2+8*p+2*i+1, V_TMP+i))
        a(aunpack(SB+8*p, A_M2+16*p+4, 4, V_TMP))
    a(aunpack(V_B1F, A_B1, 8, V_TMP))
    gather_check(G1, 8, V_GA, lambda i: i*MB_SZ + MB_P1 + 32768, "g1", V_TMP)
    stamp(10)
    a(sum8(G1, V_SUM+8, V_TMP))
    for k in range(0, 16, 2): a(f"v_pk_fma_f32 {vr(V_X1+k, 2)}, {vr(V_SUM+k, 2)}, {vr(V_PA+k, 2)}, {vr(V_X1+k, 2)}")
    a(rowstats(V_X1, V_TMP))
    H = V_SUM
    for k in range(0, 16, 2): a(f"v_pk_fma_f32 {vr(H+k, 2)}, {vr(V_X1+k, 2)}, {vr(V_TMP, 2)}, {vr(V_TMP, 2)} op_sel:[0,0,1] op_sel_hi:[1,0,1]")
    for k in range(0, 16, 2): a(f"v_pk_fma_f32 {vr(H+k, 2)}, {vr(H+k, 2)}, {vr(G2+k, 2)}, {vr(SB+k, 2)}")
    a(rowstats(H, V_TMP))
    for k in range(0, 16, 2): a(f"v_pk_fma_f32 {vr(H+k, 2)}, {vr(H+k, 2)}, {vr(V_TMP, 2)}, {vr(V_TMP, 2)} op_sel:[0,0,1] op_sel_hi:[1,0,1]")
    a(f"s_add_u32 s{sT0}, s{sMB}, s{sW2K}", f"s_add_u32 s{sT0}, s{sT0}, {MB_Y}")
    for p in range(2):
        for i in range(4): a(f"v_cvt_pk_bf16_f32 v{V_PB+4*p+i}, v{H+8*p+2*i}, v{H+8*p+2*i+1}")
        a(vm(f"buffer_store_dwordx4 {vr(V_PB+4*p, 4)}, v{V_LIN}, {srd(S_WS)}, s{sT0} offen offset:{1024*p} sc1", "ys"))
    stamp(11)
    a(f"v_add_u32 v28, s{sW2K}, v{V_LIN}")
    for p, buf in ((0, G0), (1, G1)): a(gather_loads(buf, 8, 28, lambda i: i*MB_SZ + MB_Y + 1024*p, f"y{p}"))
    for p, buf in ((0, G0), (1, G1)):
        gather_check(buf, 8, 28, lambda i: i*MB_SZ + MB_Y + 1024*p, f"y{p}", V_TMP)
        for j in range(8): a(lg(f"ds_write_b128 v{V_YW+(j&3)}, {vr(buf+4*j, 4)} offset:{128*(j>>2)+32768*p}", "yw"))
    a(wlg0(), "s_barrier")
    stamp(12)

def mlp():
    a = P.add
    a(breads(32))
    for sig in range(32, 48):
        a(gstep(sig, ACCX, sig == 32, cinit=V_B1F, bnext=(sig != 47)))
    stamp(13)
    k = 2*math.sqrt(2/math.pi)*math.log2(math.e)
    a(f"s_mov_b32 s{sC1}, {f32(-k*0.044715)}", f"s_mov_b32 s{sC1+1}, {f32(-k)}")
    a(wlg("a48"), "s_barrier", "s_nop 1")
    a(f"s_lshl_b32 s{sT0}, s{sW}, 13", f"v_add_u32 v28, s{sT0}, v{V_LIN}")
    T = ACCY
    for b in range(2):
        for qt in range(4):
            x, y = ACCX + (2*b*4+qt)*4, ACCX + ((2*b+1)*4+qt)*4
            prs = [x, x+2, y, y+2]
            t = T + 8*(qt & 1)
            for i, z in enumerate(prs): a(f"v_pk_mul_f32 {vr(t+2*i, 2)}, {vr(z, 2)}, {vr(z, 2)}")
            for i, z in enumerate(prs): a(f"v_pk_fma_f32 {vr(t+2*i, 2)}, {vr(t+2*i, 2)}, s[{sC1}:{sC1+1}], s[{sC1}:{sC1+1}] op_sel:[0,0,1] op_sel_hi:[1,0,1]")
            for i, z in enumerate(prs): a(f"v_pk_mul_f32 {vr(t+2*i, 2)}, {vr(t+2*i, 2)}, {vr(z, 2)}")
            for i in range(8): a(f"v_exp_f32 v{t+i}, v{t+i}")
            for i in range(4): a(f"v_pk_add_f32 {vr(t+2*i, 2)}, {vr(t+2*i, 2)}, 1.0 op_sel_hi:[1,0]")
            for i in range(8): a(f"v_rcp_f32 v{t+i}, v{t+i}")
            for i, z in enumerate(prs): a(f"v_pk_mul_f32 {vr(z, 2)}, {vr(t+2*i, 2)}, {vr(z, 2)}")
            a(f"v_cvt_pk_bf16_f32 v{x}, v{x}, v{x+1}", f"v_cvt_pk_bf16_f32 v{x+1}, v{x+2}, v{x+3}",
              f"v_cvt_pk_bf16_f32 v{x+2}, v{y}, v{y+1}", f"v_cvt_pk_bf16_f32 v{x+3}, v{y+2}, v{y+3}")
            a(lg(f"ds_write_b128 v28, {vr(x, 4)} offset:{b*4096+qt*1024}", "hw"))
    a(wlg0(), "s_barrier")
    stamp(14)
    a(breads(48))
    epi = []
    for sig in range(48, 62):
        p, t = divmod(sig - 48, 7)
        extra = []
        if sig == 55: epi = pack_store(ACCX, 0, MB_P2)
        if sig >= 56 and epi:
            extra = epi[:12]; epi = epi[12:]
        a(gstep(sig, ACCX if p == 0 else ACCY, t == 0, extra=extra, next_reads=(sig != 61)))
    assert not epi
    a("s_nop 3", pack_store(ACCY, 1, MB_P2))
    a(gather_loads(G0, 8, V_GA, lambda i: i*MB_SZ + MB_P2, "g0"))
    a(gather_loads(G1, 8, V_GA, lambda i: i*MB_SZ + MB_P2 + 32768, "g1"))
    stamp(15)

def final():
    a = P.add
    GB, B2 = V_PA, V_PB
    for p in range(2): a(aunpack(GB+8*p, A_M2+16*p+12, 4, V_TMP))
    a(aunpack(B2, A_B2, 8, V_TMP))
    a(f"v_accvgpr_read_b32 v28, a{A_B1+8}", f"s_lshl_b32 s{sT0}, s{sRB}, 2", f"s_add_u32 s{sT0}, s{sT0}, s{sW}", f"s_lshl_b32 s{sT0}, s{sT0}, 3",
      f"s_add_u32 s{sT0}, s{sT0}, s{sG}", f"s_lshl_b32 s{sT2}, s{sT0}, 11")
    for p, buf in ((0, G0), (1, G1)):
        gather_check(buf, 8, V_GA, lambda i: i*MB_SZ + MB_P2 + 32768*p, f"g{p}", V_TMP)
        S = V_SUM + 8*p
        a(sum8(buf, S, V_TMP))
        for k in range(0, 8, 2): a(f"v_pk_add_f32 {vr(S+k, 2)}, {vr(S+k, 2)}, {vr(B2+8*p+k, 2)}")
        for k in range(0, 8, 2): a(f"v_pk_fma_f32 {vr(S+k, 2)}, {vr(S+k, 2)}, {vr(GB+8*p+k, 2)}, {vr(V_X1+8*p+k, 2)}")
        for i in range(4): a(f"v_cvt_pk_bf16_f32 v{S+i}, v{S+2*i}, v{S+2*i+1}")
        for h in range(2): a(vm(f"buffer_store_dwordx2 {vr(S+2*h, 2)}, v28, {srd(S_OUT)}, s{sT2} offen offset:{128*p+32*h}", "out"))
    if cfg.stamps:
        stamp(16)
        a(f"s_lshl_b32 s{sT0}, s2, 10", f"s_add_u32 s{sT0}, s{sT0}, {WS_STAMP}", "v_lshlrev_b32 v7, 2, v0",
          vm(f"buffer_store_dword a{A_STAMP}, v7, {srd(S_WS)}, s{sT0} offen", "st"))
    a(label("L_exit"), "s_endpgm")

def fallback():
    a = P.add
    P.rare_begin()
    a(label("L_fallback"), wall())
    L, KA = 32, 33
    a(f"v_and_b32 v{L}, 63, v0", f"v_and_b32 v{KA}, 15, v{L}", f"v_lshrrev_b32 v34, 4, v{L}", f"v_lshlrev_b32 v{KA}, 8, v{KA}", f"v_lshl_or_b32 v{KA}, v34, 6, v{KA}")
    a(f"s_lshl_b32 s{sT2}, s{sG}, 19", f"s_add_u32 s{sT2}, s{sT2}, {1536*256}", f"s_mov_b32 s{sT0}, s{sT2}", f"s_mov_b32 s{sLOOP}, 32")
    for qt in range(4): a(f"v_mov_b32 v{V_NM+4*qt}, 0xff800000")
    a(label("L_fb1"))
    for s in range(4): a(vm(f"buffer_load_dwordx4 {ar(A_KF+4*s, 4)}, v{KA}, {srd(S_K)}, s{sT0} offen offset:{16*s}", "x"))
    a(wvm0())
    for qt in range(4):
        for s in range(4): a(f"{MF} v[36:39], {ar(A_KF+4*s, 4)}, {vr(QF(s, qt), 4)}, {'v[36:39]' if s else 0}")
        a("s_nop 9", f"v_max3_f32 v{V_NM+4*qt}, v{V_NM+4*qt}, v36, v37", f"v_max3_f32 v{V_NM+4*qt}, v{V_NM+4*qt}, v38, v39", "s_nop 3")
    a(f"s_add_u32 s{sT0}, s{sT0}, 4096", f"s_sub_u32 s{sLOOP}, s{sLOOP}, 1", f"s_cmp_lg_u32 s{sLOOP}, 0", "s_cbranch_scc1 L_fb1")
    for qt in range(4):
        m, t = V_NM + 4*qt, V_NM + 4*qt + 1
        a(f"v_mov_b32 v{t}, v{m}", "s_nop 1", f"v_permlane16_swap_b32 v{m}, v{t}", f"v_max_f32 v{m}, v{m}, v{t}",
          f"v_mov_b32 v{t}, v{m}", "s_nop 1", f"v_permlane32_swap_b32 v{m}, v{t}", f"v_max_f32 v{m}, v{m}, v{t}",
          f"v_mul_f32 v{m}, -1.0, v{m}", f"v_mov_b32 v{m+1}, v{m}", f"v_mov_b32 v{m+2}, v{m}", f"v_mov_b32 v{m+3}, v{m}")
    for r in range(128): a(f"v_mov_b32 v{V_O+r}, 0")
    for r in range(16): a(f"v_accvgpr_write_b32 a{A_L+r}, 0")
    a(f"s_lshl_b32 s{sT1}, s{sW}, 14", f"s_sub_u32 s{sT0}, s{sT1}, {L_V}")
    for dt in range(8): a(f"v_add_u32 v{V_VR+dt}, s{sT0}, v{V_VR+dt}")
    for i in range(2): a(f"v_subrev_u32 v{34+i}, s{sW2K}, v{V_VD+i}")
    a(f"s_mov_b32 s{sT0}, s{sT2}", f"s_mov_b32 s{sLOOP}, 16")
    a(label("L_fb2"))
    for j in range(4):
        a(f"s_add_u32 m0, s{sT1}, {2048*j}", f"s_add_u32 s{sT3}, s{sT0}, {2048*j}",
          vm(f"buffer_load_dwordx4 v34, {srd(S_V)}, s{sT3} offen lds", "x"), vm(f"buffer_load_dwordx4 v35, {srd(S_V)}, s{sT3} offen offset:1024 lds", "x"))
    a(f"s_add_u32 s{sT3}, s{sT0}, 4096")
    for s in range(4):
        a(vm(f"buffer_load_dwordx4 {ar(KF(0, 0, s), 4)}, v{KA}, {srd(S_K)}, s{sT0} offen offset:{16*s}", "x"),
          vm(f"buffer_load_dwordx4 {ar(KF(0, 1, s), 4)}, v{KA}, {srd(S_K)}, s{sT3} offen offset:{16*s}", "x"))
    a(wvm0())
    a(vreads(0), wlg0())
    for qt in range(4):
        for s in range(4):
            for kt in range(2):
                d = vr(40 + 4*kt, 4)
                a(f"{MF} {d}, {ar(KF(0, kt, s), 4)}, {vr(QF(s, qt), 4)}, {d if s else vr(V_NM+4*qt, 4)}")
        a("s_nop 9")
        for i in range(8): a(f"v_exp_f32 v{40+i}, v{40+i}")
        a("s_nop 0")
        for i in range(4): a(f"v_cvt_pk_bf16_f32 v{V_P+i}, v{40+2*i}, v{41+2*i}")
        a("s_nop 1")
        for dt in range(8): a(f"{MF} {vr(OA(dt, qt), 4)}, {ar(VF(0, dt), 4)}, {vr(V_P, 4)}, {vr(OA(dt, qt), 4)}")
        a(f"{MF} {ar(A_L+4*qt, 4)}, {ar(A_ONE, 4)}, {vr(V_P, 4)}, {ar(A_L+4*qt, 4)}")
    a(f"s_add_u32 s{sT0}, s{sT0}, 8192", f"s_sub_u32 s{sLOOP}, s{sLOOP}, 1", f"s_cmp_lg_u32 s{sLOOP}, 0", "s_cbranch_scc1 L_fb2")
    a("s_nop 9")
    for qt in range(4): a(normalize(qt))
    a("s_branch L_fb_ret")
    P.rare_end()

HEADER = """; Fused adaLN-modulated block: cached sliding-window GQA attention + channel MLP, one persistent launch.
; @launch grid=(256,1,1) block=(256,1,1) lds=163840
.amdgcn_target "amdgcn-amd-amdhsa--gfx950"
.text
.globl {kn}
.p2align 8
.type {kn},@function
{kn}:
"""
FOOTER = """L_codeend:
.section .rodata,"a"
.p2align 6
.amdhsa_kernel {kn}
  .amdhsa_next_free_vgpr 512
  .amdhsa_next_free_sgpr 102
  .amdhsa_accum_offset 256
  .amdhsa_group_segment_fixed_size 0
  .amdhsa_kernarg_size 120
  .amdhsa_user_sgpr_count 2
  .amdhsa_user_sgpr_kernarg_segment_ptr 1
  .amdhsa_system_sgpr_workgroup_id_x 1
  .amdhsa_float_denorm_mode_32 3
.end_amdhsa_kernel
"""

def build():
    d = cfg.dump
    prologue()
    if d == "h": dump_lds_and_exit(0, 65536)
    qproj()
    if d == "q": dump_and_exit([f"a{i}" for i in range(128)])
    attention()
    if d == "o": dump_lds_and_exit(0, 65536)
    oproj()
    ln2()
    if d == "y": dump_lds_and_exit(0, 65536)
    mlp()
    final()
    fallback()
    resolve_waits(P.items)
    errs = check(P.items)
    print("-- with rare regions inline")
    items2 = [x for x in P.items if x.kind not in ("rare_begin", "rare_end")]
    check(items2)
    return HEADER.format(kn=KN) + render(P.items) + FOOTER.format(kn=KN), errs

if __name__ == "__main__":
    ap = argparse.ArgumentParser()
    ap.add_argument("-o", default=f"cdna_kernels/{NAME}.s")
    ap.add_argument("--stamps", action="store_true")
    ap.add_argument("--dump")
    ap.add_argument("--force-fallback", action="store_true")
    args = ap.parse_args()
    cfg.stamps = args.stamps; cfg.dump = args.dump; cfg.force_fallback = args.force_fallback
    txt, errs = build()
    open(args.o, "w").write(txt)
    print("wrote", args.o, len(txt), "bytes;", len(errs), "hazard reports")
```

```python
import re

class Ins:
    __slots__ = ("text", "kind", "tag", "cost")
    def __init__(self, text, kind="op", tag=None, cost=1):
        self.text = text; self.kind = kind; self.tag = tag; self.cost = cost
    def __repr__(self): return f"<{self.kind}:{self.text}:{self.tag}>"

TRANS = ("v_exp_f32", "v_log_f32", "v_rcp_f32", "v_rsq_f32", "v_sqrt_f32", "v_sin_f32", "v_cos_f32")

def op(text):
    m = text.split()[0]
    return Ins(text, "op", None, 2 if m.startswith(TRANS) else 1)
def vm(text, tag): return Ins(text, "vm", tag)
def lg(text, tag): return Ins(text, "lg", tag)
def wvm(*tags): return Ins("", "wvm", tags)
def wlg(*tags): return Ins("", "wlg", tags)
def wall(): return Ins("s_waitcnt vmcnt(0) lgkmcnt(0)", "wall")
def wvm0(): return Ins("s_waitcnt vmcnt(0)", "wvm0")
def wlg0(): return Ins("s_waitcnt lgkmcnt(0)", "wlg0")
def label(name): return Ins(name + ":", "label", None, 0)
def raw(text): return Ins(text, "raw", None, 0)

class Prog:
    def __init__(self):
        self.items = []
    def add(self, *xs):
        for x in xs:
            if isinstance(x, (list, tuple)): self.add(*x)
            elif isinstance(x, str): self.items.append(op(x))
            else: self.items.append(x)
    def loop_begin(self, n): self.items.append(Ins("", "loop_begin", n, 0))
    def loop_end(self): self.items.append(Ins("", "loop_end", None, 0))
    def rare_begin(self): self.items.append(Ins("", "rare_begin", None, 0))
    def rare_end(self): self.items.append(Ins("", "rare_end", None, 0))

def interleave(mfmas, fillers, cap=2, start=0, lead=None):
    out = list(lead or [])
    q = []
    for f in fillers:
        if isinstance(f, tuple): q.append(f)
        else: q.append((f, start))
    q = [(op(f) if isinstance(f, str) else f, e) for f, e in q]
    i = 0
    for k, m in enumerate(mfmas):
        out.append(op(m) if isinstance(m, str) else m)
        used = 0
        while i < len(q) and q[i][1] <= k and (used + q[i][0].cost <= cap or used == 0):
            out.append(q[i][0]); used += q[i][0].cost; i += 1
    for f, e in q[i:]: out.append(f)
    return out

def trace(items):
    tr = []
    i = 0
    stack = []
    n = len(items)
    def run(lo, hi):
        i = lo
        while i < hi:
            it = items[i]
            if it.kind == "loop_begin":
                d = 1; j = i + 1
                while d:
                    if items[j].kind == "loop_begin": d += 1
                    if items[j].kind == "loop_end": d -= 1
                    j += 1
                for _ in range(it.tag): run(i + 1, j - 1)
                i = j
            elif it.kind == "rare_begin":
                j = i + 1
                while items[j].kind != "rare_end": j += 1
                i = j + 1
            else:
                tr.append(i); i += 1
    run(0, n)
    return tr

def resolve_waits(items):
    tr = trace(items)
    need = {}
    vmq, lgq = [], []
    for rnd in range(4):
        vmq, lgq = [], []
        changed = False
        for idx in tr:
            it = items[idx]
            if it.kind == "vm": vmq.append(it.tag)
            elif it.kind == "lg": lgq.append(it.tag)
            elif it.kind in ("wvm", "wlg"):
                q = vmq if it.kind == "wvm" else lgq
                mx = 63 if it.kind == "wvm" else 15
                last = -1
                for k, t in enumerate(q):
                    if t in it.tag: last = k
                if last >= 0:
                    nn = min(len(q) - 1 - last, mx)
                    if idx not in need or nn < need[idx]:
                        need[idx] = nn; changed = True
                if idx in need:
                    keep = need[idx]
                    if len(q) > keep: del q[:len(q) - keep]
            elif it.kind == "wall": vmq.clear(); lgq.clear()
            elif it.kind == "wvm0": vmq.clear()
            elif it.kind == "wlg0": lgq.clear()
        if not changed: break
    for idx, it in enumerate(items):
        if it.kind in ("wvm", "wlg"):
            if idx in need:
                it.text = f"s_waitcnt {'vmcnt' if it.kind == 'wvm' else 'lgkmcnt'}({need[idx]})"
            else:
                it.text = ""

def merge_waits(items):
    prev = None
    for it in items:
        if not it.text: continue
        if it.text.startswith("s_waitcnt") and prev is not None and prev.text.startswith("s_waitcnt"):
            cnt = {}
            for t in (prev.text, it.text):
                for k, v in re.findall(r"(vmcnt|lgkmcnt)\((\d+)\)", t):
                    cnt[k] = min(int(v), cnt.get(k, 99))
            prev.text = ""
            it.text = "s_waitcnt " + " ".join(f"{k}({cnt[k]})" for k in ("vmcnt", "lgkmcnt") if k in cnt)
        prev = it

def isscalar(x):
    if isinstance(x, Ins): return x.kind in ("wvm", "wlg", "wall", "wvm0", "wlg0") or (x.kind == "op" and x.text.startswith("s_"))
    return x.startswith("s_")
def _rank(x):
    if isscalar(x): return 0
    if x.kind == "lg": return 1
    if x.kind == "vm": return 2
    return 3
def _indep(a, b):
    if isscalar(a) or isscalar(b):
        if a.kind != "op" and isscalar(a) or b.kind != "op" and isscalar(b): return False
        if any(x.text.startswith(("s_barrier", "s_nop", "s_cbranch", "s_branch")) for x in (a, b)): return False
        if isscalar(a) and isscalar(b): return False
    if a.kind == b.kind and a.kind in ("lg", "vm"): return False
    ca, da, sa, _ = decode(a.text); cb, db, sb, _ = decode(b.text)
    return not (set(da) & (set(db) | set(sb))) and not (set(db) & set(sa))
def order_gap(g):
    g = [op(x) if isinstance(x, str) else x for x in g]
    for i in range(1, len(g)):
        j = i
        while j > 0 and _rank(g[j]) < _rank(g[j-1]) and _indep(g[j-1], g[j]):
            g[j-1], g[j] = g[j], g[j-1]; j -= 1
    return g

def template(mfmas, gaps, lead=()):
    out = [op(x) if isinstance(x, str) else x for x in lead]
    assert len(gaps) == len(mfmas)
    for m, g in zip(mfmas, gaps):
        out.append(op(m))
        out += order_gap(g)
    return out

def isvm(x): return isinstance(x, Ins) and x.kind == "vm"
def cost(x): return (op(x) if isinstance(x, str) else x).cost
def gap_load(g):
    n = sum(cost(x) for x in g)
    if any(isscalar(x) for x in g): n -= 1
    return n

def fill(gaps, free, queue, cap=2):
    assert list(free) == sorted(free)
    for k in free:
        g = gaps[k]
        while queue and not any(isvm(x) for x in g):
            x = queue[0]
            if x == "GAP":
                queue.pop(0); break
            if isvm(x):
                if not g: g.append(queue.pop(0))
                break
            if gap_load(g + [x]) > cap: break
            if isscalar(x) and g and not all(_indep(op(y) if isinstance(y, str) else y, op(x) if isinstance(x, str) else x) for y in g if not isscalar(y)) and gap_load(g) + 1 > cap: break
            g.append(queue.pop(0))

def render(items):
    out = []
    for it in items:
        if it.text:
            out.append(it.text if it.kind in ("label", "raw") else "\t" + it.text)
    return "\n".join(out) + "\n"

REG = re.compile(r"^(-?)(\|?)([vas])(\d+)\|?$|^(-?)([vas])\[(\d+):(\d+)\]$")
def regs_of(tok):
    tok = tok.strip()
    if tok.startswith("abs(") : tok = tok[4:-1]
    if tok in ("vcc",): return [("s", 106), ("s", 107)]
    if tok == "vcc_lo": return [("s", 106)]
    if tok == "vcc_hi": return [("s", 107)]
    if tok == "m0": return [("s", 124)]
    if tok == "exec": return [("s", 126), ("s", 127)]
    m = REG.match(tok)
    if not m: return []
    if m.group(3): return [(m.group(3), int(m.group(4)))]
    return [(m.group(6), r) for r in range(int(m.group(7)), int(m.group(8)) + 1)]

def decode(text):
    parts = text.split(None, 1)
    mn = parts[0]
    rest = parts[1] if len(parts) > 1 else ""
    toks = [t.strip() for t in rest.split(",")] if rest else []
    mods = ""
    if toks:
        l = toks[-1].split()
        if l:
            toks[-1] = l[0]; mods = " ".join(l[1:])
    ops_ = []
    for t in toks:
        ops_.append(t)
    R = [regs_of(t.split()[0]) if t else [] for t in ops_]
    flat = lambda L: [x for y in L for x in y]
    if mn.startswith("v_mfma"):
        return "mfma", R[0], flat(R[1:4]), dict(A=R[1], B=R[2], C=R[3], passes=(4 if "16x16x32" in mn else 8))
    if mn.startswith("v_cmp"):
        return "valu", R[0], flat(R[1:]), dict(mn=mn)
    if mn.startswith(("v_readfirstlane", "v_readlane")):
        return "valu", R[0], flat(R[1:]), dict(mn=mn, rdlane=True)
    if mn.startswith("v_permlane"):
        return "valu", R[0] + R[1], R[0] + R[1], dict(mn=mn, perm=True)
    if mn.startswith("v_"):
        src = flat(R[1:])
        dst = list(R[0])
        if mn.startswith(("v_fmac", "v_pk_fmac", "v_writelane")): src += R[0]
        if mn.startswith(("v_add_co", "v_addc_co", "v_sub_co")): dst += R[1]; src = flat(R[2:])
        if mn.startswith("v_cndmask") and len(R) == 3: src += regs_of("vcc")
        dpp = "dpp" in mn or "row_" in text or "quad_perm" in text
        if dpp: src += R[0]
        return "valu", dst, src, dict(mn=mn, dpp=dpp, trans=mn.startswith(TRANS))
    if mn.startswith("buffer_load"):
        if re.search(r"\blds\b", text): return "vmem", [], flat(R) + regs_of("m0"), dict(mn=mn, dma=True)
        return "vmem", R[0], flat(R[1:]), dict(mn=mn)
    if mn.startswith("buffer_store"):
        return "vmem", [], flat(R), dict(mn=mn, data=R[0], wide=("x4" in mn or "x3" in mn))
    if mn.startswith("buffer_atomic"):
        return "vmem", (R[0] if " sc0" in text else []), flat(R), dict(mn=mn)
    if mn.startswith("ds_read"): return "ds", R[0], flat(R[1:]), dict(mn=mn)
    if mn.startswith("ds_write"): return "ds", [], flat(R), dict(mn=mn)
    if mn.startswith(("s_load", "s_memtime", "s_memrealtime")): return "smem", R[0], flat(R[1:]), dict(mn=mn)
    if mn == "s_nop": return "nop", [], [], dict(n=int(toks[0]) + 1)
    if mn.startswith(("s_waitcnt", "s_barrier", "s_branch", "s_cbranch", "s_endpgm", "s_sleep", "s_setprio")):
        return "ctl", [], [], dict(mn=mn)
    if mn.startswith("s_cmp") or mn.startswith("s_bitcmp"): return "salu", [], flat(R), dict(mn=mn)
    if mn.startswith("s_"):
        dst = list(R[0]) if R else []
        src = flat(R[1:])
        if "saveexec" in mn: dst += regs_of("exec")
        if mn.startswith(("s_bitset", "s_addk", "s_mulk")): src += R[0]
        return "salu", dst, src, dict(mn=mn)
    raise ValueError("cannot decode: " + text)

def check(items, tr=None, verbose=True):
    if tr is None: tr = trace(items)
    errs = []
    pos = 0
    last_valu_w = {}; last_trans_w = {}; last_mfma_w = {}; last_mfma_c = {}; last_salu_w = {}; store_data = {}
    vmq, lgq = [], []
    smem_pending = set()
    def err(msg, it): errs.append(f"{msg}: {it.text}")
    for idx in tr:
        it = items[idx]
        if not it.text or it.kind in ("label", "raw"): continue
        cls, dst, src, info = decode(it.text)
        if cls == "nop": pos += info["n"]; continue
        if it.text.startswith("s_waitcnt"):
            m = re.search(r"vmcnt\((\d+)\)", it.text)
            if m:
                k = int(m.group(1))
                if len(vmq) > k: del vmq[:len(vmq) - k]
            m = re.search(r"lgkmcnt\((\d+)\)", it.text)
            if m:
                k = int(m.group(1))
                if k == 0: smem_pending.clear()
                if len(lgq) > k: del lgq[:len(lgq) - k]
            pos += 1; continue
        touched = set(dst) | set(src)
        for q, nm in ((vmq, "vmcnt"), (lgq, "lgkmcnt")):
            for e in q:
                if e & touched and not (it.tag == "dummy"): err(f"register with pending load ({nm}) {sorted(e & touched)[:2]}", it)
        if smem_pending & touched: err("pending smem", it)
        def dist(table, r): return pos - table[r] - 1 if r in table else 99
        if cls == "mfma":
            for r in src:
                if dist(last_valu_w, r) < 2: err(f"VALU->MFMA {r}", it)
            for r in info["A"] + info["B"]:
                if r in last_mfma_w:
                    p, ps, blk = last_mfma_w[r]
                    if pos - p - 1 < (8 if ps == 4 else 12): err(f"MFMA D->A/B {r}", it)
            for r in info["C"]:
                if r in last_mfma_w:
                    p, ps, blk = last_mfma_w[r]
                    if blk != tuple(info["C"]) and pos - p - 1 < (6 if ps == 4 else 10): err(f"MFMA D->C partial {r}", it)
            for r in dst:
                if r in last_mfma_w:
                    p, ps, blk = last_mfma_w[r]
                    if tuple(info["C"]) != blk and pos - p - 1 < (6 if ps == 4 else 10): err(f"MFMA WAW {r}", it)
        if cls in ("valu", "vmem", "ds"):
            for r in touched:
                if r in last_mfma_w:
                    p, ps, blk = last_mfma_w[r]
                    if pos - p - 1 < (8 if ps == 4 else 12): err(f"MFMA D->{cls} {r} dist {pos-p-1}", it)
        if cls == "valu":
            for r in dst:
                if r in last_mfma_c:
                    p, ps = last_mfma_c[r]
                    if pos - p - 1 < (3 if ps == 4 else 7): err(f"MFMA C WAR {r}", it)
                if dist(store_data, r) < 2: err(f"store data WAR {r}", it)
            for r in src:
                if r[0] == "s" and dist(last_valu_w, r) < 2: err(f"VALU sgpr->VALU {r}", it)
                if not info.get("trans") and dist(last_trans_w, r) < 1: err(f"trans->VALU {r}", it)
                if info.get("trans") and dist(last_trans_w, r) < 1: err(f"trans->trans {r}", it)
                if (info.get("dpp") or info.get("perm")) and r[0] == "v" and dist(last_valu_w, r) < 2: err(f"VALU->DPP/perm {r}", it)
                if info.get("rdlane") and r[0] == "v" and dist(last_valu_w, r) < 1: err(f"VALU->readlane {r}", it)
        if cls in ("vmem", "ds"):
            for r in src:
                if r[0] == "s" and dist(last_valu_w, r) < 5 and cls == "vmem": err(f"VALU sgpr->VMEM {r}", it)
                if dist(last_trans_w, r) < 1: err(f"trans->mem {r}", it)
            if info.get("dma") and dist(last_salu_w, ("s", 124)) < 1: err("m0->dma", it)
            for r in dst:
                if dist(store_data, r) < 1: err(f"store data WAR(load) {r}", it)
        if cls == "salu":
            for r in src:
                if dist(last_valu_w, r) < 1 and r[0] == "s": err(f"VALU sgpr->SALU (pad) {r}", it)
        if cls == "valu":
            for r in dst:
                last_valu_w[r] = pos; last_mfma_w.pop(r, None)
                if info.get("trans"): last_trans_w[r] = pos
                else: last_trans_w.pop(r, None)
        elif cls == "mfma":
            for r in dst: last_mfma_w[r] = (pos, info["passes"], tuple(dst)); last_valu_w.pop(r, None)
            for r in info["C"]: last_mfma_c[r] = (pos, info["passes"])
        elif cls == "salu":
            for r in dst: last_salu_w[r] = pos; last_valu_w.pop(r, None)
        elif cls == "vmem":
            vmq.append(set(dst))
            if info.get("wide"):
                for r in info["data"]: store_data[r] = pos
        elif cls == "ds": lgq.append(set(dst))
        elif cls == "smem": smem_pending |= set(dst)
        pos += 1
    if verbose:
        seen = set()
        for e in errs:
            if e not in seen: print("HAZARD", e); seen.add(e)
    return errs
```

```python
import sys, math, argparse, struct
from asmlib import *

NAME = "adaLN_cond__sliding_block_cached__mixer_channel_mlp__prompt"
KN = NAME + "_kernel"

WS_MODG = 0
WS_M2 = 4096
WS_MB = 1 << 20
MB_SZ = 147456
MB_W = 36864
MB_P1, MB_P2, MB_Y = 0, 16384, 32768
WS_DUMP = 64 << 20
WS_STAMP = 60 << 20
WS_BYTES = 268435456
SPIN = 1 << 15

L_K = 65536
L_V = 98304
L_E0 = 131072
L_E1 = 147456
L_B = 65536
STAGES = [0, 16384, 32768, 49152, L_E0, L_E1]

sFLAG = 3
S_X, S_K, S_V, S_WQ, S_WO, S_W1, S_W2, S_WS, S_DBG, S_OUT, S_TA, S_TB = [4 + 4*i for i in range(12)]
S_B1P, S_B2P = 52, 54
sW, sG, sRB, sRHO = 56, 57, 58, 59
sT0, sT1, sT2, sT3 = 60, 61, 62, 63
sSELLO, sSELHI = 96, 97
sSTAMP = 98
sSPIN, sBAD = 100, 101
sPP = 101
(sWQOFF, sKV0, sMB, sTEAM, sW4K, sW2K, sWOB, sW1B, sW2B, sPF, sLOOP, sPST, sGAT) = range(64, 77)
sEX = 78
sC1 = 80
sKV1, sWOP, sRING, sRD, sXROW, sB1O, sM2O, sIDX = range(82, 90)
def srd(b): return f"s[{b}:{b+3}]"
def vr(b, n=1): return f"v{b}" if n == 1 else f"v[{b}:{b+n-1}]"
def ar(b, n=1): return f"a{b}" if n == 1 else f"a[{b}:{b+n-1}]"
def f32(x): return "0x%08x" % struct.unpack("<I", struct.pack("<f", x))[0]

QSCALE = math.log2(math.e) / math.sqrt(128.0)
MF = "v_mfma_f32_16x16x32_bf16"

class Cfg:
    stamps = False
    fine = False
    dump = None
    force_fallback = False
    mu = 1
cfg = Cfg()
P = Prog()
uid = [0]
def newlabel(s):
    uid[0] += 1
    return f"L_{s}_{uid[0]}"

A_STAMP = 252
stamp_names = []
def stamp(name, fine=False):
    if not cfg.stamps or (fine and not cfg.fine): return
    k = len(stamp_names); stamp_names.append(str(name))
    assert k < 64
    P.add(Ins(f"s_memrealtime s[{sSTAMP}:{sSTAMP+1}]", "op"), Ins(f"s_memtime s[0:1]", "op"), wlg0(),
          f"s_lshl_b64 exec, 1, {k}",
          f"v_accvgpr_write_b32 a{A_STAMP}, s{sSTAMP}", f"v_accvgpr_write_b32 a{A_STAMP+1}, s0", "s_mov_b64 exec, -1")

def dump_and_exit(regs):
    P.add(wall(), "s_nop 15")
    P.add(f"s_lshl_b32 s{sT0}, s2, 18", f"s_add_u32 s{sT0}, s{sT0}, {WS_DUMP}")
    P.add("v_lshlrev_b32 v7, 2, v0")
    for i, r in enumerate(regs):
        P.add(vm(f"buffer_store_dword {r}, v7, {srd(S_WS)}, s{sT0} offen", "dump"), f"s_add_u32 s{sT0}, s{sT0}, 1024")
    P.add(wall(), "s_endpgm")

def dump_lds_and_exit(base, nbytes):
    P.add(wall(), "s_barrier")
    P.add(f"s_lshl_b32 s{sT0}, s2, 18", f"s_add_u32 s{sT0}, s{sT0}, {WS_DUMP}")
    P.add("v_lshlrev_b32 v7, 4, v0", f"v_add_u32 v6, {base}, v7")
    for i in range(nbytes // 4096):
        P.add(lg(f"ds_read_b128 v[8:11], v6", "d"), wlg0(),
              vm(f"buffer_store_dwordx4 v[8:11], v7, {srd(S_WS)}, s{sT0} offen", "dump"), f"s_add_u32 s{sT0}, s{sT0}, 4096",
              "v_add_u32 v6, 4096, v6", wvm0())
    P.add(wall(), "s_endpgm")

def mk_srd(b, p, nbytes):
    return [f"s_mov_b32 s{b}, s{p}", f"s_and_b32 s{b+1}, s{p+1}, 0xffff", f"s_mov_b32 s{b+2}, {nbytes}", f"s_mov_b32 s{b+3}, 0x20000"]

def unpack(dlo, dhi, src):
    return [f"v_lshlrev_b32 v{dlo}, 16, v{src}", f"v_and_b32 v{dhi}, 0xffff0000, v{src}"]

def wave0_byte(val_s, tmp):
    return [f"s_lshl_b32 s{sT0}, s{sRB}, 3", f"s_add_u32 s{sT0}, s{sT0}, s{sG}", f"v_mov_b32 v{tmp}, s{val_s}", f"v_mov_b32 v{tmp+1}, s{sT0}", "s_mov_b64 exec, 1",
            vm(f"buffer_store_byte v{tmp}, v{tmp+1}, {srd(S_DBG)}, 0 offen sc1", "x"), "s_mov_b64 exec, -1"]

R = [32, 64, 96, 128, 160, 192]
XN = 128
FST = [224, 232]
V_WQ = 24
V_KD, V_VD = 20, 22
V_HR = 4
V_SG = 248
A_QACC = 0
A_HB = 128
V_KR, V_VR = 8, 12
V_P, V_S, V_NM, V_Q, V_O = 24, 32, 48, 64, 128
V_WD = 2
V_PF = 6
A_KF, A_VF, A_L, A_ONE, A_DUM, A_SEN, A_FL = 160, 0, 224, 240, 244, 248, 254
A_M2, A_XR, A_B2, A_B1 = 64, 96, 104, 112
A_OV, A_SW = 120, 121

def wq_load(t, s):
    b = R[t % 6]
    return [vm(f"buffer_load_dwordx4 {vr(b+4*j, 4)}, v{V_WQ+j}, {srd(S_WQ)}, s{s} offen", f"wq{t}") for j in range(8)]
def sg_addr(t, j):
    if t < 5:
        jj = 8*(t-3) + j
        return 0, L_K + 8192*(jj >> 1) + 1024*(jj & 1)
    return 1, L_E0 + 16384*(j >> 2) + 1024*(j & 3)
def adv(s): return [f"s_add_u32 s{s}, s{s}, 262144", f"s_and_b32 s{s}, s{s}, 0x3fffff"]

def prologue():
    a = P.add
    a(Ins("s_load_dwordx16 s[64:79], s[0:1], 0", "op"), Ins("s_load_dwordx8 s[80:87], s[0:1], 64", "op"),
      Ins("s_load_dwordx4 s[88:91], s[0:1], 96", "op"), Ins("s_load_dwordx2 s[92:93], s[0:1], 112", "op"))
    a("s_cmp_ge_u32 s2, 256", "s_cbranch_scc1 L_exit")
    a(f"s_getpc_b64 s[{S_TB}:{S_TB+1}]")
    a(label("L_pc"))
    a(f"s_mov_b32 s{S_TB+2}, L_codeend-L_pc", f"s_mov_b32 s{S_TB+3}, 0x20000", f"s_bfe_u32 s{sT0}, s2, 0x20003", f"s_lshl_b32 s{sT0}, s{sT0}, 14")
    a("v_lshlrev_b32 v3, 6, v0", "v_lshrrev_b32 v1, 6, v0", "v_and_b32 v2, 63, v0")
    a(vm(f"buffer_load_dword a{A_DUM}, v3, {srd(S_TB)}, s{sT0} offen", "dummy"))
    if cfg.stamps:
        a(f"v_accvgpr_write_b32 a{A_STAMP}, 0", f"v_accvgpr_write_b32 a{A_STAMP+1}, 0")
    a(f"s_and_b32 s{sT0}, s2, 3", f"v_readfirstlane_b32 s{sW}, v1")
    a(f"s_lshr_b32 s{sT1}, s2, 3", f"s_lshl_b32 s{sT0}, s{sT0}, 1", f"s_and_b32 s{sT2}, s{sT1}, 1", f"s_or_b32 s{sG}, s{sT0}, s{sT2}")
    a(f"s_lshr_b32 s{sRHO}, s{sT1}, 1", f"s_bfe_u32 s{sT2}, s2, 0x10002", f"s_lshl_b32 s{sT0}, s{sT2}, 4", f"s_or_b32 s{sRB}, s{sT0}, s{sRHO}")
    a(f"s_lshl_b32 s{sPP}, s{sRHO}, 3", f"s_add_u32 s{sPP}, s{sPP}, s{sG}", f"s_add_u32 s{sPP}, s{sPP}, s{sT0}",
      f"s_add_u32 s{sT0}, s{sT0}, 16", f"s_cmp_lt_u32 s{sRHO}, 2", f"s_cselect_b32 s{sT0}, 0, s{sT0}", f"s_add_u32 s{sPP}, s{sPP}, s{sT0}", f"s_mov_b32 s{sFLAG}, 0")
    a("v_lshrrev_b32 v3, 2, v0", "v_and_b32 v4, 3, v0", "v_lshlrev_b32 v5, 4, v3")
    a(f"v_mul_u32_u24 v6, {8*6144}, v3", "v_lshlrev_b32 v4, 4, v4", f"s_lshl_b32 s{sT0}, s{sPP}, 6", f"v_add3_u32 v6, v6, v4, s{sT0}")
    a("v_lshlrev_b32 v7, 4, v2")
    a(f"s_lshl_b32 s{sT2}, s{sRB}, 2", f"s_add_u32 s{sT2}, s{sT2}, s{sW}", f"s_lshl_b32 s{sT2}, s{sT2}, 14")
    C0 = 16
    def wm_loads():
        o = [vm(f"buffer_load_dwordx4 {vr(C0, 4)}, v5, {srd(S_TB)}, 0 offen", "wm")]
        for i in range(8):
            o += [f"s_mov_b32 s{sT0}, {6144*i}", vm(f"buffer_load_dwordx4 {vr(R[2]+4*i, 4)}, v6, {srd(S_TA)}, s{sT0} offen", "wm")]
        return o
    a(wlg0())
    stamp("start")
    a(mk_srd(S_TB, 84, 1024), mk_srd(S_TA, 86, 512*6144))
    a(f"s_cmp_ge_u32 s{sRHO}, 2", "s_cbranch_scc1 L_nocrit1")
    P.rare_begin(); a(wm_loads()); P.rare_end()
    a(label("L_nocrit1"))
    a(mk_srd(S_X, 64, 2097152))
    for i in range(16):
        if i and i % 4 == 0: a(f"s_add_u32 s{sT2}, s{sT2}, 4096")
        a(vm(f"buffer_load_dwordx4 {vr(XN+8*i+4, 4)}, v7, {srd(S_X)}, s{sT2} offen offset:{(i%4)*1024}", f"x{i}"))
    a(mk_srd(S_WS, 92, WS_BYTES), mk_srd(S_DBG, 90, 256), mk_srd(S_WQ, 70, 4194304))
    a(mk_srd(S_K, 66, 4194304), mk_srd(S_V, 68, 4194304), mk_srd(S_WO, 72, 4194304), mk_srd(S_W1, 76, 512*3584),
      mk_srd(S_W2, 80, 1792*1024), mk_srd(S_OUT, 88, 2097152))
    a(f"s_mov_b64 s[{S_B1P}:{S_B1P+1}], s[78:79]", f"s_mov_b64 s[{S_B2P}:{S_B2P+1}], s[82:83]")
    a("v_lshrrev_b32 v8, 4, v2", "v_and_b32 v9, 15, v2", "v_lshlrev_b32 v8, 16, v8", "v_lshlrev_b32 v9, 4, v9")
    a(f"s_lshl_b32 s{sT0}, s{sG}, 10", f"s_lshl_b32 s{sT1}, s{sW}, 8", f"s_add_u32 s{sT0}, s{sT0}, s{sT1}")
    a(f"v_add3_u32 v{V_WQ}, v8, v9, s{sT0}")
    for j in range(1, 8): a(f"v_add_u32 v{V_WQ+j}, {8192*j}, v{V_WQ}")
    a(f"s_cmp_ge_u32 s{sRHO}, 2", "s_cbranch_scc1 L_nocrit2")
    P.rare_begin()
    a(f"s_lshl_b32 s{sT0}, s{sPP}, 7", f"s_add_u32 s{sT0}, s{S_WS}, s{sT0}", f"s_addc_u32 s{sT1}, s{S_WS+1}, 0")
    a(Ins(f"s_load_dwordx16 s[64:79], s[{sT0}:{sT1}], {WS_MODG}", "op"), Ins(f"s_load_dwordx16 s[80:95], s[{sT0}:{sT1}], {WS_MODG+64}", "op"))
    a(f"s_mov_b32 s{sT2}, 1", wlg0())
    for i in range(16):
        a(f"s_min_u32 s{sT0}, s{65+2*i}, 31", f"s_bitset1_b32 s{sT2}, s{sT0}")
    a(f"s_ff0_i32_b32 s{sFLAG}, s{sT2}")
    a(f"s_cmp_lg_u32 s{sW}, 0", "s_cbranch_scc1 L_modcalc")
    a(wave0_byte(sFLAG, 8), "s_branch L_modcalc")
    P.rare_end()
    a(label("L_nocrit2"))
    a(f"s_cmp_ge_u32 s{sRHO}, 6", "s_cbranch_scc1 L_ret_crit")
    P.rare_begin(); a(wm_loads()); P.rare_end()
    a(label("L_ret_crit"))
    stamp("xissued")
    a(f"s_mov_b32 s{sSELLO}, 0x05040100", f"s_mov_b32 s{sSELHI}, 0x07060302")
    a(f"s_lshl_b32 s{sT3}, s{sRHO}, 18", f"s_lshl_b32 s{sT1}, s{sW}, 11", f"s_lshl_b32 s{sT2}, s{sW}, 12")
    pq = wq_load(0, sT3)
    pq = [[x] for x in pq]
    for t in (3, 4, 5):
        for j in range(8):
            sel, off = sg_addr(t, j)
            pre = []
            if j == 0: pre = [f"s_add_u32 s{sT3}, s{sT3}, {262144*(3 if t == 3 else 1)}", f"s_and_b32 s{sT3}, s{sT3}, 0x3fffff"]
            pq.append(pre + [f"s_add_u32 m0, s{sT2 if sel else sT1}, {off}", "s_nop 0",
                             vm(f"buffer_load_dwordx4 v{V_WQ+j}, {srd(S_WQ)}, s{sT3} offen lds", f"sgd")])
    ST = R[1]
    TT = 8
    for i in range(16):
        b = XN + 8*i
        a(wvm(f"x{i}"))
        if i in (0, 15): stamp(f"x{i}", True)
        for d in range(4): a(unpack(b+2*d, b+2*d+1, b+4+d))
        a(pq.pop(0))
        t = TT + 4*(i & 1)
        a(f"v_pk_add_f32 {vr(t, 2)}, {vr(b, 2)}, {vr(b+2, 2)}", f"v_pk_mul_f32 {vr(t+2, 2)}, {vr(b, 2)}, {vr(b, 2)}",
          f"v_pk_add_f32 {vr(t, 2)}, {vr(t, 2)}, {vr(b+4, 2)}", f"v_pk_fma_f32 {vr(t+2, 2)}, {vr(b+2, 2)}, {vr(b+2, 2)}, {vr(t+2, 2)}",
          f"v_pk_add_f32 {vr(t, 2)}, {vr(t, 2)}, {vr(b+6, 2)}", f"v_pk_fma_f32 {vr(t+2, 2)}, {vr(b+4, 2)}, {vr(b+4, 2)}, {vr(t+2, 2)}",
          f"v_add_f32 v{ST+i}, v{t}, v{t+1}", f"v_pk_fma_f32 {vr(t+2, 2)}, {vr(b+6, 2)}, {vr(b+6, 2)}, {vr(t+2, 2)}",
          f"v_add_f32 v{ST+16+i}, v{t+2}, v{t+3}")
        a(pq.pop(0))
    assert not pq
    stamp("x_in")
    for h in (0, 16):
        for i in range(8): a(f"v_permlane32_swap_b32 v{ST+h+i}, v{ST+h+i+8}")
    for h in (0, 16):
        for i in range(8): a(f"v_add_f32 v{ST+h+i}, v{ST+h+i}, v{ST+h+i+8}")
    for h in (0, 16):
        for i in range(4): a(f"v_permlane16_swap_b32 v{ST+h+i}, v{ST+h+i+4}")
    for h in (0, 16):
        for i in range(4): a(f"v_add_f32 v{ST+h+i}, v{ST+h+i}, v{ST+h+i+4}")
    for rot in (8, 4, 2, 1):
        for h in (0, 16):
            for i in range(4): a(f"v_add_f32_dpp v{ST+h+i}, v{ST+h+i}, v{ST+h+i} row_ror:{rot} row_mask:0xf bank_mask:0xf")
    for i in range(4): a(f"v_mul_f32 v{ST+i}, {f32(1/512)}, v{ST+i}")
    for i in range(4): a(f"v_mul_f32 v{ST+4+i}, v{ST+i}, v{ST+i}")
    a(f"s_mov_b32 s{sT0}, {f32(1/512)}")
    for i in range(4): a(f"v_fma_f32 v{ST+4+i}, v{ST+16+i}, s{sT0}, -v{ST+4+i}")
    for i in range(4): a(f"v_max_f32 v{ST+4+i}, 0, v{ST+4+i}")
    for i in range(4): a(f"v_add_f32 v{ST+4+i}, {f32(1e-5)}, v{ST+4+i}")
    for i in range(4): a(f"v_rsq_f32 v{ST+4+i}, v{ST+4+i}")
    for i in range(4): a(f"v_mul_f32 v{ST+i}, -v{ST+i}, v{ST+4+i}")
    for G in range(4):
        for i in range(4):
            row = i + 4*G
            a(f"v_readlane_b32 s{64+2*row}, v{ST+4+i}, {16*G}", f"v_readlane_b32 s{65+2*row}, v{ST+i}, {16*G}")
    a(f"s_cmp_lt_u32 s{sRHO}, 2", "s_cbranch_scc1 L_nomod", f"s_cmp_ge_u32 s{sRHO}, 6", "s_cbranch_scc1 L_nomod")
    P.rare_begin()
    a(label("L_modcalc"))
    SV, AC, T = R[1], R[1]+8, R[1]+16
    a(Ins("s_waitcnt vmcnt(24)", "xw"))
    for d in range(4): a(unpack(SV+2*d, SV+2*d+1, C0+d))
    for i in range(8): a(f"v_mul_f32 v{T+i}, {f32(-math.log2(math.e))}, v{SV+i}")
    for i in range(8): a(f"v_exp_f32 v{T+i}, v{T+i}")
    for i in range(8): a(f"v_add_f32 v{T+i}, 1.0, v{T+i}")
    for i in range(8): a(f"v_rcp_f32 v{T+i}, v{T+i}")
    for i in range(8): a(f"v_mul_f32 v{SV+i}, v{SV+i}, v{T+i}")
    for d in range(4): a(f"v_cvt_pk_bf16_f32 v{C0+d}, v{SV+2*d}, v{SV+2*d+1}")
    for d in range(4): a(unpack(SV+2*d, SV+2*d+1, C0+d))
    a("v_and_b32 v8, 3, v2", "v_bfe_u32 v9, v2, 4, 1", "v_lshrrev_b32 v10, 5, v2", "v_lshlrev_b32 v8, 5, v8", "v_lshlrev_b32 v9, 4, v9", "v_lshlrev_b32 v10, 3, v10")
    a(f"s_lshl_b32 s{sT0}, s{sW}, 7", "v_or_b32 v8, v8, v9", f"v_add3_u32 v8, v8, v10, s{sT0}", "v_and_b32 v9, 15, v2", "v_lshlrev_b32 v9, 3, v9")
    for i in range(8):
        a(Ins(f"s_waitcnt vmcnt({23-i})", "xw"))
        for c in range(4): a(unpack(T+2*c, T+2*c+1, R[2]+4*i+c))
        sel = "op_sel:[0,1] op_sel_hi:[1,1]" if i & 1 else "op_sel:[0,0] op_sel_hi:[1,0]"
        sel3 = "op_sel:[0,1,0] op_sel_hi:[1,1,1]" if i & 1 else "op_sel:[0,0,0] op_sel_hi:[1,0,1]"
        for c in range(4):
            if i == 0: a(f"v_pk_mul_f32 {vr(AC+2*c, 2)}, {vr(T+2*c, 2)}, {vr(SV+(i&~1), 2)} {sel}")
            else: a(f"v_pk_fma_f32 {vr(AC+2*c, 2)}, {vr(T+2*c, 2)}, {vr(SV+(i&~1), 2)}, {vr(AC+2*c, 2)} {sel3}")
    for rot in (4, 8):
        for k in range(8): a(f"v_add_f32_dpp v{AC+k}, v{AC+k}, v{AC+k} row_ror:{rot} row_mask:0xf bank_mask:0xf")
    for k in range(4): a(f"v_permlane16_swap_b32 v{AC+k}, v{AC+k+4}")
    for k in range(4): a(f"v_add_f32 v{AC+k}, v{AC+k}, v{AC+k+4}")
    a("s_nop 0")
    for k in range(2): a(f"v_permlane32_swap_b32 v{AC+k}, v{AC+k+2}")
    for k in range(2): a(f"v_add_f32 v{AC+k}, v{AC+k}, v{AC+k+2}")
    a(lg(f"ds_write_b64 v8, {vr(AC, 2)}", "ms"), wlg0(), "s_barrier")
    a(f"s_cmp_lg_u32 s{sW}, 0", "s_cbranch_scc1 L_modend")
    for w in range(4): a(lg(f"ds_read_b64 {vr(T+2*w, 2)}, v9 offset:{128*w}", "mr"))
    a(f"v_mov_b32 v{AC+1}, s{sFLAG}", f"s_lshl_b32 s{sT0}, s{sPP}, 7", wlg0())
    a(f"v_pk_add_f32 {vr(T, 2)}, {vr(T, 2)}, {vr(T+2, 2)}", f"v_pk_add_f32 {vr(T+4, 2)}, {vr(T+4, 2)}, {vr(T+6, 2)}",
      f"v_pk_add_f32 {vr(T, 2)}, {vr(T, 2)}, {vr(T+4, 2)}", f"v_cvt_pk_bf16_f32 v{AC}, v{T}, v{T+1}")
    a(f"s_cmp_ge_u32 s{sRHO}, 2", "s_cbranch_scc1 L_m2st")
    a("s_mov_b64 exec, 0xffff", vm(f"buffer_store_dwordx2 {vr(AC, 2)}, v9, {srd(S_WS)}, s{sT0} offen sc1", "x"), "s_mov_b64 exec, -1", "s_branch L_ret_crit")
    a(label("L_m2st"))
    a("v_bfe_u32 v8, v2, 1, 2", "v_bfe_u32 v9, v2, 3, 1", "v_and_b32 v10, 1, v2", "v_lshlrev_b32 v8, 6, v8", "v_lshlrev_b32 v9, 3, v9", "v_lshlrev_b32 v10, 2, v10", "v_or3_b32 v8, v8, v9, v10")
    a(f"s_and_b32 s{sT0}, s{sPP}, 15", f"s_lshl_b32 s{sT0}, s{sT0}, 8", f"s_sub_u32 s{sT1}, s{sPP}, 32", f"s_lshr_b32 s{sT1}, s{sT1}, 4", f"s_lshl_b32 s{sT1}, s{sT1}, 4",
      f"s_add_u32 s{sT0}, s{sT0}, s{sT1}", f"s_add_u32 s{sT0}, s{sT0}, {WS_M2}", "s_mov_b64 exec, 0xffff")
    a(vm(f"buffer_store_dword v{AC}, v8, {srd(S_WS)}, s{sT0} offen sc1", "x"), "s_mov_b64 exec, -1", f"s_mov_b32 s{sFLAG}, 0x40")
    a(label("L_modend"))
    a(f"s_cmp_lt_u32 s{sRHO}, 2", "s_cbranch_scc1 L_ret_crit")
    P.rare_end()
    a(label("L_nomod"))
    a(f"s_add_u32 s{sT2}, s{sT3}, {262144*12}", f"s_and_b32 s{sT2}, s{sT2}, 0x3fffff")
    pq = wq_load(1, sT2) + wq_load(2, sT2)
    for i in range(16):
        if i == 8: a(adv(sT2))
        a(pq.pop(0))
        for d in range(4):
            b = XN + 8*i + 2*d
            a(f"v_pk_fma_f32 {vr(b, 2)}, {vr(b, 2)}, s[{64+2*i}:{65+2*i}], s[{64+2*i}:{65+2*i}] op_sel:[0,0,1] op_sel_hi:[1,0,1]")
    stamp("ln1")
    a("v_lshlrev_b32 v1, 4, v0", "v_bfe_u32 v3, v0, 3, 4", "v_and_b32 v4, 0x80, v0", "v_or_b32 v3, v3, v4", f"s_mov_b32 s{sSPIN}, {SPIN}")
    a("v_lshrrev_b32 v23, 2, v2", f"v_subrev_u32 v23, s{sRHO}, v23", "v_and_b32 v23, 15, v23", "v_and_b32 v22, 1, v23", "v_lshlrev_b32 v23, 12, v23",
      "v_lshl_or_b32 v23, v22, 6, v23", "v_and_b32 v22, 3, v2", "v_lshl_or_b32 v23, v22, 8, v23", "v_lshl_or_b32 v23, v22, 4, v23",
      f"s_lshl_b32 s{sT0}, s{sW}, 10", f"v_or_b32 v23, s{sT0}, v23")
    a(f"s_lshl_b32 s{sT1}, s{sW}, 12", f"v_add_u32 v21, s{sT1}, v7", "v_lshrrev_b32 v20, 5, v2", "v_and_b32 v22, 31, v2", "v_lshlrev_b32 v20, 12, v20",
      "v_lshl_or_b32 v20, v22, 5, v20", f"v_add_u32 v20, s{sT0}, v20")
    a(f"s_cmp_ge_u32 s{sW}, 2", f"s_cselect_b32 s{sT2}, 1.0, 0")
    a(label("L_poll"))
    a(vm(f"buffer_load_dwordx4 v[4:7], v1, {srd(S_WS)}, 0 offen sc1", "pl"), vm(f"buffer_load_ubyte v8, v3, {srd(S_DBG)}, 0 offen sc1", "pl"), wvm0())
    a("v_and_b32 v8, 31, v8", "v_cmp_ne_u32 vcc, v5, v8", f"v_cmp_ne_u32 s[{sT0}:{sT1}], v7, v8", f"v_cmp_eq_u32 s[{sEX}:{sEX+1}], 0, v8", "s_nop 1",
      f"s_or_b64 vcc, vcc, s[{sT0}:{sT1}]", f"s_or_b64 vcc, vcc, s[{sEX}:{sEX+1}]", "s_cbranch_vccz L_polld",
      f"s_sub_u32 s{sSPIN}, s{sSPIN}, 1", f"s_cmp_lg_u32 s{sSPIN}, 0", "s_cbranch_scc1 L_poll")
    a(label("L_polld"))
    stamp("mod_in")
    a(unpack(8, 9, 4), unpack(10, 11, 6))
    for i in range(4): a(f"v_add_f32 v{8+i}, s{sT2}, v{8+i}")
    a("v_cvt_pk_bf16_f32 v4, v8, v9", "v_cvt_pk_bf16_f32 v6, v10, v11", unpack(8, 9, 4), unpack(10, 11, 6))
    for i in range(4): a(f"v_mul_f32 v{8+i}, {f32(QSCALE)}, v{8+i}")
    for w in range(4): a(lg(f"ds_write_b128 v21, v[8:11] offset:{1024*w}", "gs"))
    a(f"s_cmp_lg_u32 s{sFLAG}, 0x40", "s_cbranch_scc1 L_nom2")
    P.rare_begin(); a(wave0_byte(sFLAG, 4)); P.rare_end()
    a(label("L_nom2"))
    a(wlg0(), "s_barrier")
    SA, GG = 4, 12
    a(lg(f"ds_read_b128 {vr(SA, 4)}, v20", "g"), lg(f"ds_read_b128 {vr(GG, 4)}, v20 offset:8192", "g"),
      lg(f"ds_read_b128 {vr(SA+4, 4)}, v20 offset:16", "g"), lg(f"ds_read_b128 {vr(GG+4, 4)}, v20 offset:8208", "g"))
    a(f"s_mov_b32 s{sWQOFF}, s{sT3}", wlg0())
    for ql in range(8):
        if ql: a(f"v_xor_b32 v1, {16*ql}, v23")
        for qh in range(2):
            b = XN + 8*(ql + 8*qh)
            for d in range(4): a(f"v_pk_fma_f32 {vr(b+2*d, 2)}, {vr(b+2*d, 2)}, {vr(GG+2*d, 2)}, {vr(SA+2*d, 2)}")
            for d in range(4): a(f"v_cvt_pk_bf16_f32 v{b+d}, v{b+2*d}, v{b+2*d+1}")
            a(lg(f"ds_write_b128 v{1 if ql else 23}, {vr(b, 4)} offset:{128*qh}", "hw"))
    a("v_lshrrev_b32 v6, 4, v2", "v_xor_b32 v4, v2, v6", "v_lshlrev_b32 v4, 4, v4", "v_xor_b32 v5, 64, v4")
    a(f"s_lshl_b32 s{sW2K}, s{sW}, 11", f"s_lshl_b32 s{sW4K}, s{sW}, 12", f"s_add_u32 s{sT0}, s{sW2K}, {L_K}", f"s_add_u32 s{sT1}, s{sW4K}, {L_E0}", "v_lshlrev_b32 v7, 4, v2")
    a(wlg0(), f"v_add_u32 v{V_SG}, s{sT0}, v7", f"v_add_u32 v{V_SG+1}, s{sT1}, v7")
    a(perms(0, 0), "s_barrier")
    stamp("h_done")

def perms(t, c):
    b = R[t % 6]; F = FST[c & 1]
    o = []
    for par, sel in ((0, sSELLO), (1, sSELHI)):
        for m in range(4):
            o.append(f"v_perm_b32 v{F+4*par+m}, v{b+4*(2*m+1)+c}, v{b+4*(2*m)+c}, s{sel}")
    return o
def hreads(t):
    return [lg(f"ds_read_b128 {ar(A_HB+16*(t&1)+4*qt, 4)}, v{V_HR+(t&1)} offset:{t*4096+qt*1024}", f"h{t}") for qt in range(4)]
def sgreads(t):
    o = []
    for j in range(8):
        sel, off = sg_addr(t, j)
        o.append(lg(f"ds_read_b128 {vr(R[t]+4*j, 4)}, v{V_SG+sel} offset:{off-(L_E0 if sel else L_K)}", f"sg{t}"))
    return o

def kv_items(u, soff):
    s = u & 3
    tg = f"kv{u//2 & 1}"
    return [f"s_add_u32 m0, s{sW2K}, {L_K+8192*s}",
            vm(f"buffer_load_dwordx4 v{V_KD}, {srd(S_K)}, s{soff} offen lds", tg),
            vm(f"buffer_load_dwordx4 v{V_KD+1}, {srd(S_K)}, s{soff} offen offset:1024 lds", tg),
            f"s_add_u32 m0, s{sW2K}, {L_V+8192*s}",
            vm(f"buffer_load_dwordx4 v{V_VD}, {srd(S_V)}, s{soff} offen lds", tg),
            vm(f"buffer_load_dwordx4 v{V_VD+1}, {srd(S_V)}, s{soff} offen offset:1024 lds", tg)]
def kv_adv(): return [f"s_add_u32 s{sKV0}, s{sKV0}, 16384", f"s_add_u32 s{sKV1}, s{sKV1}, 16384"]

def fkey(dst, k, t1, t2):
    return [f"v_lshrrev_b32 v{t1}, 1, v{k}", f"v_xor_b32 v{t2}, v{t1}, v{k}", f"v_and_b32 v{t1}, 4, v{t1}", f"v_and_b32 v{t2}, 4, v{t2}",
            f"v_and_b32 v{dst}, 3, v{k}", f"v_lshl_or_b32 v{dst}, v{t2}, 1, v{dst}", f"v_or_b32 v{dst}, v{dst}, v{t1}"]

def addr_setup():
    t0, t1, t2, t3, t4 = 240, 241, 242, 243, 244
    o = [f"s_lshl_b32 s{sKV0}, s{sG}, 19", f"s_add_u32 s{sKV0}, s{sKV0}, {1536*256}", f"s_add_u32 s{sKV1}, s{sKV0}, 8192"]
    o += [f"v_lshrrev_b32 v{t0}, 4, v2", f"v_and_b32 v{t4}, 15, v2", f"s_lshl_b32 s{sT0}, s{sW}, 3", f"v_add_u32 v{t0}, s{sT0}, v{t0}"]
    for i in range(2):
        o += [f"v_add_u32 v{t3}, {4*i}, v{t0}", f"v_and_b32 v{t3}, 15, v{t3}"]
        o += fkey(V_KD+i, t3, t1, t2)
        o += [f"v_xor_b32 v{V_KD+i}, v{V_KD+i}, v{t4}", f"v_lshlrev_b32 v{V_KD+i}, 4, v{V_KD+i}", f"v_lshl_or_b32 v{V_KD+i}, v{t0}, 8, v{V_KD+i}"]
        o += [f"v_and_b32 v{t3}, 7, v{t3}", f"v_lshlrev_b32 v{t3}, 1, v{t3}", f"v_xor_b32 v{V_VD+i}, v{t3}, v{t4}",
              f"v_lshlrev_b32 v{V_VD+i}, 4, v{V_VD+i}", f"v_lshl_or_b32 v{V_VD+i}, v{t0}, 8, v{V_VD+i}"]
    o += [f"s_lshl_b32 s{sWOB}, s{sG}, 19", f"s_mul_i32 s{sW1B}, s{sG}, 448", f"s_mul_i32 s{sW2B}, s{sG}, {224*1024}"]
    o.append("MARK")
    o += fkey(t3, t4, t1, t2)
    o += [f"v_lshrrev_b32 v{t0}, 4, v2", f"v_lshlrev_b32 v{t1}, 2, v{t0}", f"v_xor_b32 v{t3}, v{t3}, v{t1}", f"v_lshlrev_b32 v{t3}, 4, v{t3}",
          f"v_lshl_or_b32 v{t3}, v{t4}, 8, v{t3}", f"v_add_u32 v{V_KR}, {L_K}, v{t3}"]
    for s in range(1, 4): o += [f"v_xor_b32 v{V_KR+s}, {16*s}, v{V_KR}"]
    o += [f"v_lshrrev_b32 v{t0}, 2, v2", f"v_and_b32 v{t1}, 7, v{t0}", f"v_and_b32 v{t2}, 3, v2", f"v_lshlrev_b32 v{t2}, 3, v{t2}",
          f"v_lshl_or_b32 v{t2}, v{t1}, 5, v{t2}", f"v_lshl_or_b32 v{t2}, v{t0}, 8, v{t2}", f"v_add_u32 v{V_VR}, {L_V}, v{t2}"]
    for dt in range(1, 8): o += [f"v_xor_b32 v{V_VR+dt}, {32*dt}, v{V_VR}"]
    o += [f"v_mov_b32 v{t0}, 0x3f803f80"] + [f"v_accvgpr_write_b32 a{A_ONE+i}, v{t0}" for i in range(4)]
    o += [f"v_accvgpr_write_b32 a{A_SEN+i}, -1" for i in range(4)]
    o += [f"s_lshl_b32 s{sIDX}, s{sRB}, 3", f"s_mul_i32 s{sTEAM}, s{sIDX}, {MB_SZ}", f"s_add_u32 s{sTEAM}, s{sTEAM}, {WS_MB}",
          f"s_mul_i32 s{sT0}, s{sG}, {MB_SZ}", f"s_add_u32 s{sMB}, s{sTEAM}, s{sT0}",
          f"s_mul_i32 s{sT0}, s{sW}, {MB_W}", f"s_add_u32 s{sMB}, s{sMB}, s{sT0}", f"s_mov_b32 s{sPF}, s{sMB}", f"s_mov_b32 s{sBAD}, 0",
          f"s_mov_b32 s{sWOP}, s{sWOB}", f"s_mov_b32 s{sRING}, s{sW4K}", f"s_mov_b32 s{sRD}, 32768", f"s_or_b32 s{sFLAG}, s{sFLAG}, 0x80"]
    o += mk_srd(S_TA, S_B2P, 1024) + mk_srd(S_TB, S_B1P, 3584)
    o += [f"s_lshl_b32 s{sT0}, s{sRB}, 2", f"s_add_u32 s{sT0}, s{sT0}, s{sW}", f"s_lshl_b32 s{sT0}, s{sT0}, 3", f"s_add_u32 s{sT0}, s{sT0}, s{sG}",
          f"s_lshl_b32 s{sXROW}, s{sT0}, 11", f"s_lshl_b32 s{sB1O}, s{sW}, 7", f"s_add_u32 s{sB1O}, s{sB1O}, s{sW1B}", f"s_mov_b32 s{sM2O}, {WS_M2}"]
    o += [f"v_lshrrev_b32 v{t0}, 3, v2", f"v_lshrrev_b32 v{t1}, 4, v2", f"v_and_b32 v{t2}, 7, v2", f"v_lshlrev_b32 v{t1}, 1, v{t1}", f"v_xor_b32 v{t2}, v{t2}, v{t1}",
          f"v_lshlrev_b32 v245, 4, v{t2}", f"s_lshl_b32 s{sT0}, s{sW}, 8", f"v_lshl_or_b32 v246, v{t0}, 10, v245", f"v_add_u32 v246, s{sT0}, v246",
          f"v_lshlrev_b32 v{V_PF}, 4, v2", f"s_lshl_b32 s{sT0}, s{sW}, 14", f"s_add_u32 s{sT0}, s{sT0}, {L_B}", f"v_add_u32 v1, s{sT0}, v{V_PF}"]
    return o

def warmups():
    t = 250
    o = [f"v_lshlrev_b32 v{t}, 6, v2", f"s_lshl_b32 s{sT2}, s{sRHO}, 2", f"s_add_u32 s{sT2}, s{sT2}, s{sW}",
         f"s_lshl_b32 s{sT1}, s{sT2}, 11", f"s_add_u32 s{sT1}, s{sT1}, s{sWOB}", f"s_add_u32 s{sT1}, s{sT1}, {1536*256}", f"v_lshlrev_b32 v{t+1}, 5, v2",
         vm(f"buffer_load_dword a{A_DUM}, v{t+1}, {srd(S_K)}, s{sT1} offen", "dummy"),
         vm(f"buffer_load_dword a{A_DUM+1}, v{t+1}, {srd(S_V)}, s{sT1} offen", "dummy"),
         f"s_lshl_b32 s{sT1}, s{sT2}, 13", f"s_add_u32 s{sT1}, s{sT1}, s{sWOB}",
         vm(f"buffer_load_dword a{A_DUM}, v{t}, {srd(S_WO)}, s{sT1} offen", "dummy"), f"s_add_u32 s{sT1}, s{sT1}, 4096",
         vm(f"buffer_load_dword a{A_DUM+1}, v{t}, {srd(S_WO)}, s{sT1} offen", "dummy")]
    o += [f"s_mul_i32 s{sT1}, s{sT2}, 3584", f"s_add_u32 s{sT1}, s{sT1}, s{sW2B}", vm(f"buffer_load_dword a{A_DUM+2}, v{t}, {srd(S_W2)}, s{sT1} offen", "dummy")]
    o += [f"v_lshrrev_b32 v{t+1}, 3, v2", f"v_and_b32 v{t+2}, 7, v2", f"v_mul_u32_u24 v{t+1}, 3584, v{t+1}", f"v_lshl_add_u32 v{t+1}, v{t+2}, 6, v{t+1}",
          f"s_mul_i32 s{sT1}, s{sT2}, {8*3584}", f"s_add_u32 s{sT1}, s{sT1}, s{sW1B}", vm(f"buffer_load_dword a{A_DUM+3}, v{t+1}, {srd(S_W1)}, s{sT1} offen", "dummy")]
    return o

def qproj():
    a = P.add
    a(hreads(0))
    extra = addr_setup()
    late = kv_items(0, sKV0) + kv_items(1, sKV1) + kv_adv() + kv_items(2, sKV0) + kv_items(3, sKV1) + kv_adv() + warmups()
    vq = []
    a(wlg("h0"))
    for t in range(16):
        mf, gaps = [], [[] for _ in range(32)]
        for c in range(4):
            F = FST[c & 1]
            for par in range(2):
                for qt in range(4):
                    d = ar(A_QACC + ((2*c+par)*4+qt)*4, 4)
                    mf.append(f"{MF} {d}, {vr(F+4*par, 4)}, {ar(A_HB+16*(t&1)+4*qt, 4)}, {d if t else 0}")
        for c in range(4):
            g0 = 8*c
            if c < 3: pm = perms(t, c+1)
            elif t < 15: pm = perms(t+1, 0)
            else: pm = []
            if c == 3 and t + 6 < 16:
                ad = adv(sWQOFF)
                gaps[g0].append(ad[0]); gaps[g0+1].append(ad[1])
                vq += wq_load(t+6, sWQOFF)
            for k in (2, 6):
                if vq: gaps[g0+k].append(vq.pop(0))
            for k in (0, 1, 3, 4): gaps[g0+k] += pm[:2]; pm = pm[2:]
            if c == 2 and t < 15: gaps[g0+7] += [wvm(f"wq{t+1}"), wlg(f"sg{t+1}")]
            if c == 3 and t < 15: gaps[g0+7].append(wlg(f"h{t+1}"))
            oth = []
            if c == 0 and t < 15: oth = hreads(t+1)
            if 1 <= c <= 2 and t < 3: oth = sgreads(t+3)[4*(c-1):4*c]
            if oth:
                gaps[g0+5] += oth[:2]
                gaps[g0+7] = oth[2:] + gaps[g0+7]
                continue
            free = list(range(g0, g0+8))
            if t >= 11 and late:
                assert "MARK" not in extra
                fill(gaps, free, late)
            elif t >= 3:
                while extra and extra[0] == "MARK": extra.pop(0)
                q = [x for x in extra[:12] if x != "MARK"]
                n0 = len(q); fill(gaps, free, q)
                used = n0 - len(q)
                while used:
                    x = extra.pop(0)
                    if x != "MARK": used -= 1
        if t in (4, 8, 12): stamp(f"q{t}", True)
        a(template(mf, gaps))
    assert not late, late
    a([x for x in extra if x != "MARK"])
    a(wvm("kv0", "kv1"), "s_barrier")
    stamp("qproj")

def KF(u, kt, s): return A_KF + 32*(u & 1) + 16*kt + 4*s
def VF(u, dt): return A_VF + 32*(u & 1) + 4*dt
def OA(dt, qt): return V_O + (dt*4 + qt)*4
def QF(s, qt): return V_Q + (s*4 + qt)*4
def kreads(u):
    return [lg(f"ds_read_b128 {ar(KF(u, kt, s), 4)}, v{V_KR+s} offset:{(u&3)*8192+kt*4096}", f"k{u&1}") for s in range(4) for kt in range(2)]
def vreads(u):
    return [lg(f"ds_read_b64_tr_b16 {ar(VF(u, dt)+2*hh, 2)}, v{V_VR+dt} offset:{(u&3)*8192+hh*4096}", f"v{u&1}") for dt in range(8) for hh in range(2)]
def qk(n):
    u, qt = divmod(n, 4)
    o = []
    for s in range(4):
        for kt in range(2):
            d = vr(V_S + 8*(n & 1) + 4*kt, 4)
            o.append(f"{MF} {d}, {ar(KF(u, kt, s), 4)}, {vr(QF(s, qt), 4)}, {d if s else vr(V_NM+4*qt, 4)}")
    return o
def pv(n):
    u, qt = divmod(n, 4)
    p = vr(V_P + 4*(n & 1), 4)
    o = []
    for dt in range(8):
        d = vr(OA(dt, qt), 4)
        o.append(f"{MF} {d}, {ar(VF(u, dt), 4)}, {p}, {d if u else 0}")
    d = ar(A_L + 4*qt, 4)
    o.append(f"{MF} {d}, {ar(A_ONE, 4)}, {p}, {d if u else 0}")
    return o
def sreg(n, i):
    if n < 4: return OA(2*n + (i >> 2), 3) + (i & 3)
    return V_S + 8*(n & 1) + i
def expo(n):
    e = [f"v_exp_f32 v{sreg(n, i)}, v{sreg(n, i)}" for i in range(8)]
    c = [f"v_cvt_pk_bf16_f32 v{V_P+4*(n&1)+i}, v{sreg(n, 2*i)}, v{sreg(n, 2*i+1)}" for i in range(4)]
    pre = [f"v_add_f32 v{sreg(n, i)}, v{sreg(n, i)}, v{V_NM+4*n}" for i in range(8)] if n < 4 else []
    return pre, e, c
def frag_reads(n):
    u, ph = n // 4 + 1, n % 4
    if u > 15: return []
    kr, vrd = kreads(u), vreads(u)
    if n < 4: kr = []
    if ph < 2: return kr[4*ph:4*ph+4] + vrd[2*ph:2*ph+2]
    return vrd[4+6*(ph-2):10+6*(ph-2)]

MU_TEMPLATES = [
    dict(e=[0,2,4,6,8,10,12,14], c=[9,9,16,16], d=[1,1,3,3,5,5], w=15),
    dict(e=[0,2,4,6,8,10,12,14], c=[7,7,15,15], d=[1,1,3,3,5,5], w=13),
    dict(e=[0,2,4,6,8,10,12,14], c=[9,9,16,16], d=[1,1,5,5,11,11], w=15),
    dict(e=[0,2,4,6,9,11,13,15], c=[8,8,16,16], d=[1,1,3,3,5,5], w=14),
    dict(e=[0,1,3,4,7,8,10,11], c=[6,6,13,13], d=[2,2,5,5,9,9], w=15),
    dict(e=[0,2,4,6,8,10,12,14], c=[11,11,16,16], d=[1,1,3,3,7,7], w=15),
]
carry = []
def muslot(n, q=None, tail=()):
    has_qk = 4 <= n + 2 <= 63
    mf = (qk(n+2) if has_qk else []) + pv(n)
    pre, e, c = expo(n+1) if n + 1 <= 63 else ([], [], [])
    ds = frag_reads(n)
    endw = []
    if n % 4 == 1 and n + 3 <= 63: endw.append(wlg(f"k{((n+3)//4) & 1}"))
    if n % 4 == 3 and n < 63: endw.append(wlg(f"v{((n+1)//4) & 1}"))
    if has_qk and not pre and e:
        gaps = [[] for _ in range(17)]
        T = MU_TEMPLATES[cfg.mu]
        for i in range(8): gaps[T["e"][i]].append(e[i])
        for k, x in carry: gaps[k].append(x)
        del carry[:]
        for i in range(4):
            if T["c"][i] >= 0: gaps[T["c"][i]].append(c[i])
            elif n % 16 == 3 or n >= 61: gaps[16].append(c[i])
            else: carry.append((-T["c"][i], c[i]))
        for k in sorted(T["d"]):
            if ds: gaps[k].append(ds.pop(0))
        assert not ds
        if not tail: gaps[14] = endw + gaps[14]
        if q is not None: fill(gaps, [k for k in range(17) if not (tail and k == 16)], q)
        if tail: gaps[16] += list(tail)
        return template(mf, gaps)
    ev = list(pre)
    for i in range(len(e)):
        ev.append(e[i])
        if i >= 2 and i % 2 == 0: ev.append(c[i//2 - 1])
    if c: ev += ["s_nop 0", c[3]]
    oth = ds + (q or [])
    if q is not None: del q[:]
    out = [] if has_qk else [op("s_nop 1")]
    ev = [op(x) if isinstance(x, str) else x for x in ev]
    oth = [op(x) if isinstance(x, str) else x for x in oth]
    for k, m in enumerate(mf):
        out.append(op(m))
        left = len(mf) - k
        cap = max(2, -(-(sum(x.cost for x in ev) + sum(x.cost for x in oth)) // left))
        used = 0
        while used < cap and (ev or oth):
            src = None
            for L in ((ev, oth) if k % 2 == 0 else (oth, ev)):
                if L and used + L[0].cost <= cap:
                    if L is ev and L[0].text.startswith("v_cvt") and out[-1].text.startswith("v_exp"): continue
                    src = L; break
            if src is None: break
            x = src.pop(0); out.append(x); used += x.cost
    return out + ev + oth + endw + [op(x) if isinstance(x, str) else x for x in tail]

def stage_dma(sig):
    st = STAGES[sig % 6]
    if sig < 32:
        p, t = divmod(sig, 16); S, vb, base, off = S_WO, V_WD, sWOB, t*32768 + 128*p
    elif sig < 48:
        pos = sig - 32; tb = 4*((pos >> 1) & 3) + 2*(pos >> 3) + (pos & 1)
        S, vb, base, off = S_W1, V_W1D, sW1B, tb*32*3584
    else:
        p, t = divmod(sig - 48, 7); S, vb, base, off = S_W2, V_WD, sW2B, t*32768 + 128*p
    return [f"s_add_u32 s{sT3}, s{base}, {off}", f"s_add_u32 m0, s{sW4K}, {st}"] + \
           [vm(f"buffer_load_dwordx4 v{vb+i}, {srd(S)}, s{sT3} offen offset:{1024*i} lds", f"st{sig}") for i in range(4)]

V_W1D, V_TR, V_LIN, V_PS, V_GA = 17, 8, 16, 21, 22
def normalize(qt):
    rl = V_NM + 2*qt
    o = [f"v_accvgpr_read_b32 v{rl}, a{A_L+4*qt}", f"v_cmp_nle_f32 vcc, v{rl}, v7", f"v_rcp_f32 v{rl}, v{rl}", "s_nop 0",
         f"s_or_b32 s{sBAD}, s{sBAD}, vcc_lo", f"s_or_b32 s{sBAD}, s{sBAD}, vcc_hi"]
    for u in range(4):
        x, y = OA(2*u, qt), OA(2*u+1, qt)
        for b in (x, x+2, y, y+2): o.append(f"v_pk_mul_f32 {vr(b, 2)}, {vr(b, 2)}, {vr(rl, 2)} op_sel_hi:[1,0]")
        o += [f"v_cvt_pk_bf16_f32 v{x}, v{x}, v{x+1}", f"v_cvt_pk_bf16_f32 v{x+1}, v{x+2}, v{x+3}",
              f"v_cvt_pk_bf16_f32 v{x+2}, v{y}, v{y+1}", f"v_cvt_pk_bf16_f32 v{x+3}, v{y+2}, v{y+3}"]
        o.append(lg(f"ds_write_b128 v1, {vr(x, 4)} offset:{u*4096+qt*1024}", "ow"))
    return o

def param_loads():
    x, y, z, c = 20, 21, 22, 23
    o = [f"v_bfe_u32 v{x}, v0, 4, 2", f"v_bfe_u32 v{y}, v0, 3, 1", f"v_and_b32 v{z}, 3, v0",
         f"v_lshlrev_b32 v{c}, 10, v{x}", f"v_lshl_or_b32 v{c}, v{y}, 8, v{c}", f"v_lshl_or_b32 v{c}, v{z}, 6, v{c}"]
    for p in range(2):
        for vec in range(4):
            o.append(vm(f"buffer_load_dwordx4 {ar(A_M2+16*p+4*vec, 4)}, v{c}, {srd(S_WS)}, s{sM2O} offen offset:{512*p+16*vec} sc1", "par"))
    o += [f"v_lshlrev_b32 v{c}, 8, v{x}", f"v_lshl_or_b32 v{c}, v{y}, 6, v{c}", f"v_lshl_or_b32 v{c}, v{z}, 3, v{c}", f"v_lshlrev_b32 v{x}, 3, v{x}"]
    for p in range(2):
        for h in range(2):
            o.append(vm(f"buffer_load_dwordx2 {ar(A_B2+4*p+2*h, 2)}, v{c}, {srd(S_TA)}, 0 offen offset:{128*p+32*h}", "par"))
    o += [f"v_bfe_u32 v{y}, v0, 2, 1", f"v_lshl_or_b32 v{y}, v{y}, 10, v{c}"]
    for e in range(4):
        o.append(vm(f"buffer_load_dwordx2 {ar(A_B1+2*e, 2)}, v{x}, {srd(S_TB)}, s{sB1O} offen offset:{32*e}", "par"))
    for p in range(2):
        for h in range(2):
            o.append(vm(f"buffer_load_dwordx2 {ar(A_XR+4*p+2*h, 2)}, v{y}, {srd(S_X)}, s{sXROW} offen offset:{128*p+32*h}", "par"))
    o += [f"v_accvgpr_write_b32 a{A_OV}, v{y}"]
    return o

def flag_check(mask, nw, addr_ops, tmp, soff):
    a = P.add
    ok, sp = newlabel("fok"), newlabel("fsp")
    def chk():
        o = [f"v_accvgpr_read_b32 v{tmp}, a{A_FL}"]
        if nw == 2: o += [f"v_accvgpr_read_b32 v{tmp+1}, a{A_FL+1}", f"v_and_b32 v{tmp}, v{tmp}, v{tmp+1}"]
        o += [f"v_and_b32 v{tmp}, {mask}, v{tmp}", f"v_cmp_ne_u32 vcc, {mask}, v{tmp}", f"s_cbranch_vccz {ok}"]
        return o
    a(wvm("fl"), chk())
    P.rare_begin()
    a(f"s_mov_b32 s{sSPIN}, {SPIN}", label(sp), addr_ops,
      vm(f"buffer_load_dword{'x2' if nw == 2 else ''} {ar(A_FL, nw)}, v{tmp}, {srd(S_DBG)}, {soff} offen sc1", "x"), wvm0(), chk(),
      f"s_sub_u32 s{sSPIN}, s{sSPIN}, 1", f"s_cmp_lg_u32 s{sSPIN}, 0", f"s_cbranch_scc1 {sp}")
    P.rare_end()
    a(label(ok))

def attention():
    a = P.add
    a(kreads(0))
    T = 32
    def conv(qt):
        o = []
        for s in range(4):
            for mm in (0, 2):
                t = T + 4*((2*s + mm//2) & 3)
                for k in range(4): o.append(f"v_accvgpr_read_b32 v{t+k}, a{A_QACC+((2*mm+k)*4+qt)*4+s}")
                o += [f"v_cvt_pk_bf16_f32 v{QF(s, qt)+mm}, v{t}, v{t+1}", f"v_cvt_pk_bf16_f32 v{QF(s, qt)+mm+1}, v{t+2}, v{t+3}"]
        return o
    def s0(qt):
        o = []
        for s in range(4):
            for kt in range(2):
                d = vr(OA(2*qt+kt, 3), 4)
                o.append(f"{MF} {d}, {ar(KF(0, kt, s), 4)}, {vr(QF(s, qt), 4)}, {d if s else 0}")
        return o
    def maxred(qt):
        r = [sreg(qt, i) for i in range(8)]
        m, t = V_NM + 4*qt, V_NM + 4*qt + 1
        return [f"v_max3_f32 v{m}, v{r[0]}, v{r[1]}, v{r[2]}", f"v_max3_f32 v{t}, v{r[3]}, v{r[4]}, v{r[5]}", f"v_max3_f32 v{m}, v{m}, v{r[6]}, v{r[7]}",
                f"v_max_f32 v{m}, v{m}, v{t}", f"v_mov_b32 v{t}, v{m}", "s_nop 1", f"v_permlane16_swap_b32 v{m}, v{t}", f"v_max_f32 v{m}, v{m}, v{t}",
                f"v_mov_b32 v{t}, v{m}", "s_nop 1", f"v_permlane32_swap_b32 v{m}, v{t}", f"v_max_f32 v{m}, v{m}, v{t}",
                f"v_mul_f32 v{m}, -1.0, v{m}", f"v_mov_b32 v{m+1}, v{m}", f"v_mov_b32 v{m+2}, v{m}", f"v_mov_b32 v{m+3}, v{m}"]
    a(f"v_mov_b32 v{V_WD}, v246")
    for i in range(1, 4): a(f"v_add_u32 v{V_WD+i}, {7168*i}, v246")
    a(conv(0), kreads(1), wlg("k0"))
    for qt in range(4):
        fl = conv(qt+1) if qt < 3 else []
        if qt == 2: fl = fl + [f"v_accvgpr_write_b32 a{A_SW}, v245"]
        a(interleave(s0(qt), fl, cap=6))
        if qt == 3: a(vreads(0))
        if qt >= 1: a(maxred(qt-1))
    m2addr = ["v_and_b32 v7, 7, v0", "v_bfe_u32 v32, v0, 3, 1", "v_lshlrev_b32 v7, 2, v7", "v_lshl_or_b32 v7, v32, 7, v7"]
    a(m2addr, vm(f"buffer_load_dword a{A_FL}, v7, {srd(S_DBG)}, 16 offen sc1", "fl"))
    a(maxred(3))
    pre, e, c = expo(0)
    a(pre, e, f"v_mov_b32 v7, {f32(2.0**30) if not cfg.force_fallback else f32(1e-3)}", c, wlg("v0"))
    stamp("conv")
    def bar(tag, nxt=()): return [wlg0(), wvm(tag), op("s_barrier")] + list(nxt)
    a(muslot(0), muslot(1), muslot(2))
    a(muslot(3, tail=[f"s_mov_b32 s{sLOOP}, 3"]))
    a(raw(".p2align 6"))
    a(label("L_attn"))
    P.loop_begin(3)
    for half in range(2):
        u0 = 4 + 2*half
        if half == 0: a(bar("kv1"))
        kv = kv_items(u0, sKV0) + kv_items(u0+1, sKV1)
        a(kv.pop(0))
        q = kv + kv_adv()
        st = [vm(f"buffer_store_dwordx4 {ar(A_SEN, 4)}, v{V_PF}, {srd(S_WS)}, s{sPF} offen offset:{1024*(i%3)} sc1", "pf") for i in range(6)]
        wp = [vm(f"buffer_load_dwordx4 v{V_WD+i}, {srd(S_WO)}, s{sWOP} offen offset:{1024*i} lds", "wop") for i in range(4)]
        pfadd = f"s_add_u32 s{sPF}, s{sPF}, 3072"
        q += [f"s_add_u32 m0, s{sRING}, {16384*half}", st[0], wp[0], st[1], wp[1], st[2], pfadd, wp[2], st[3], wp[3], f"s_add_u32 s{sWOP}, s{sWOP}, 32768", st[4], st[5], pfadd]
        if half == 1: q += [f"s_add_u32 s{sRING}, s{sRING}, s{sRD}", f"s_mul_i32 s{sRD}, s{sRD}, 3", f"s_sub_u32 s{sLOOP}, s{sLOOP}, 1"]
        for j in range(8):
            n = 4 + 8*half + j
            tail = ()
            if j == 7 and half == 0: tail = bar("kv0")
            if j == 7 and half == 1: tail = [f"s_cmp_lg_u32 s{sLOOP}, 0"]
            a(muslot(n, q, tail))
            if half == 0 and j == 3:
                a(f"s_add_u32 s{sT0}, s{sLOOP}, s{sW}", f"s_cmp_lg_u32 s{sT0}, 1", "s_cbranch_scc1 L_noflag")
                P.rare_begin()
                a(f"v_mov_b32 v7, s{sFLAG}", "s_mov_b64 exec, 1", f"s_add_u32 s{sT0}, s{sIDX}, s{sG}",
                  vm(f"buffer_store_byte v7, off, {srd(S_DBG)}, s{sT0} sc1", "x"), "s_mov_b64 exec, -1",
                  f"v_mov_b32 v7, {f32(2.0**30) if not cfg.force_fallback else f32(1e-3)}")
                P.rare_end()
                a(label("L_noflag"))
        assert not q, q
    a("s_cbranch_scc1 L_attn")
    P.loop_end()
    stamp("aloop", True)
    a(bar("kv1"))
    flag_check("0x40404040", 1, [x.replace("v7", "v20").replace("v32", "v21") for x in m2addr], 20, "16")
    q = param_loads()
    q.append(vm(f"buffer_load_dwordx2 {ar(A_FL, 2)}, off, {srd(S_DBG)}, s{sIDX} sc1", "fl"))
    nrm = []
    for n in range(52, 64):
        tail = [wlg0(), op("s_barrier")] if n == 59 else ()
        if n >= 61: nrm += normalize(n - 61)
        if n >= 62:
            take = nrm[:22]; nrm = nrm[22:]
            a(muslot(n, take))
        else:
            a(muslot(n, q, tail))
    assert not q
    a(nrm, "s_nop 2", normalize(3))
    a(f"s_cmp_lg_u32 s{sBAD}, 0", "s_cbranch_scc1 L_fallback")
    a(label("L_fb_ret"))
    a(ring_addr_setup())
    a(areads(0))
    flag_check("0x80808080", 2, [f"v_mov_b32 v28, 0"], 28, f"s{sIDX}")
    a(wlg0(), "s_barrier")
    stamp("attn")

A_AF, A_BF = 0, 32
ACCX, ACCY = 128, 192
G0, G1 = 64, 96
V_YR, V_YW, V_LB = 23, 24, 7
V_X1, V_B1F = 32, 48
def areads(sig):
    st = STAGES[sig % 6]
    hi = st >= L_E0
    off = st - (L_E0 if hi else 0)
    return [lg(f"ds_read_b64_tr_b16 {ar(A_AF+16*(sig&1)+4*e+2*hh, 2)}, v{V_TR+4*hi+e} offset:{off+2048*hh}", f"a{sig}") for e in range(4) for hh in range(2)]
def breads(sig):
    if sig < 32: t, v = sig % 16, V_LB
    elif sig < 48: t, v = sig - 32, V_YR
    else: t, v = (sig - 48) % 7, V_LB
    return [lg(f"ds_read_b128 {ar(A_BF+16*(sig&1)+4*qt, 4)}, v{v} offset:{t*4096+qt*1024}", f"a{sig}") for qt in range(4)]
def gstep(sig, acc, first, cinit=None, q=None, nxt=True, dma=True):
    mf = []
    for e in range(4):
        for qt in range(4):
            d = vr(acc + (e*4+qt)*4, 4)
            c = d if not first else (0 if cinit is None else vr(cinit + 4*e, 4))
            mf.append(f"{MF} {d}, {ar(A_AF+16*(sig&1)+4*e, 4)}, {ar(A_BF+16*(sig&1)+4*qt, 4)}, {c}")
    gaps = [[] for _ in range(16)]
    if nxt:
        t_, b_ = areads(sig+1), breads(sig+1)
        gaps[0] = t_[0:2]; gaps[1] = t_[2:4]; gaps[3] = [t_[4], b_[0]]; gaps[4] = [t_[5], b_[1]]; gaps[5] = [t_[6], b_[2]]; gaps[7] = [t_[7], b_[3]]
    if dma:
        d = stage_dma(sig+6)
        gaps[0].insert(0, d[0]); gaps[1].insert(0, d[1])
        for i, k in enumerate((2, 6, 10, 14)): gaps[k] = [d[2+i]]
    if nxt: gaps[15] = [wvm(f"st{sig+2}"), wlg(f"a{sig+1}")]
    if q: fill(gaps, list(range(16)) if not nxt else [8, 9, 11, 12, 13] if dma else [2, 6, 8, 9, 10, 11, 12, 13, 14], q)
    return template(mf, gaps)

def pack_store(acc, p, mboff):
    o = [f"s_add_u32 s{sPST}, s{sMB}, {mboff+8192*p}"]
    for qt in range(4):
        if qt == 2: o.append(f"s_add_u32 s{sPST}, s{sPST}, 4096")
        for b in range(2):
            x, y = acc + (2*b*4+qt)*4, acc + ((2*b+1)*4+qt)*4
            o += [f"v_cvt_pk_bf16_f32 v{x}, v{x}, v{x+1}", f"v_cvt_pk_bf16_f32 v{x+1}, v{x+2}, v{x+3}",
                  f"v_cvt_pk_bf16_f32 v{x+2}, v{y}, v{y+1}", f"v_cvt_pk_bf16_f32 v{x+3}, v{y+2}, v{y+3}",
                  vm(f"buffer_store_dwordx4 {vr(x, 4)}, v{V_PS}, {srd(S_WS)}, s{sPST} offen offset:{(qt&1)*2048+b*1024} sc1", "ps")]
    return o

def gather_loads(buf, n, voff, soffs, tag):
    o = []
    for i in range(n):
        o += [f"s_add_u32 s{sGAT}, s{sTEAM}, {soffs(i)}", vm(f"buffer_load_dwordx4 {vr(buf+4*i, 4)}, v{voff}, {srd(S_WS)}, s{sGAT} offen sc1", tag)]
    return o
def gather_check(buf, n, voff, soffs, tag, tmp):
    a = P.add
    ok, again = newlabel("gok"), newlabel("gre")
    def allmax():
        o = [f"v_max3_u32 v{tmp}, v{buf}, v{buf+1}, v{buf+2}", f"v_max_u32 v{tmp+1}, v{buf+3}, v{buf+4}"]
        k = 5
        while k + 3 < 4*n:
            o += [f"v_max3_u32 v{tmp}, v{tmp}, v{buf+k}, v{buf+k+1}", f"v_max3_u32 v{tmp+1}, v{tmp+1}, v{buf+k+2}, v{buf+k+3}"]; k += 4
        assert 4*n - k == 3
        o += [f"v_max3_u32 v{tmp}, v{tmp}, v{buf+k}, v{buf+k+1}", f"v_max3_u32 v{tmp}, v{tmp}, v{tmp+1}, v{buf+k+2}", f"v_cmp_eq_u32 vcc, -1, v{tmp}"]
        return o
    a(wvm(tag), allmax(), f"s_cbranch_vccz {ok}")
    P.rare_begin()
    a(f"s_mov_b32 s{sSPIN}, {SPIN}", label(again))
    for i in range(n):
        sk = newlabel("gsk")
        b = buf + 4*i
        a(f"v_max3_u32 v{tmp}, v{b}, v{b+1}, v{b+2}", f"v_max_u32 v{tmp}, v{tmp}, v{b+3}", f"v_cmp_eq_u32 vcc, -1, v{tmp}", f"s_cbranch_vccz {sk}",
          f"s_add_u32 s{sGAT}, s{sTEAM}, {soffs(i)}", vm(f"buffer_load_dwordx4 {vr(b, 4)}, v{voff}, {srd(S_WS)}, s{sGAT} offen sc1", "x"), label(sk))
    a(wvm0(), allmax(), f"s_cbranch_vccz {ok}", f"s_sub_u32 s{sSPIN}, s{sSPIN}, 1", f"s_cmp_lg_u32 s{sSPIN}, 0", f"s_cbranch_scc1 {again}")
    P.rare_end()
    a(label(ok))

def sum8(buf, dst, tmp):
    o = []
    for g in range(8):
        for d in range(4):
            if g == 0: o += unpack(dst+2*d, dst+2*d+1, buf+d)
            else:
                t = tmp + 2*d
                o += unpack(t, t+1, buf+4*g+d)
        if g:
            for d in range(4): o.append(f"v_pk_add_f32 {vr(dst+2*d, 2)}, {vr(dst+2*d, 2)}, {vr(tmp+2*d, 2)}")
    return o

def aunpack(dst, asrc, n, tmp):
    o = [f"v_accvgpr_read_b32 v{tmp+i}, a{asrc+i}" for i in range(n)]
    for i in range(n): o += unpack(dst+2*i, dst+2*i+1, tmp+i)
    return o

def rowstats(x, t):
    o = [f"v_pk_add_f32 {vr(t, 2)}, {vr(x, 2)}, {vr(x+2, 2)}", f"v_pk_mul_f32 {vr(t+2, 2)}, {vr(x, 2)}, {vr(x, 2)}",
         f"v_pk_add_f32 {vr(t+4, 2)}, {vr(x+4, 2)}, {vr(x+6, 2)}", f"v_pk_mul_f32 {vr(t+6, 2)}, {vr(x+2, 2)}, {vr(x+2, 2)}"]
    for k in range(4, 16, 2):
        if k >= 8: o.append(f"v_pk_add_f32 {vr(t+4*((k>>1)&1), 2)}, {vr(t+4*((k>>1)&1), 2)}, {vr(x+k, 2)}")
        o.append(f"v_pk_fma_f32 {vr(t+2+4*((k>>1)&1), 2)}, {vr(x+k, 2)}, {vr(x+k, 2)}, {vr(t+2+4*((k>>1)&1), 2)}")
    o += [f"v_pk_add_f32 {vr(t, 2)}, {vr(t, 2)}, {vr(t+4, 2)}", f"v_pk_add_f32 {vr(t+2, 2)}, {vr(t+2, 2)}, {vr(t+6, 2)}",
          f"v_add_f32 v{t}, v{t}, v{t+1}", f"v_add_f32 v{t+1}, v{t+2}, v{t+3}"]
    for m in ("quad_perm:[1,0,3,2]", "quad_perm:[2,3,0,1]", "row_ror:8"):
        o += ["s_nop 0", f"v_add_f32_dpp v{t}, v{t}, v{t} {m} row_mask:0xf bank_mask:0xf", f"v_add_f32_dpp v{t+1}, v{t+1}, v{t+1} {m} row_mask:0xf bank_mask:0xf"]
    for sw in ("v_permlane16_swap_b32", "v_permlane32_swap_b32"):
        o += [f"v_mov_b32 v{t+2}, v{t}", f"v_mov_b32 v{t+3}, v{t+1}", "s_nop 0", f"{sw} v{t}, v{t+2}", f"{sw} v{t+1}, v{t+3}",
              f"v_add_f32 v{t}, v{t}, v{t+2}", f"v_add_f32 v{t+1}, v{t+1}, v{t+3}"]
    o += [f"v_mul_f32 v{t+2}, {f32(1/512)}, v{t}", f"v_mul_f32 v{t+1}, {f32(1/512)}, v{t+1}", f"v_fma_f32 v{t}, -v{t+2}, v{t+2}, v{t+1}",
          f"v_max_f32 v{t}, 0, v{t}", f"v_add_f32 v{t}, {f32(1e-5)}, v{t}", f"v_rsq_f32 v{t}, v{t}", "s_nop 0", f"v_mul_f32 v{t+1}, -v{t+2}, v{t}"]
    return o

def ring_addr_setup():
    L, t0, t1, t2 = 31, 28, 29, 30
    o = [f"v_and_b32 v{L}, 63, v0"]
    o += [f"v_lshrrev_b32 v{t0}, 2, v{L}", f"v_bfe_u32 v{t1}, v{L}, 3, 2", f"v_and_b32 v{t2}, 3, v{L}", f"v_lshlrev_b32 v{t2}, 3, v{t2}",
          f"v_lshl_or_b32 v{t2}, v{t1}, 5, v{t2}", f"v_lshl_or_b32 v{t2}, v{t0}, 7, v{t2}", f"v_add_u32 v{V_TR}, s{sW4K}, v{t2}"]
    for e in range(1, 4): o.append(f"v_xor_b32 v{V_TR+e}, {32*e}, v{V_TR}")
    o += [f"v_lshlrev_b32 v{V_LIN}, 4, v{L}", f"v_add_u32 v{V_LB}, {L_B}, v{V_LIN}"]
    return o
def ring_addr_setup2():
    L, t0, t1, t2 = 31, 28, 29, 30
    o = []
    for e in range(4): o.append(f"v_add_u32 v{V_TR+4+e}, {L_E0}, v{V_TR+e}")
    o += [f"v_bfe_u32 v{t0}, v{L}, 1, 3", f"v_and_b32 v{t1}, 1, v{L}", f"v_lshrrev_b32 v{t2}, 4, v{L}", f"v_lshlrev_b32 v{V_PS}, 7, v{t0}",
          f"v_lshl_or_b32 v{V_PS}, v{t1}, 6, v{V_PS}", f"v_lshl_or_b32 v{V_PS}, v{t2}, 4, v{V_PS}"]
    o += [f"v_bfe_u32 v{t0}, v{L}, 3, 1", f"v_and_b32 v{t1}, 7, v{L}", f"v_mul_u32_u24 v{V_GA}, {MB_W}, v{t2}", f"v_lshl_add_u32 v{V_GA}, v{t0}, 10, v{V_GA}",
          f"v_lshl_add_u32 v{V_GA}, v{t1}, 4, v{V_GA}", f"s_lshl_b32 s{sT0}, s{sG}, 7", f"s_add_u32 s{sT0}, s{sT0}, s{sW2K}", f"v_add_u32 v{V_GA}, s{sT0}, v{V_GA}"]
    o += [f"v_accvgpr_read_b32 v{t0}, a{A_SW}", f"v_lshrrev_b32 v{t1}, 3, v{L}", f"v_mul_u32_u24 v{t1}, 3584, v{t1}", f"s_lshl_b32 s{sT0}, s{sW}, 7",
          f"v_add3_u32 v{V_W1D}, v{t0}, v{t1}, s{sT0}"]
    for i in range(1, 4): o.append(f"v_add_u32 v{V_W1D+i}, {(8*3584-1024)*i}, v{V_W1D}")
    o += [f"v_lshlrev_b32 v{t0}, 1, v{t2}", f"v_xor_b32 v{V_YR}, v{L}, v{t0}", f"v_lshlrev_b32 v{V_YR}, 4, v{V_YR}", f"v_add_u32 v{V_YR}, {L_B}, v{V_YR}"]
    o += [f"v_lshrrev_b32 v{t0}, 3, v{L}", f"v_and_b32 v{t1}, 3, v{L}", f"v_bfe_u32 v{t2}, v{L}, 2, 1", f"v_lshlrev_b32 v{V_YW}, 12, v{t0}",
          f"v_lshl_or_b32 v{V_YW}, v{t1}, 8, v{V_YW}", f"v_lshl_or_b32 v{V_YW}, v{t2}, 4, v{V_YW}", f"v_lshl_or_b32 v{V_YW}, v{t1}, 5, v{V_YW}",
          f"s_lshl_b32 s{sT0}, s{sW}, 10", f"s_add_u32 s{sT0}, s{sT0}, {L_B}", f"v_add_u32 v{V_YW}, s{sT0}, v{V_YW}"]
    for j in range(1, 4): o.append(f"v_xor_b32 v{V_YW+j}, {32*j}, v{V_YW}")
    o += [f"s_mul_i32 s{sT0}, s{sW}, {MB_W}", f"v_add_u32 v6, s{sT0}, v{V_LIN}"]
    return o

V_SUM, V_TMP, V_PA, V_PB = 128, 144, 160, 176
def oproj():
    a = P.add
    a(breads(0), wlg("a0"))
    ex = ring_addr_setup2() + aunpack(V_X1, A_XR, 8, G0) + aunpack(V_B1F, A_B1, 8, G0+8)
    epi, gq = [], []
    for sig in range(32):
        p, t = divmod(sig, 16)
        if sig == 16:
            assert not ex
            ex = pack_store(ACCX, 0, MB_P1)
        if sig % 4 == 0: stamp(f"o{sig}", True)
        a(gstep(sig, ACCX if p == 0 else ACCY, t == 0, q=ex, nxt=(sig != 31), dma=(sig + 6 < 32)))
    assert not ex and not gq
    a("s_nop 3", pack_store(ACCY, 1, MB_P1))
    a(gather_loads(G0, 8, V_GA, lambda i: i*MB_SZ + MB_P1, "g0"))
    a(gather_loads(G1, 8, V_GA, lambda i: i*MB_SZ + MB_P1 + 8192, "g1"))
    stamp("oproj")

def ln2():
    a = P.add
    for sig in range(32, 38):
        d = stage_dma(sig); a(d[:2], "s_nop 0", d[2:])
    a("s_barrier")
    for p in range(2): a(aunpack(V_PA+8*p, A_M2+16*p+0, 4, V_TMP))
    gather_check(G0, 8, V_GA, lambda i: i*MB_SZ + MB_P1, "g0", V_TMP)
    stamp("g0ok", True)
    a(sum8(G0, V_SUM, V_TMP))
    G2, SB = 192, 208
    for p in range(2):
        a(aunpack(G2+8*p, A_M2+16*p+8, 4, V_TMP))
        a([f"v_add_f32 v{G2+8*p+i}, 1.0, v{G2+8*p+i}" for i in range(8)])
        a([f"v_cvt_pk_bf16_f32 v{V_TMP+i}, v{G2+8*p+2*i}, v{G2+8*p+2*i+1}" for i in range(4)])
        for i in range(4): a(unpack(G2+8*p+2*i, G2+8*p+2*i+1, V_TMP+i))
        a(aunpack(SB+8*p, A_M2+16*p+4, 4, V_TMP))
    gather_check(G1, 8, V_GA, lambda i: i*MB_SZ + MB_P1 + 8192, "g1", V_TMP)
    stamp("ex1")
    a(sum8(G1, V_SUM+8, V_TMP))
    for k in range(0, 16, 2): a(f"v_pk_fma_f32 {vr(V_X1+k, 2)}, {vr(V_SUM+k, 2)}, {vr(V_PA+k, 2)}, {vr(V_X1+k, 2)}")
    a(rowstats(V_X1, V_TMP))
    H = V_SUM
    for k in range(0, 16, 2): a(f"v_pk_fma_f32 {vr(H+k, 2)}, {vr(V_X1+k, 2)}, {vr(V_TMP, 2)}, {vr(V_TMP, 2)} op_sel:[0,0,1] op_sel_hi:[1,0,1]")
    for k in range(0, 16, 2): a(f"v_pk_fma_f32 {vr(H+k, 2)}, {vr(H+k, 2)}, {vr(G2+k, 2)}, {vr(SB+k, 2)}")
    a(rowstats(H, V_TMP))
    for k in range(0, 16, 2): a(f"v_pk_fma_f32 {vr(H+k, 2)}, {vr(H+k, 2)}, {vr(V_TMP, 2)}, {vr(V_TMP, 2)} op_sel:[0,0,1] op_sel_hi:[1,0,1]")
    a(f"s_add_u32 s{sT0}, s{sMB}, {MB_Y}")
    for p in range(2):
        for i in range(4): a(f"v_cvt_pk_bf16_f32 v{V_PB+4*p+i}, v{H+8*p+2*i}, v{H+8*p+2*i+1}")
        a(vm(f"buffer_store_dwordx4 {vr(V_PB+4*p, 4)}, v{V_LIN}, {srd(S_WS)}, s{sT0} offen offset:{1024*p} sc1", "ys"))
    stamp("ln2")
    for p, buf in ((0, G0), (1, G1)): a(gather_loads(buf, 8, 6, lambda i: i*MB_SZ + MB_Y + 1024*p, f"y{p}"))
    a(wvm("st32"), areads(32))
    for p, buf in ((0, G0), (1, G1)):
        gather_check(buf, 8, 6, lambda i: i*MB_SZ + MB_Y + 1024*p, f"y{p}", V_TMP)
        for j in range(8): a(lg(f"ds_write_b128 v{V_YW+(j&3)}, {vr(buf+4*j, 4)} offset:{128*(j>>2)+32768*p}", "yw"))
    a(wlg0(), "s_barrier")
    stamp("y_in")

def mlp():
    a = P.add
    a(breads(32), wlg("a32"))
    k = 2*math.sqrt(2/math.pi)*math.log2(math.e)
    ex = [f"s_mov_b32 s{sC1}, {f32(-k*0.044715)}", f"s_mov_b32 s{sC1+1}, {f32(-k)}", f"s_lshl_b32 s{sT0}, s{sW}, 13", f"v_add_u32 v28, s{sT0}, v{V_LB}"]
    for sig in range(32, 48):
        a(gstep(sig, ACCX, sig == 32, cinit=V_B1F, q=ex, nxt=(sig != 47)))
    stamp("mlp1")
    a(wvm("st48"), areads(48), "s_barrier")
    T = ACCY
    for b in range(2):
        for qt in range(4):
            x, y = ACCX + (2*b*4+qt)*4, ACCX + ((2*b+1)*4+qt)*4
            prs = [x, x+2, y, y+2]
            t = T + 8*(qt & 1)
            for i, z in enumerate(prs): a(f"v_pk_mul_f32 {vr(t+2*i, 2)}, {vr(z, 2)}, {vr(z, 2)}")
            for i, z in enumerate(prs): a(f"v_pk_fma_f32 {vr(t+2*i, 2)}, {vr(t+2*i, 2)}, s[{sC1}:{sC1+1}], s[{sC1}:{sC1+1}] op_sel:[0,0,1] op_sel_hi:[1,0,1]")
            for i, z in enumerate(prs): a(f"v_pk_mul_f32 {vr(t+2*i, 2)}, {vr(t+2*i, 2)}, {vr(z, 2)}")
            for i in range(8): a(f"v_exp_f32 v{t+i}, v{t+i}")
            for i in range(4): a(f"v_pk_add_f32 {vr(t+2*i, 2)}, {vr(t+2*i, 2)}, 1.0 op_sel_hi:[1,0]")
            for i in range(8): a(f"v_rcp_f32 v{t+i}, v{t+i}")
            for i, z in enumerate(prs): a(f"v_pk_mul_f32 {vr(z, 2)}, {vr(t+2*i, 2)}, {vr(z, 2)}")
            a(f"v_cvt_pk_bf16_f32 v{x}, v{x}, v{x+1}", f"v_cvt_pk_bf16_f32 v{x+1}, v{x+2}, v{x+3}",
              f"v_cvt_pk_bf16_f32 v{x+2}, v{y}, v{y+1}", f"v_cvt_pk_bf16_f32 v{x+3}, v{y+2}, v{y+3}")
            a(lg(f"ds_write_b128 v28, {vr(x, 4)} offset:{b*4096+qt*1024}", "hw"))
    a(wlg0(), "s_barrier")
    stamp("gelu")
    a(breads(48), wvm("st49"), wlg("a48"))
    ex = []
    for sig in range(48, 62):
        p, t = divmod(sig - 48, 7)
        if sig == 55: ex = pack_store(ACCX, 0, MB_P2)
        if sig in (52, 55, 58): stamp(f"m{sig}", True)
        a(gstep(sig, ACCX if p == 0 else ACCY, t == 0, q=ex, nxt=(sig != 61), dma=(sig + 6 < 62)))
    a(ex)
    a("s_nop 3", pack_store(ACCY, 1, MB_P2))
    a(gather_loads(G0, 8, V_GA, lambda i: i*MB_SZ + MB_P2, "g0"))
    a(gather_loads(G1, 8, V_GA, lambda i: i*MB_SZ + MB_P2 + 8192, "g1"))
    stamp("mlp2")

def final():
    a = P.add
    GB, B2 = V_PA, V_PB
    for p in range(2): a(aunpack(GB+8*p, A_M2+16*p+12, 4, V_TMP))
    a(aunpack(B2, A_B2, 8, V_TMP))
    a(f"v_accvgpr_read_b32 v28, a{A_OV}")
    for p, buf in ((0, G0), (1, G1)):
        gather_check(buf, 8, V_GA, lambda i: i*MB_SZ + MB_P2 + 8192*p, f"g{p}", V_TMP)
        S = V_SUM + 8*p
        a(sum8(buf, S, V_TMP))
        for k in range(0, 8, 2): a(f"v_pk_add_f32 {vr(S+k, 2)}, {vr(S+k, 2)}, {vr(B2+8*p+k, 2)}")
        for k in range(0, 8, 2): a(f"v_pk_fma_f32 {vr(S+k, 2)}, {vr(S+k, 2)}, {vr(GB+8*p+k, 2)}, {vr(V_X1+8*p+k, 2)}")
        for i in range(4): a(f"v_cvt_pk_bf16_f32 v{S+i}, v{S+2*i}, v{S+2*i+1}")
        for h in range(2): a(vm(f"buffer_store_dwordx2 {vr(S+2*h, 2)}, v28, {srd(S_OUT)}, s{sXROW} offen offset:{128*p+32*h}", "out"))
    if cfg.stamps:
        stamp("end")
        a(f"s_lshl_b32 s{sT0}, s2, 10", f"s_add_u32 s{sT0}, s{sT0}, {WS_STAMP}", "v_lshlrev_b32 v7, 2, v0",
          vm(f"buffer_store_dword a{A_STAMP}, v7, {srd(S_WS)}, s{sT0} offen", "st"), f"s_add_u32 s{sT0}, s{sT0}, 0x40000",
          vm(f"buffer_store_dword a{A_STAMP+1}, v7, {srd(S_WS)}, s{sT0} offen", "st"))
    a(label("L_exit"), "s_endpgm")

def fallback():
    a = P.add
    P.rare_begin()
    a(label("L_fallback"), wall())
    L, KA = 32, 33
    a(f"v_and_b32 v{L}, 63, v0", f"v_and_b32 v{KA}, 15, v{L}", f"v_lshrrev_b32 v34, 4, v{L}", f"v_lshlrev_b32 v{KA}, 8, v{KA}", f"v_lshl_or_b32 v{KA}, v34, 6, v{KA}")
    a(f"v_and_b32 v36, 15, v{L}")
    for i in range(2):
        a(f"v_add_u32 v37, {4*i}, v34", f"v_lshlrev_b32 v37, 1, v37", f"v_xor_b32 v37, v37, v36", f"v_lshlrev_b32 v37, 4, v37", f"v_lshl_or_b32 v{20+i}, v34, 8, v37")
    a(f"s_lshl_b32 s{sT2}, s{sG}, 19", f"s_add_u32 s{sT2}, s{sT2}, {1536*256}", f"s_mov_b32 s{sT0}, s{sT2}", f"s_mov_b32 s{sLOOP}, 32")
    for qt in range(4): a(f"v_mov_b32 v{V_NM+4*qt}, 0xff800000")
    a(label("L_fb1"))
    for s in range(4): a(vm(f"buffer_load_dwordx4 {ar(A_KF+4*s, 4)}, v{KA}, {srd(S_K)}, s{sT0} offen offset:{16*s}", "x"))
    a(wvm0())
    for qt in range(4):
        for s in range(4): a(f"{MF} v[36:39], {ar(A_KF+4*s, 4)}, {vr(QF(s, qt), 4)}, {'v[36:39]' if s else 0}")
        a("s_nop 9", f"v_max3_f32 v{V_NM+4*qt}, v{V_NM+4*qt}, v36, v37", f"v_max3_f32 v{V_NM+4*qt}, v{V_NM+4*qt}, v38, v39", "s_nop 3")
    a(f"s_add_u32 s{sT0}, s{sT0}, 4096", f"s_sub_u32 s{sLOOP}, s{sLOOP}, 1", f"s_cmp_lg_u32 s{sLOOP}, 0", "s_cbranch_scc1 L_fb1")
    for qt in range(4):
        m, t = V_NM + 4*qt, V_NM + 4*qt + 1
        a(f"v_mov_b32 v{t}, v{m}", "s_nop 1", f"v_permlane16_swap_b32 v{m}, v{t}", f"v_max_f32 v{m}, v{m}, v{t}",
          f"v_mov_b32 v{t}, v{m}", "s_nop 1", f"v_permlane32_swap_b32 v{m}, v{t}", f"v_max_f32 v{m}, v{m}, v{t}",
          f"v_mul_f32 v{m}, -1.0, v{m}", f"v_mov_b32 v{m+1}, v{m}", f"v_mov_b32 v{m+2}, v{m}", f"v_mov_b32 v{m+3}, v{m}")
    for r in range(128): a(f"v_mov_b32 v{V_O+r}, 0")
    for r in range(16): a(f"v_accvgpr_write_b32 a{A_L+r}, 0")
    a(f"s_lshl_b32 s{sT1}, s{sW}, 14", f"s_add_u32 s{sT1}, s{sT1}, {L_B}", f"s_sub_u32 s{sT0}, s{sT1}, {L_V}")
    for dt in range(8): a(f"v_add_u32 v{V_VR+dt}, s{sT0}, v{V_VR+dt}")
    a(f"s_mov_b32 s{sT0}, s{sT2}", f"s_mov_b32 s{sLOOP}, 16")
    a(label("L_fb2"))
    for j in range(4):
        a(f"s_add_u32 m0, s{sT1}, {2048*j}", f"s_add_u32 s{sT3}, s{sT0}, {2048*j}",
          vm(f"buffer_load_dwordx4 v20, {srd(S_V)}, s{sT3} offen lds", "x"), vm(f"buffer_load_dwordx4 v21, {srd(S_V)}, s{sT3} offen offset:1024 lds", "x"))
    a(f"s_add_u32 s{sT3}, s{sT0}, 4096")
    for s in range(4):
        a(vm(f"buffer_load_dwordx4 {ar(KF(0, 0, s), 4)}, v{KA}, {srd(S_K)}, s{sT0} offen offset:{16*s}", "x"),
          vm(f"buffer_load_dwordx4 {ar(KF(0, 1, s), 4)}, v{KA}, {srd(S_K)}, s{sT3} offen offset:{16*s}", "x"))
    a(wvm0())
    a(vreads(0), wlg0())
    for qt in range(4):
        for s in range(4):
            for kt in range(2):
                d = vr(40 + 4*kt, 4)
                a(f"{MF} {d}, {ar(KF(0, kt, s), 4)}, {vr(QF(s, qt), 4)}, {d if s else vr(V_NM+4*qt, 4)}")
        a("s_nop 9")
        for i in range(8): a(f"v_exp_f32 v{40+i}, v{40+i}")
        a("s_nop 0")
        for i in range(4): a(f"v_cvt_pk_bf16_f32 v{V_P+i}, v{40+2*i}, v{41+2*i}")
        a("s_nop 1")
        for dt in range(8): a(f"{MF} {vr(OA(dt, qt), 4)}, {ar(VF(0, dt), 4)}, {vr(V_P, 4)}, {vr(OA(dt, qt), 4)}")
        a(f"{MF} {ar(A_L+4*qt, 4)}, {ar(A_ONE, 4)}, {vr(V_P, 4)}, {ar(A_L+4*qt, 4)}")
    a(f"s_add_u32 s{sT0}, s{sT0}, 8192", f"s_sub_u32 s{sLOOP}, s{sLOOP}, 1", f"s_cmp_lg_u32 s{sLOOP}, 0", "s_cbranch_scc1 L_fb2")
    a("s_nop 9")
    for qt in range(4): a(normalize(qt))
    a("s_branch L_fb_ret")
    P.rare_end()

HEADER = """; Fused adaLN-modulated block: cached sliding-window GQA attention + channel MLP, one persistent launch.
; @launch grid=(256,1,1) block=(256,1,1) lds=163840
.amdgcn_target "amdgcn-amd-amdhsa--gfx950"
.text
.globl {kn}
.p2align 8
.type {kn},@function
{kn}:
"""
FOOTER = """L_codeend:
.section .rodata,"a"
.p2align 6
.amdhsa_kernel {kn}
  .amdhsa_next_free_vgpr 512
  .amdhsa_next_free_sgpr 102
  .amdhsa_accum_offset 256
  .amdhsa_group_segment_fixed_size 0
  .amdhsa_kernarg_size 120
  .amdhsa_user_sgpr_count 2
  .amdhsa_user_sgpr_kernarg_segment_ptr 1
  .amdhsa_system_sgpr_workgroup_id_x 1
  .amdhsa_float_denorm_mode_32 3
.end_amdhsa_kernel
"""

def build():
    d = cfg.dump
    prologue()
    if d == "h": dump_lds_and_exit(0, 65536)
    qproj()
    if d == "q": dump_and_exit([f"a{i}" for i in range(128)])
    attention()
    if d == "o": dump_lds_and_exit(L_B, 65536)
    oproj()
    ln2()
    if d == "y": dump_lds_and_exit(L_B, 65536)
    mlp()
    final()
    fallback()
    resolve_waits(P.items)
    merge_waits(P.items)
    errs = check(P.items)
    print("-- with rare regions inline")
    items2 = [x for x in P.items if x.kind not in ("rare_begin", "rare_end")]
    check(items2)
    return HEADER.format(kn=KN) + render(P.items) + FOOTER.format(kn=KN), errs

if __name__ == "__main__":
    ap = argparse.ArgumentParser()
    ap.add_argument("-o", default=f"cdna_kernels/{NAME}.s")
    ap.add_argument("--stamps", action="store_true")
    ap.add_argument("--dump")
    ap.add_argument("--mu", type=int, default=1)
    ap.add_argument("--fine", action="store_true")
    ap.add_argument("--force-fallback", action="store_true")
    args = ap.parse_args()
    cfg.stamps = args.stamps; cfg.dump = args.dump; cfg.mu = args.mu; cfg.fine = args.fine; cfg.force_fallback = args.force_fallback
    txt, errs = build()
    if cfg.stamps: txt = "; STAMPS " + ",".join(stamp_names) + "\n" + txt
    open(args.o, "w").write(txt)
    print("wrote", args.o, len(txt), "bytes;", len(errs), "hazard reports")
```

```python
import sys, math, argparse, struct
from asmlib import *

NAME = "adaLN_cond__sliding_block_cached__mixer_channel_mlp__prompt"
KN = NAME + "_kernel"

WS_MODG = 0
WS_M2 = 4096
WS_MB = 1 << 20
MB_W = 34816
MB_SZ = 4*MB_W
MB_P1, MB_Y, MB_P2 = 0, 16384, 18432
WS_DUMP = 64 << 20
WS_STAMP = 60 << 20
WS_BYTES = 268435456
SPIN = 1 << 15

L_K = 65536
L_V = 98304
L_E0 = 131072
L_E1 = 147456
L_B = 65536
STAGES = [0, 16384, 32768, 49152, L_E0, L_E1]

sFLAG = 3
S_X, S_K, S_V, S_WQ, S_WO, S_W1, S_W2, S_WS, S_DBG, S_OUT, S_TA, S_TB = [4 + 4*i for i in range(12)]
S_B1P, S_B2P = 52, 54
sW, sG, sRB, sRHO = 56, 57, 58, 59
sT0, sT1, sT2, sT3 = 60, 61, 62, 63
sSELLO, sSELHI = 96, 97
sSTAMP = 98
sSPIN, sBAD = 100, 101
sCP = 101
sPP = 2
(sWQOFF, sKV0, sMB, sTEAM, sW4K, sW2K, sWOB, sW1B, sW2B, sPF, sLOOP, sPST, sGAT) = range(64, 77)
sEX = 78
sC1 = 80
sKV1, sWOP, sRING, sRD, sXROW, sB1O, sM2O, sIDX = range(82, 90)
def srd(b): return f"s[{b}:{b+3}]"
def vr(b, n=1): return f"v{b}" if n == 1 else f"v[{b}:{b+n-1}]"
def ar(b, n=1): return f"a{b}" if n == 1 else f"a[{b}:{b+n-1}]"
def f32(x): return "0x%08x" % struct.unpack("<I", struct.pack("<f", x))[0]

QSCALE = math.log2(math.e) / math.sqrt(128.0)
MF = "v_mfma_f32_16x16x32_bf16"

class Cfg:
    stamps = False
    fine = False
    dbgout = None
    dump = None
    force_fallback = False
    mu = 1
cfg = Cfg()
P = Prog()
uid = [0]
def newlabel(s):
    uid[0] += 1
    return f"L_{s}_{uid[0]}"

A_STAMP = 252
stamp_names = []
def stamp(name, fine=False):
    if not cfg.stamps or (fine and not cfg.fine): return
    k = len(stamp_names); stamp_names.append(str(name))
    assert k < 64
    P.add(Ins(f"s_memrealtime s[{sSTAMP}:{sSTAMP+1}]", "op"), Ins(f"s_memtime s[0:1]", "op"), wlg0(),
          f"s_lshl_b64 exec, 1, {k}",
          f"v_accvgpr_write_b32 a{A_STAMP}, s{sSTAMP}", f"v_accvgpr_write_b32 a{A_STAMP+1}, s0", "s_mov_b64 exec, -1")

def dump_and_exit(regs):
    P.add(wall(), "s_nop 15")
    P.add(f"s_lshl_b32 s{sT0}, s2, 18", f"s_add_u32 s{sT0}, s{sT0}, {WS_DUMP}")
    P.add("v_lshlrev_b32 v7, 2, v0")
    for i, r in enumerate(regs):
        P.add(vm(f"buffer_store_dword {r}, v7, {srd(S_WS)}, s{sT0} offen", "dump"), f"s_add_u32 s{sT0}, s{sT0}, 1024")
    P.add(wall(), "s_endpgm")

def dump_lds_and_exit(base, nbytes):
    P.add(wall(), "s_barrier")
    P.add(f"s_lshl_b32 s{sT0}, s2, 18", f"s_add_u32 s{sT0}, s{sT0}, {WS_DUMP}")
    P.add("v_lshlrev_b32 v7, 4, v0", f"v_add_u32 v6, {base}, v7")
    for i in range(nbytes // 4096):
        P.add(lg(f"ds_read_b128 v[8:11], v6", "d"), wlg0(),
              vm(f"buffer_store_dwordx4 v[8:11], v7, {srd(S_WS)}, s{sT0} offen", "dump"), f"s_add_u32 s{sT0}, s{sT0}, 4096",
              "v_add_u32 v6, 4096, v6", wvm0())
    P.add(wall(), "s_endpgm")

def mk_srd(b, p, nbytes):
    return [f"s_mov_b32 s{b}, s{p}", f"s_and_b32 s{b+1}, s{p+1}, 0xffff", f"s_mov_b32 s{b+2}, {nbytes}", f"s_mov_b32 s{b+3}, 0x20000"]

def unpack(dlo, dhi, src):
    return [f"v_lshlrev_b32 v{dlo}, 16, v{src}", f"v_and_b32 v{dhi}, 0xffff0000, v{src}"]

class _NT:
    on = set("")
    def __call__(self, k): return " nt" if k in self.on else ""
NT = _NT()

R = [32, 64, 96, 128, 160, 192]
XN = 128
FST = [224, 232]
V_WQ = 24
V_KD, V_VD = 20, 22
V_HR = 4
A_QACC = 0
A_HB = 128
V_KR, V_VR = 8, 12
V_P, V_S, V_NM, V_Q, V_O = 24, 32, 48, 64, 128
V_WD = 2
V_PF = 6
A_KF, A_VF, A_L, A_ONE, A_DUM, A_SEN, A_FL = 160, 0, 224, 240, 244, 248, 254
A_M2, A_XR, A_B2, A_B1 = 64, 96, 104, 112
A_OV, A_SW, A_MSK = 120, 247, 255
A_MM = 224

def wq_load(t, s):
    b = R[t % 6]
    return [vm(f"buffer_load_dwordx4 {vr(b+4*j, 4)}, v{V_WQ+j}, {srd(S_WQ)}, s{s} offen{NT('q')}", f"wq{t}") for j in range(8)]
def adv(s): return [f"s_add_u32 s{s}, s{s}, 262144", f"s_and_b32 s{s}, s{s}, 0x3fffff"]

out_of_line = []
def prologue():
    a = P.add
    a(Ins("s_load_dwordx16 s[64:79], s[0:1], 0", "op"), Ins("s_load_dwordx8 s[80:87], s[0:1], 64", "op"),
      Ins("s_load_dwordx4 s[88:91], s[0:1], 96", "op"), Ins("s_load_dwordx2 s[92:93], s[0:1], 112", "op"))
    a("s_cmp_ge_u32 s2, 256", "s_cbranch_scc1 L_exit")
    a(f"s_getpc_b64 s[{S_TB}:{S_TB+1}]")
    a(label("L_pc"))
    a(f"s_mov_b32 s{S_TB+2}, L_codeend-L_pc", f"s_mov_b32 s{S_TB+3}, 0x20000", f"s_bfe_u32 s{sT0}, s2, 0x30003", f"s_lshl_b32 s{sT0}, s{sT0}, 13")
    a("v_lshrrev_b32 v1, 6, v0", "v_and_b32 v3, 15, v0", "v_and_b32 v2, 63, v0", "v_lshlrev_b32 v3, 7, v3", "v_lshl_or_b32 v4, v1, 11, v3")
    a(vm(f"buffer_load_dword a{A_DUM}, v4, {srd(S_TB)}, s{sT0} offen{NT('c')}", "dummy"))
    if cfg.stamps:
        a(f"v_accvgpr_write_b32 a{A_STAMP}, 0", f"v_accvgpr_write_b32 a{A_STAMP+1}, 0")
    a(f"s_and_b32 s{sT0}, s2, 3", f"v_readfirstlane_b32 s{sW}, v1")
    a(f"s_lshr_b32 s{sT1}, s2, 3", f"s_lshl_b32 s{sT0}, s{sT0}, 1", f"s_and_b32 s{sT2}, s{sT1}, 1", f"s_or_b32 s{sG}, s{sT0}, s{sT2}")
    a(f"s_lshr_b32 s{sRHO}, s{sT1}, 1", f"s_bfe_u32 s{sT2}, s2, 0x10002", f"s_lshl_b32 s{sT0}, s{sT2}, 4", f"s_or_b32 s{sRB}, s{sT0}, s{sRHO}")
    a(f"s_and_b32 s{sT0}, s2, 7", f"s_lshl_b32 s{sT2}, s{sT0}, 5", f"s_or_b32 s{sPP}, s{sT2}, s{sT1}")
    a(f"s_lshl_b32 s{sT0}, s{sT0}, 2", f"s_add_u32 s{sCP}, s{sT0}, s{sRHO}", f"s_and_b32 s{sT1}, s{sT1}, 0x19", f"s_mov_b32 s{sFLAG}, 0")
    a("v_lshrrev_b32 v4, 2, v0", "v_and_b32 v5, 3, v0", f"v_mul_u32_u24 v6, {8*6144}, v4", "v_lshlrev_b32 v5, 4, v5", f"s_lshl_b32 s{sT0}, s{sCP}, 6",
      f"v_add3_u32 v6, v6, v5, s{sT0}", "v_lshlrev_b32 v5, 4, v4", "v_lshlrev_b32 v7, 4, v2")
    a(f"s_lshl_b32 s{sT2}, s{sRB}, 2", f"s_add_u32 s{sT2}, s{sT2}, s{sW}", f"s_lshl_b32 s{sT2}, s{sT2}, 14")
    a(wlg0())
    stamp("start")
    a(mk_srd(S_TB, 84, 1024), mk_srd(S_TA, 86, 512*6144), mk_srd(S_X, 64, 2097152))
    def xloads(tagged):
        o = []
        for i in range(16):
            if i and i % 4 == 0: o.append(op(f"s_add_u32 s{sT2}, s{sT2}, 4096"))
            o.append(vm(f"buffer_load_dwordx4 {vr(XN+8*i+4, 4)}, v7, {srd(S_X)}, s{sT2} offen offset:{(i%4)*1024}{NT('x')}", f"x{i}" if tagged else "x"))
        return o
    rest = [mk_srd(S_WS, 92, WS_BYTES), mk_srd(S_DBG, 90, 256), mk_srd(S_WQ, 70, 4194304), mk_srd(S_K, 66, 4194304), mk_srd(S_V, 68, 4194304),
            mk_srd(S_WO, 72, 4194304), mk_srd(S_W1, 76, 512*3584), mk_srd(S_W2, 80, 1792*1024), mk_srd(S_OUT, 88, 2097152),
            f"s_mov_b64 s[{S_B1P}:{S_B1P+1}], s[78:79]", f"s_mov_b64 s[{S_B2P}:{S_B2P+1}], s[82:83]"]
    dpp = lambda r, rot: f"v_add_f32_dpp v{r}, v{r}, v{r} row_ror:{rot} row_mask:0xf bank_mask:0xf"
    a(f"s_cmp_lg_u32 s{sT1}, 1", "s_cbranch_scc1 L_noprod")
    def producer():
        a = P.add
        P.rare_begin()
        C0, SV, AC, T, RW = 8, 32, 40, 48, 64
        a(vm(f"buffer_load_dwordx4 {vr(C0, 4)}, v5, {srd(S_TB)}, 0 offen{NT('m')}", "x"))
        for i in range(8):
            a(f"s_mov_b32 s{sT0}, {6144*i}", vm(f"buffer_load_dwordx4 {vr(RW+4*i, 4)}, v6, {srd(S_TA)}, s{sT0} offen{NT('m')}", "x"))
        a(rest)
        a(f"s_lshl_b32 s{sT0}, s{sCP}, 7", f"s_add_u32 s{sT0}, s{S_WS}, s{sT0}", f"s_addc_u32 s{sT1}, s{S_WS+1}, 0")
        a(Ins(f"s_load_dwordx16 s[64:79], s[{sT0}:{sT1}], {WS_MODG}", "op"), Ins(f"s_load_dwordx16 s[80:95], s[{sT0}:{sT1}], {WS_MODG+64}", "op"))
        a("v_and_b32 v12, 3, v2", "v_bfe_u32 v13, v2, 4, 1", "v_lshrrev_b32 v14, 5, v2", "v_lshlrev_b32 v12, 5, v12", "v_lshlrev_b32 v13, 4, v13", "v_lshlrev_b32 v14, 3, v14")
        a(f"s_lshl_b32 s{sT3}, s{sW}, 7", "v_or_b32 v12, v12, v13", f"v_add3_u32 v12, v12, v14, s{sT3}", "v_and_b32 v13, 15, v2", "v_lshlrev_b32 v13, 3, v13")
        a(f"s_mov_b32 s{sT3}, 1", wlg0())
        for i in range(16): a(f"s_min_u32 s{sT0}, s{65+2*i}, 31", f"s_bitset1_b32 s{sT3}, s{sT0}")
        a(f"s_ff0_i32_b32 s{sFLAG}, s{sT3}")
        a(f"s_cmp_lg_u32 s{sW}, 0", "s_cbranch_scc1 L_noann")
        a(f"v_mov_b32 v14, s{sFLAG}", "s_mov_b64 exec, 1", vm(f"buffer_store_byte v14, off, {srd(S_DBG)}, s{sPP} sc1", "x"), "s_mov_b64 exec, -1")
        a(label("L_noann"))
        stamp("p_iss", True)
        a(Ins("s_waitcnt vmcnt(8)", "xw"))
        stamp("p_c", True)
        for d in range(4): a(unpack(SV+2*d, SV+2*d+1, C0+d))
        for i in range(8): a(f"v_mul_f32 v{T+i}, {f32(-math.log2(math.e))}, v{SV+i}")
        for i in range(8): a(f"v_exp_f32 v{T+i}, v{T+i}")
        for i in range(8): a(f"v_add_f32 v{T+i}, 1.0, v{T+i}")
        for i in range(8): a(f"v_rcp_f32 v{T+i}, v{T+i}")
        for i in range(8): a(f"v_mul_f32 v{SV+i}, v{SV+i}, v{T+i}")
        for d in range(4): a(f"v_cvt_pk_bf16_f32 v{C0+d}, v{SV+2*d}, v{SV+2*d+1}")
        for d in range(4): a(unpack(SV+2*d, SV+2*d+1, C0+d))
        xq = xloads(False)
        for i in range(8):
            a(Ins(f"s_waitcnt vmcnt({7-i+2*i})", "xw"))
            for _ in range(2):
                if xq[0].kind == "op": a(xq.pop(0))
                a(xq.pop(0))
            for c in range(4): a(unpack(T+2*c, T+2*c+1, RW+4*i+c))
            sel = "op_sel:[0,1] op_sel_hi:[1,1]" if i & 1 else "op_sel:[0,0] op_sel_hi:[1,0]"
            sel3 = "op_sel:[0,1,0] op_sel_hi:[1,1,1]" if i & 1 else "op_sel:[0,0,0] op_sel_hi:[1,0,1]"
            for c in range(4):
                if i == 0: a(f"v_pk_mul_f32 {vr(AC+2*c, 2)}, {vr(T+2*c, 2)}, {vr(SV+(i&~1), 2)} {sel}")
                else: a(f"v_pk_fma_f32 {vr(AC+2*c, 2)}, {vr(T+2*c, 2)}, {vr(SV+(i&~1), 2)}, {vr(AC+2*c, 2)} {sel3}")
        assert not xq
        stamp("p_rows", True)
        for rot in (4, 8):
            for k in range(8): a(dpp(AC+k, rot))
        for k in range(4): a(f"v_permlane16_swap_b32 v{AC+k}, v{AC+k+4}")
        for k in range(4): a(f"v_add_f32 v{AC+k}, v{AC+k}, v{AC+k+4}")
        a("s_nop 0")
        for k in range(2): a(f"v_permlane32_swap_b32 v{AC+k}, v{AC+k+2}")
        for k in range(2): a(f"v_add_f32 v{AC+k}, v{AC+k}, v{AC+k+2}")
        a(lg(f"ds_write_b64 v12, {vr(AC, 2)}", "ms"), wlg0(), "s_barrier")
        stamp("p_bar", True)
        a(f"s_cmp_lg_u32 s{sW}, 3", "s_cbranch_scc1 L_prodret")
        for w in range(4): a(lg(f"ds_read_b64 {vr(T+2*w, 2)}, v13 offset:{128*w}", "mr"))
        a(f"v_mov_b32 v{AC+1}, s{sFLAG}", f"s_lshl_b32 s{sT0}, s{sCP}, 7", wlg0())
        a(f"v_pk_add_f32 {vr(T, 2)}, {vr(T, 2)}, {vr(T+2, 2)}", f"v_pk_add_f32 {vr(T+4, 2)}, {vr(T+4, 2)}, {vr(T+6, 2)}",
          f"v_pk_add_f32 {vr(T, 2)}, {vr(T, 2)}, {vr(T+4, 2)}", f"v_cvt_pk_bf16_f32 v{AC}, v{T}, v{T+1}")
        a("s_mov_b64 exec, 0xffff", vm(f"buffer_store_dwordx2 {vr(AC, 2)}, v13, {srd(S_WS)}, s{sT0} offen sc1", "x"), "s_mov_b64 exec, -1", "s_branch L_prodret")
        P.rare_end()
    producer()
    a(label("L_noprod"))
    a(xloads(True), rest)
    a(label("L_prodret"))
    stamp("pub")
    a("v_lshrrev_b32 v4, 4, v2", "v_and_b32 v5, 15, v2", "v_lshlrev_b32 v4, 16, v4", "v_lshlrev_b32 v5, 4, v5")
    a(f"s_lshl_b32 s{sT0}, s{sG}, 10", f"s_lshl_b32 s{sT1}, s{sW}, 8", f"s_add_u32 s{sT0}, s{sT0}, s{sT1}")
    a(f"v_add3_u32 v{V_WQ}, v4, v5, s{sT0}")
    for j in range(1, 8): a(f"v_add_u32 v{V_WQ+j}, {8192*j}, v{V_WQ}")
    a(f"s_mov_b32 s{sSELLO}, 0x05040100", f"s_mov_b32 s{sSELHI}, 0x07060302", f"s_lshl_b32 s{sT3}, s{sRHO}, 18")
    a(addr_early())
    a(f"s_lshl_b32 s{sT0}, s{sRHO}, 2", f"s_add_u32 s{sT0}, s{sT0}, s{sW}", f"s_lshl_b32 s{sT0}, s{sT0}, 11", f"s_lshl_b32 s{sT1}, s{sG}, 19",
      f"s_add_u32 s{sT0}, s{sT0}, s{sT1}", f"s_add_u32 s{sT2}, s{sT0}, {1536*256}")
    a("v_bfe_u32 v8, v2, 2, 2", "v_and_b32 v9, 3, v2", "v_mul_u32_u24 v8, 6144, v8", "v_lshl_add_u32 v8, v9, 7, v8", "v_lshlrev_b32 v9, 2, v0",
      f"s_and_b32 s{sT0}, s{sPP}, 31", f"s_lshl_b32 s{sT0}, s{sT0}, 2", f"s_add_u32 s{sT0}, s{sT0}, s{sW}", f"s_mul_i32 s{sT0}, s{sT0}, {4*6144}",
      f"s_lshr_b32 s{sT1}, s{sPP}, 5", f"s_lshl_b32 s{sT1}, s{sT1}, 9", f"s_add_u32 s{sT0}, s{sT0}, s{sT1}", f"s_add_u32 s{sT0}, s{sT0}, 2048")
    pq = [[] for _ in range(4)] + [[vm(f"buffer_load_dword a{A_DUM+1}, v8, {srd(S_TA)}, s{sT0} offen{NT('m')}", "dummy")],
                                   [vm(f"buffer_load_dword a{A_MM+8}, v9, {srd(S_TB)}, 0 offen{NT('m')}", "c")],
                                   [vm(f"buffer_load_dword a{A_DUM+2}, v3, {srd(S_K)}, s{sT2} offen{NT('w')}", "dummy")],
                                   [vm(f"buffer_load_dword a{A_DUM+2}, v3, {srd(S_V)}, s{sT2} offen{NT('w')}", "dummy")]] + [[x] for x in wq_load(0, sT3)]
    ST = R[2]
    TT = 4
    for i in range(16):
        b = XN + 8*i
        a(wvm(f"x{i}"))
        if i in (0, 15): stamp(f"x{i}", True)
        a(pq.pop(0))
        for d in range(4): a(unpack(b+2*d, b+2*d+1, b+4+d))
        t = TT + 8*(i & 1)
        a(f"v_pk_add_f32 {vr(t, 2)}, {vr(b, 2)}, {vr(b+2, 2)}", f"v_pk_mul_f32 {vr(t+2, 2)}, {vr(b, 2)}, {vr(b, 2)}",
          f"v_pk_add_f32 {vr(t, 2)}, {vr(t, 2)}, {vr(b+4, 2)}", f"v_pk_fma_f32 {vr(t+2, 2)}, {vr(b+2, 2)}, {vr(b+2, 2)}, {vr(t+2, 2)}",
          f"v_pk_add_f32 {vr(t, 2)}, {vr(t, 2)}, {vr(b+6, 2)}", f"v_pk_fma_f32 {vr(t+2, 2)}, {vr(b+4, 2)}, {vr(b+4, 2)}, {vr(t+2, 2)}",
          f"v_add_f32 v{ST+i}, v{t}, v{t+1}", f"v_pk_fma_f32 {vr(t+2, 2)}, {vr(b+6, 2)}, {vr(b+6, 2)}, {vr(t+2, 2)}",
          f"v_add_f32 v{ST+16+i}, v{t+2}, v{t+3}")
    stamp("x_in")
    for h in (0, 16):
        for i in range(8): a(f"v_permlane32_swap_b32 v{ST+h+i}, v{ST+h+i+8}")
    for h in (0, 16):
        for i in range(8): a(f"v_add_f32 v{ST+h+i}, v{ST+h+i}, v{ST+h+i+8}")
    for h in (0, 16):
        for i in range(4): a(f"v_permlane16_swap_b32 v{ST+h+i}, v{ST+h+i+4}")
    for h in (0, 16):
        for i in range(4): a(f"v_add_f32 v{ST+h+i}, v{ST+h+i}, v{ST+h+i+4}")
    for rot in (8, 4, 2, 1):
        for h in (0, 16):
            for i in range(4): a(dpp(ST+h+i, rot))
    for i in range(4): a(f"v_mul_f32 v{ST+i}, {f32(1/512)}, v{ST+i}")
    for i in range(4): a(f"v_mul_f32 v{ST+4+i}, v{ST+i}, v{ST+i}")
    a(f"s_mov_b32 s{sT0}, {f32(1/512)}")
    for i in range(4): a(f"v_fma_f32 v{ST+4+i}, v{ST+16+i}, s{sT0}, -v{ST+4+i}")
    for i in range(4): a(f"v_max_f32 v{ST+4+i}, 0, v{ST+4+i}")
    for i in range(4): a(f"v_add_f32 v{ST+4+i}, {f32(1e-5)}, v{ST+4+i}")
    for i in range(4): a(f"v_rsq_f32 v{ST+4+i}, v{ST+4+i}")
    for i in range(4): a(f"v_mul_f32 v{ST+i}, -v{ST+i}, v{ST+4+i}")
    for G in range(4):
        for i in range(4):
            row = i + 4*G
            a(f"v_readlane_b32 s{64+2*row}, v{ST+4+i}, {16*G}", f"v_readlane_b32 s{65+2*row}, v{ST+i}, {16*G}")
    def poll(tag): return [vm(f"buffer_load_dwordx4 v[4:7], v1, {srd(S_WS)}, 0 offen sc1", tag), vm(f"buffer_load_ubyte v8, v3, {srd(S_DBG)}, 0 offen sc1", tag)]
    a("v_lshlrev_b32 v1, 4, v0", f"s_mov_b32 s{sSPIN}, {SPIN}", "v_and_b32 v3, 0xe0, v0", "v_bfe_u32 v4, v0, 3, 2", "v_lshl_or_b32 v3, v4, 1, v3", "v_or_b32 v3, 1, v3")
    for i in range(16):
        if i == 8: a(poll("pl"))
        for d in range(4):
            b = XN + 8*i + 2*d
            a(f"v_pk_fma_f32 {vr(b, 2)}, {vr(b, 2)}, s[{64+2*i}:{65+2*i}], s[{64+2*i}:{65+2*i}] op_sel:[0,0,1] op_sel_hi:[1,0,1]")
    a("v_lshrrev_b32 v23, 2, v2", f"v_subrev_u32 v23, s{sRHO}, v23", "v_and_b32 v23, 15, v23", "v_and_b32 v22, 1, v23", "v_lshlrev_b32 v23, 12, v23",
      "v_lshl_or_b32 v23, v22, 6, v23", "v_and_b32 v22, 3, v2", "v_lshl_or_b32 v23, v22, 8, v23", "v_lshl_or_b32 v23, v22, 4, v23",
      f"s_lshl_b32 s{sT0}, s{sW}, 10", f"v_or_b32 v23, s{sT0}, v23")
    a(f"v_add_u32 v21, {L_E1}, v1", "v_lshlrev_b32 v20, 5, v2", f"v_add_u32 v20, {L_E1}, v20")
    a(adv(sT3), wq_load(1, sT3))
    a(f"s_cmp_ge_u32 s{sW}, 2", f"s_cselect_b32 s{sT2}, 1.0, 0", f"s_mov_b32 s{sWQOFF}, s{sT3}")
    stamp("ln1")
    chk = ["v_and_b32 v8, 31, v8", "v_cmp_ne_u32 vcc, v5, v8", f"v_cmp_ne_u32 s[{sT0}:{sT1}], v7, v8", f"v_cmp_eq_u32 s[{sEX}:{sEX+1}], 0, v8", "s_nop 1",
           f"s_or_b64 vcc, vcc, s[{sT0}:{sT1}]", f"s_or_b64 vcc, vcc, s[{sEX}:{sEX+1}]", "s_cbranch_vccz L_polld"]
    a(wvm("pl"), chk)
    P.rare_begin()
    a(label("L_poll"), poll("x"), wvm0(), chk, f"s_sub_u32 s{sSPIN}, s{sSPIN}, 1", f"s_cmp_lg_u32 s{sSPIN}, 0", "s_cbranch_scc1 L_poll")
    P.rare_end()
    a(label("L_polld"))
    stamp("mod_in")
    a(unpack(8, 9, 4), unpack(10, 11, 6))
    for i in range(4): a(f"v_add_f32 v{8+i}, s{sT2}, v{8+i}")
    a("v_cvt_pk_bf16_f32 v4, v8, v9", "v_cvt_pk_bf16_f32 v6, v10, v11", unpack(8, 9, 4), unpack(10, 11, 6))
    for i in range(4): a(f"v_mul_f32 v{8+i}, {f32(QSCALE)}, v{8+i}")
    a(lg("ds_write_b128 v21, v[8:11]", "gs"), wlg0(), "s_barrier")
    SA, GG = 4, 12
    a(lg(f"ds_read_b128 {vr(SA, 4)}, v20", "g"), lg(f"ds_read_b128 {vr(GG, 4)}, v20 offset:2048", "g"),
      lg(f"ds_read_b128 {vr(SA+4, 4)}, v20 offset:16", "g"), lg(f"ds_read_b128 {vr(GG+4, 4)}, v20 offset:2064", "g"), wlg0())
    a(adv(sWQOFF))
    vq = wq_load(2, sWQOFF) + wq_load(3, sWQOFF)
    for row in range(16):
        b = XN + 8*row
        if row & 7: a(f"v_xor_b32 v{20+(row&1)}, {16*(row&7)}, v23")
        for d in range(4): a(f"v_pk_fma_f32 {vr(b+2*d, 2)}, {vr(b+2*d, 2)}, {vr(GG+2*d, 2)}, {vr(SA+2*d, 2)}")
        if row == 8: a(wlg("hw3"), adv(sWQOFF))
        a(vq.pop(0))
        for d in range(4): a(f"v_cvt_pk_bf16_f32 v{b+d}, v{b+2*d}, v{b+2*d+1}")
        a(lg(f"ds_write_b128 v{20+(row&1) if row & 7 else 23}, {vr(b, 4)} offset:{128*(row>>3)}", f"hw{row}"))
    a("v_lshrrev_b32 v6, 4, v2", "v_xor_b32 v4, v2, v6", "v_lshlrev_b32 v4, 4, v4", "v_xor_b32 v5, 64, v4")
    a(f"s_lshl_b32 s{sW2K}, s{sW}, 11", f"s_lshl_b32 s{sW4K}, s{sW}, 12")
    a(wlg0(), wvm("wq0"), perms(0, 0), "s_barrier")
    stamp("h_done")

def m2_loads():
    return [f"v_mul_u32_u24 v8, {2*6144}, v0", f"s_lshl_b32 s{sT0}, s{sPP}, 4", f"s_add_u32 s{sT0}, s{sT0}, 2048", f"s_add_u32 s{sT1}, s{sT0}, 6144",
            vm(f"buffer_load_dwordx4 {ar(A_MM, 4)}, v8, {srd(S_TA)}, s{sT0} offen{NT('m')}", "mm"), vm(f"buffer_load_dwordx4 {ar(A_MM+4, 4)}, v8, {srd(S_TA)}, s{sT1} offen{NT('m')}", "mm")]
def m2_calc():
    RW, SV, T, AC = 240, 248, 8, [16, 17, 18, 19, 252, 253, 254, 255]
    dpp = lambda r, rot: f"v_add_f32_dpp v{r}, v{r}, v{r} row_ror:{rot} row_mask:0xf bank_mask:0xf"
    L2E = f32(-math.log2(math.e))
    o = [f"v_accvgpr_read_b32 v{T}, a{A_MM+8}"] + unpack(SV, SV+1, T) + [f"v_mul_f32 v{T}, {L2E}, v{SV}", f"v_mul_f32 v{T+1}, {L2E}, v{SV+1}", f"v_exp_f32 v{T}, v{T}", f"v_exp_f32 v{T+1}, v{T+1}",
         "GAP", f"v_add_f32 v{T}, 1.0, v{T}", f"v_add_f32 v{T+1}, 1.0, v{T+1}", f"v_rcp_f32 v{T}, v{T}", f"v_rcp_f32 v{T+1}, v{T+1}", "GAP",
         f"v_mul_f32 v{SV}, v{SV}, v{T}", f"v_mul_f32 v{SV+1}, v{SV+1}, v{T+1}", f"v_cvt_pk_bf16_f32 v{T}, v{SV}, v{SV+1}"] + unpack(SV, SV+1, T)
    o += [wvm("mm")] + [f"v_accvgpr_read_b32 v{RW+i}, a{A_MM+i}" for i in range(8)]
    for r in range(2):
        for d in range(4): o += unpack(T+2*d, T+2*d+1, RW+4*r+d)
        for k in range(8):
            o.append(f"v_mul_f32 v{AC[k]}, v{T+k}, v{SV}" if r == 0 else f"v_fmac_f32 v{AC[k]}, v{T+k}, v{SV+1}")
    o += ["v_lshrrev_b32 v6, 4, v2", f"s_lshl_b32 s{sT0}, s{sW}, 5", f"s_add_u32 s{sT0}, s{sT0}, {L_E0}", f"v_lshl_add_u32 v6, v6, 3, s{sT0}"]
    o += [f"v_permlane32_swap_b32 v{AC[k]}, v{AC[k+4]}" for k in range(4)] + [f"v_add_f32 v{AC[k]}, v{AC[k]}, v{AC[k+4]}" for k in range(4)]
    o += ["v_and_b32 v7, 1, v2"]
    o += [f"v_permlane16_swap_b32 v{AC[k]}, v{AC[k+2]}" for k in range(2)] + [f"v_add_f32 v{AC[k]}, v{AC[k]}, v{AC[k+2]}" for k in range(2)]
    for rot in (8, 4, 2, 1): o += ["GAP", dpp(AC[0], rot), dpp(AC[1], rot)]
    o += ["GAP", lg(f"ds_write_b64 v6, {vr(AC[0], 2)}", "ms"), f"v_lshlrev_b32 v1, 4, v7", f"v_add_u32 v1, {L_E0}, v1", "v_lshlrev_b32 v7, 6, v7"]
    return o
def m2_publish():
    T = 240
    o = [lg(f"ds_read_b128 {vr(T+4*w, 4)}, v1 offset:{32*w}", "mr") for w in range(4)]
    o += [f"s_bfe_u32 s{sT0}, s{sPP}, 0x40002", f"s_lshl_b32 s{sT0}, s{sT0}, 8", f"s_lshr_b32 s{sT1}, s{sPP}, 6", f"s_lshl_b32 s{sT1}, s{sT1}, 4", f"s_add_u32 s{sT0}, s{sT0}, s{sT1}",
          f"s_and_b32 s{sT1}, s{sPP}, 1", f"s_lshl_b32 s{sT1}, s{sT1}, 7", f"s_add_u32 s{sT0}, s{sT0}, s{sT1}",
          f"s_bfe_u32 s{sT1}, s{sPP}, 0x10001", f"s_lshl_b32 s{sT1}, s{sT1}, 3", f"s_add_u32 s{sT0}, s{sT0}, s{sT1}", f"s_add_u32 s{sT0}, s{sT0}, {WS_M2}", wlg("mr")]
    for h in range(4): o += [f"v_add_f32 v{T+h}, v{T+h}, v{T+4+h}", f"v_add_f32 v{T+8+h}, v{T+8+h}, v{T+12+h}"]
    for h in range(4): o.append(f"v_add_f32 v{T+h}, v{T+h}, v{T+8+h}")
    o += [f"v_cvt_pk_bf16_f32 v{T}, v{T}, v{T+1}", f"v_cvt_pk_bf16_f32 v{T+1}, v{T+2}, v{T+3}",
          vm(f"buffer_store_dwordx2 {vr(T, 2)}, v7, {srd(S_WS)}, s{sT0} offen sc1", "m2s")]
    return o

def perms(t, c):
    b = R[t % 6]; F = FST[c & 1]
    o = []
    for par, sel in ((0, sSELLO), (1, sSELHI)):
        for m in range(4):
            o.append(f"v_perm_b32 v{F+4*par+m}, v{b+4*(2*m+1)+c}, v{b+4*(2*m)+c}, s{sel}")
    return o
def hreads(t):
    return [lg(f"ds_read_b128 {ar(A_HB+16*(t&1)+4*qt, 4)}, v{V_HR+(t&1)} offset:{t*4096+qt*1024}", f"h{t}") for qt in range(4)]
def kv_items(u, soff):
    s = u & 3
    tg = f"kv{u//2 & 1}"
    return [f"s_add_u32 m0, s{sW2K}, {L_K+8192*s}",
            vm(f"buffer_load_dwordx4 v{V_KD}, {srd(S_K)}, s{soff} offen{NT('k')} lds", tg),
            vm(f"buffer_load_dwordx4 v{V_KD+1}, {srd(S_K)}, s{soff} offen offset:1024{NT('k')} lds", tg),
            f"s_add_u32 m0, s{sW2K}, {L_V+8192*s}",
            vm(f"buffer_load_dwordx4 v{V_VD}, {srd(S_V)}, s{soff} offen{NT('k')} lds", tg),
            vm(f"buffer_load_dwordx4 v{V_VD+1}, {srd(S_V)}, s{soff} offen offset:1024{NT('k')} lds", tg)]
def kv_adv(): return [f"s_add_u32 s{sKV0}, s{sKV0}, 16384", f"s_add_u32 s{sKV1}, s{sKV1}, 16384"]

def fkey(dst, k, t1, t2):
    return [f"v_lshrrev_b32 v{t1}, 1, v{k}", f"v_xor_b32 v{t2}, v{t1}, v{k}", f"v_and_b32 v{t1}, 4, v{t1}", f"v_and_b32 v{t2}, 4, v{t2}",
            f"v_and_b32 v{dst}, 3, v{k}", f"v_lshl_or_b32 v{dst}, v{t2}, 1, v{dst}", f"v_or_b32 v{dst}, v{dst}, v{t1}"]

A_PK = 160
def addr_early():
    t0, t1, t2, t3, t4, d = 32, 33, 34, 35, 36, 37
    pk = lambda i: f"v_accvgpr_write_b32 a{A_PK+i}, v{d}"
    o = [f"v_lshrrev_b32 v{t0}, 4, v2", f"v_and_b32 v{t4}, 15, v2", f"s_lshl_b32 s{sT0}, s{sW}, 3", f"v_add_u32 v{t0}, s{sT0}, v{t0}"]
    for i in range(2):
        o += [f"v_add_u32 v{t3}, {4*i}, v{t0}", f"v_and_b32 v{t3}, 15, v{t3}"]
        o += fkey(d, t3, t1, t2)
        o += [f"v_xor_b32 v{d}, v{d}, v{t4}", f"v_lshlrev_b32 v{d}, 4, v{d}", f"v_lshl_or_b32 v{d}, v{t0}, 8, v{d}", pk(i)]
        o += [f"v_and_b32 v{t3}, 7, v{t3}", f"v_lshlrev_b32 v{t3}, 1, v{t3}", f"v_xor_b32 v{d}, v{t3}, v{t4}",
              f"v_lshlrev_b32 v{d}, 4, v{d}", f"v_lshl_or_b32 v{d}, v{t0}, 8, v{d}", pk(2+i)]
    o += fkey(t3, t4, t1, t2)
    o += [f"v_lshrrev_b32 v{t0}, 4, v2", f"v_lshlrev_b32 v{t1}, 2, v{t0}", f"v_xor_b32 v{t3}, v{t3}, v{t1}", f"v_lshlrev_b32 v{t3}, 4, v{t3}",
          f"v_lshl_or_b32 v{t3}, v{t4}, 8, v{t3}", f"v_add_u32 v{d}, {L_K}, v{t3}", pk(4)]
    o += [f"v_lshrrev_b32 v{t0}, 2, v2", f"v_and_b32 v{t1}, 7, v{t0}", f"v_and_b32 v{t2}, 3, v2", f"v_lshlrev_b32 v{t2}, 3, v{t2}",
          f"v_lshl_or_b32 v{t2}, v{t1}, 5, v{t2}", f"v_lshl_or_b32 v{t2}, v{t0}, 8, v{t2}", f"v_add_u32 v{d}, {L_V}, v{t2}", pk(5)]
    o += [f"v_mov_b32 v{t0}, 0x3f803f80"] + [f"v_accvgpr_write_b32 a{A_ONE+i}, v{t0}" for i in range(4)]
    o += [f"v_accvgpr_write_b32 a{A_SEN+i}, -1" for i in range(4)]
    o += [f"v_lshrrev_b32 v{t1}, 5, v2", f"v_and_b32 v{t2}, 7, v2", f"v_lshl_or_b32 v{t1}, v{t1}, 3, v{t2}",
          f"s_lshr_b32 s{sT0}, s{sRB}, 1", f"v_cmp_eq_u32 vcc, s{sT0}, v{t1}", f"s_and_b32 s{sT0}, s{sRB}, 1", f"s_lshl_b32 s{sT0}, s{sT0}, 4", f"s_lshl_b32 s{sT0}, 0x8080, s{sT0}",
          f"v_mov_b32 v{t2}, s{sT0}", f"v_cndmask_b32 v{t2}, 0, v{t2}, vcc", f"v_or_b32 v{t2}, 0x40404040, v{t2}", f"v_accvgpr_write_b32 a{A_MSK}, v{t2}"]
    o += [f"v_lshrrev_b32 v{t0}, 3, v2", f"v_lshrrev_b32 v{t1}, 4, v2", f"v_and_b32 v{t2}, 7, v2", f"v_lshlrev_b32 v{t1}, 1, v{t1}", f"v_xor_b32 v{t2}, v{t2}, v{t1}",
          f"v_lshlrev_b32 v{t2}, 4, v{t2}", f"v_accvgpr_write_b32 a{A_SW}, v{t2}", f"s_lshl_b32 s{sT0}, s{sW}, 8", f"v_lshl_or_b32 v{d}, v{t0}, 10, v{t2}", f"v_add_u32 v{d}, s{sT0}, v{d}", pk(6)]
    return o
def addr_setup():
    o = [f"v_accvgpr_read_b32 v{V_KD+i}, a{A_PK+i}" for i in range(4)] + ["MARK"]
    o += [f"v_accvgpr_read_b32 v{V_KR}, a{A_PK+4}", f"v_accvgpr_read_b32 v{V_VR}, a{A_PK+5}", f"v_accvgpr_read_b32 v246, a{A_PK+6}"]
    for s in range(1, 4): o += [f"v_xor_b32 v{V_KR+s}, {16*s}, v{V_KR}"]
    for dt in range(1, 8): o += [f"v_xor_b32 v{V_VR+dt}, {32*dt}, v{V_VR}"]
    o += [f"v_lshlrev_b32 v{V_PF}, 4, v2", f"s_lshl_b32 s{sT0}, s{sW}, 14", f"s_add_u32 s{sT0}, s{sT0}, {L_B}", f"v_add_u32 v1, s{sT0}, v{V_PF}"]
    return o

def scalar_setup():
    o = [f"s_lshl_b32 s{sKV0}, s{sG}, 19", f"s_add_u32 s{sKV0}, s{sKV0}, {1536*256}", f"s_add_u32 s{sKV1}, s{sKV0}, 8192"]
    o += [f"s_lshl_b32 s{sWOB}, s{sG}, 19", f"s_mul_i32 s{sW1B}, s{sG}, 448", f"s_mul_i32 s{sW2B}, s{sG}, {224*1024}"]
    o += [f"s_mul_i32 s{sTEAM}, s{sRB}, {8*MB_SZ}", f"s_add_u32 s{sTEAM}, s{sTEAM}, {WS_MB}",
          f"s_mul_i32 s{sEX}, s{sG}, {MB_SZ}", f"s_add_u32 s{sMB}, s{sTEAM}, s{sEX}",
          f"s_mul_i32 s{sEX}, s{sW}, {MB_W}", f"s_add_u32 s{sMB}, s{sMB}, s{sEX}", f"s_mov_b32 s{sPF}, s{sMB}", f"s_mov_b32 s{sBAD}, 0",
          f"s_mov_b32 s{sWOP}, s{sWOB}", f"s_mov_b32 s{sRING}, s{sW4K}", f"s_mov_b32 s{sRD}, 32768", f"s_or_b32 s{sFLAG}, s{sFLAG}, 0x40"]
    o += mk_srd(S_TA, S_B2P, 1024) + mk_srd(S_TB, S_B1P, 3584)
    o += [f"s_lshl_b32 s{sEX}, s{sRB}, 2", f"s_add_u32 s{sEX}, s{sEX}, s{sW}", f"s_lshl_b32 s{sEX}, s{sEX}, 3", f"s_add_u32 s{sEX}, s{sEX}, s{sG}",
          f"s_lshl_b32 s{sXROW}, s{sEX}, 11", f"s_lshl_b32 s{sB1O}, s{sW}, 7", f"s_add_u32 s{sB1O}, s{sB1O}, s{sW1B}", f"s_mov_b32 s{sM2O}, {WS_M2}"]
    return o

def warmups():
    t = 250
    o = [f"v_lshlrev_b32 v{t}, 6, v2", f"s_lshl_b32 s{sT2}, s{sRHO}, 2", f"s_add_u32 s{sT2}, s{sT2}, s{sW}",
         f"s_lshl_b32 s{sT1}, s{sT2}, 13", f"s_add_u32 s{sT1}, s{sT1}, s{sWOB}",
         vm(f"buffer_load_dword a{A_DUM}, v{t}, {srd(S_WO)}, s{sT1} offen{NT('W')}", "dummy"), f"s_add_u32 s{sT1}, s{sT1}, 4096",
         vm(f"buffer_load_dword a{A_DUM+1}, v{t}, {srd(S_WO)}, s{sT1} offen{NT('W')}", "dummy")]
    o += [f"s_mul_i32 s{sT1}, s{sT2}, 3584", f"s_add_u32 s{sT1}, s{sT1}, s{sW2B}", vm(f"buffer_load_dword a{A_DUM+2}, v{t}, {srd(S_W2)}, s{sT1} offen{NT('W')}", "dummy")]
    o += [f"v_lshrrev_b32 v{t+1}, 3, v2", f"v_and_b32 v{t+2}, 7, v2", f"v_mul_u32_u24 v{t+1}, 3584, v{t+1}", f"v_lshl_add_u32 v{t+1}, v{t+2}, 6, v{t+1}",
          f"s_mul_i32 s{sT1}, s{sT2}, {8*3584}", f"s_add_u32 s{sT1}, s{sT1}, s{sW1B}", vm(f"buffer_load_dword a{A_DUM+2}, v{t+1}, {srd(S_W1)}, s{sT1} offen{NT('W')}", "dummy")]
    return o

def qproj():
    a = P.add
    a(hreads(0))
    ad_ = addr_setup(); k = ad_.index("MARK")
    first = m2_loads() + ad_[:k] + m2_calc()
    extra = m2_publish() + ad_[k+1:]
    scal = scalar_setup()
    late = kv_items(0, sKV0) + kv_items(1, sKV1) + kv_adv() + kv_items(2, sKV0) + kv_items(3, sKV1) + kv_adv() + warmups()
    a(wlg("h0"))
    for t in range(16):
        mf, gaps = [], [[] for _ in range(32)]
        for c in range(4):
            F = FST[c & 1]
            for par in range(2):
                for qt in range(4):
                    d = ar(A_QACC + ((2*c+par)*4+qt)*4, 4)
                    mf.append(f"{MF} {d}, {vr(F+4*par, 4)}, {ar(A_HB+16*(t&1)+4*qt, 4)}, {d if t else 0}")
        if t + 4 < 16:
            ad = adv(sWQOFF); gaps[0].append(ad[0]); gaps[1].append(ad[1])
            for j, x in enumerate(wq_load(t+4, sWQOFF)): gaps[4*j+2].append(x)
        for c in range(4):
            g0 = 8*c
            pm = perms(t, c+1) if c < 3 else perms(t+1, 0) if t < 15 else []
            for k in (0, 1, 3, 4): gaps[g0+k] += pm[:2]; pm = pm[2:]
        if t < 15:
            hr = hreads(t+1)
            gaps[5] += hr[:2]; gaps[7] += hr[2:]
            gaps[23].append(wvm(f"wq{t+1}")); gaps[31].append(wlg(f"h{t+1}"))
        free = list(range(8, 32))
        for k in range(2, 31):
            if t >= 2 and scal and not any(isscalar(x) or isvm(x) for x in gaps[k]) and k % 8 in (0, 1, 3, 4): gaps[k].insert(0, scal.pop(0))
        if first:
            fill(gaps, free, first)
            if not first: gaps[31] = [wlg0(), op("s_barrier")]
            assert t < 12
        else:
            if t >= 12: fill(gaps, list(range(32)), late)
            fill(gaps, free if t < 15 else list(range(32)), extra)
        if t in (4, 8, 12): stamp(f"q{t}", True)
        a(template(mf, gaps))
    assert not late and not extra, (late, extra)
    a(wvm("kv0", "kv1"), "s_barrier")
    stamp("qproj")

def KF(u, kt, s): return A_KF + 32*(u & 1) + 16*kt + 4*s
def VF(u, dt): return A_VF + 32*(u & 1) + 4*dt
def OA(dt, qt): return V_O + (dt*4 + qt)*4
def QF(s, qt): return V_Q + (s*4 + qt)*4
def kreads(u):
    return [lg(f"ds_read_b128 {ar(KF(u, kt, s), 4)}, v{V_KR+s} offset:{(u&3)*8192+kt*4096}", f"k{u&1}") for s in range(4) for kt in range(2)]
def vreads(u):
    return [lg(f"ds_read_b64_tr_b16 {ar(VF(u, dt)+2*hh, 2)}, v{V_VR+dt} offset:{(u&3)*8192+hh*4096}", f"v{u&1}") for dt in range(8) for hh in range(2)]
def qk(n):
    u, qt = divmod(n, 4)
    o = []
    for s in range(4):
        for kt in range(2):
            d = vr(V_S + 8*(n & 1) + 4*kt, 4)
            o.append(f"{MF} {d}, {ar(KF(u, kt, s), 4)}, {vr(QF(s, qt), 4)}, {d if s else vr(V_NM+4*qt, 4)}")
    return o
def pv(n):
    u, qt = divmod(n, 4)
    p = vr(V_P + 4*(n & 1), 4)
    o = []
    for dt in range(8):
        d = vr(OA(dt, qt), 4)
        o.append(f"{MF} {d}, {ar(VF(u, dt), 4)}, {p}, {d if u else 0}")
    d = ar(A_L + 4*qt, 4)
    o.append(f"{MF} {d}, {ar(A_ONE, 4)}, {p}, {d if u else 0}")
    return o
def sreg(n, i):
    if n < 4: return OA(2*n + (i >> 2), 3) + (i & 3)
    return V_S + 8*(n & 1) + i
def expo(n):
    e = [f"v_exp_f32 v{sreg(n, i)}, v{sreg(n, i)}" for i in range(8)]
    c = [f"v_cvt_pk_bf16_f32 v{V_P+4*(n&1)+i}, v{sreg(n, 2*i)}, v{sreg(n, 2*i+1)}" for i in range(4)]
    pre = [f"v_add_f32 v{sreg(n, i)}, v{sreg(n, i)}, v{V_NM+4*n}" for i in range(8)] if n < 4 else []
    return pre, e, c
def frag_reads(n):
    u, ph = n // 4 + 1, n % 4
    if u > 15: return []
    kr, vrd = kreads(u), vreads(u)
    if n < 4: kr = []
    if ph < 2: return kr[4*ph:4*ph+4] + vrd[2*ph:2*ph+2]
    return vrd[4+6*(ph-2):10+6*(ph-2)]

MU_TEMPLATES = [
    dict(e=[0,2,4,6,8,10,12,14], c=[9,9,16,16], d=[1,1,3,3,5,5], w=15),
    dict(e=[0,2,4,6,8,10,12,14], c=[7,7,15,15], d=[1,1,3,3,5,5], w=13),
    dict(e=[0,2,4,6,8,10,12,14], c=[9,9,16,16], d=[1,1,5,5,11,11], w=15),
    dict(e=[0,2,4,6,9,11,13,15], c=[8,8,16,16], d=[1,1,3,3,5,5], w=14),
    dict(e=[0,1,3,4,7,8,10,11], c=[6,6,13,13], d=[2,2,5,5,9,9], w=15),
    dict(e=[0,2,4,6,8,10,12,14], c=[11,11,16,16], d=[1,1,3,3,7,7], w=15),
]
carry = []
def muslot(n, q=None, tail=()):
    has_qk = 4 <= n + 2 <= 63
    mf = (qk(n+2) if has_qk else []) + pv(n)
    pre, e, c = expo(n+1) if n + 1 <= 63 else ([], [], [])
    ds = frag_reads(n)
    endw = []
    if n % 4 == 1 and n + 3 <= 63: endw.append(wlg(f"k{((n+3)//4) & 1}"))
    if n % 4 == 3 and n < 63: endw.append(wlg(f"v{((n+1)//4) & 1}"))
    if has_qk and not pre and e:
        gaps = [[] for _ in range(17)]
        T = MU_TEMPLATES[cfg.mu]
        for i in range(8): gaps[T["e"][i]].append(e[i])
        for k, x in carry: gaps[k].append(x)
        del carry[:]
        for i in range(4):
            if T["c"][i] >= 0: gaps[T["c"][i]].append(c[i])
            elif n % 16 == 3 or n >= 61: gaps[16].append(c[i])
            else: carry.append((-T["c"][i], c[i]))
        for k in sorted(T["d"]):
            if ds: gaps[k].append(ds.pop(0))
        assert not ds
        if not tail: gaps[14] = endw + gaps[14]
        if q is not None: fill(gaps, [k for k in range(17) if not (tail and k == 16)], q)
        if tail: gaps[16] += list(tail)
        return template(mf, gaps)
    ev = list(pre)
    for i in range(len(e)):
        ev.append(e[i])
        if i >= 2 and i % 2 == 0: ev.append(c[i//2 - 1])
    if c: ev += ["s_nop 0", c[3]]
    oth = ds + (q or [])
    if q is not None: del q[:]
    out = [] if has_qk else [op("s_nop 1")]
    ev = [op(x) if isinstance(x, str) else x for x in ev]
    oth = [op(x) if isinstance(x, str) else x for x in oth]
    for k, m in enumerate(mf):
        out.append(op(m))
        left = len(mf) - k
        cap = max(2, -(-(sum(x.cost for x in ev) + sum(x.cost for x in oth)) // left))
        used = 0
        while used < cap and (ev or oth):
            src = None
            for L in ((ev, oth) if k % 2 == 0 else (oth, ev)):
                if L and used + L[0].cost <= cap:
                    if L is ev and L[0].text.startswith("v_cvt") and out[-1].text.startswith("v_exp"): continue
                    src = L; break
            if src is None: break
            x = src.pop(0); out.append(x); used += x.cost
    return out + ev + oth + endw + [op(x) if isinstance(x, str) else x for x in tail]

def stage_dma(sig):
    st = STAGES[sig % 6]
    if sig < 32:
        p, t = divmod(sig, 16); S, vb, base, off = S_WO, V_WD, sWOB, t*32768 + 128*p
    elif sig < 48:
        pos = sig - 32; tb = 4*((pos >> 1) & 3) + 2*(pos >> 3) + (pos & 1)
        S, vb, base, off = S_W1, V_W1D, sW1B, tb*32*3584
    else:
        p, t = divmod(sig - 48, 7); S, vb, base, off = S_W2, V_WD, sW2B, t*32768 + 128*p
    return [f"s_add_u32 s{sT3}, s{base}, {off}", f"s_add_u32 m0, s{sW4K}, {st}"] + \
           [vm(f"buffer_load_dwordx4 v{vb+i}, {srd(S)}, s{sT3} offen offset:{1024*i}{NT('r')} lds", f"st{sig}") for i in range(4)]

V_W1D, V_TR, V_LIN, V_PS, V_GA = 17, 8, 16, 21, 22
def normalize(qt):
    rl = V_NM + 2*qt
    o = [f"v_accvgpr_read_b32 v{rl}, a{A_L+4*qt}", f"v_cmp_nle_f32 vcc, v{rl}, v7", f"v_rcp_f32 v{rl}, v{rl}", "s_nop 0",
         f"s_or_b32 s{sBAD}, s{sBAD}, vcc_lo", f"s_or_b32 s{sBAD}, s{sBAD}, vcc_hi"]
    for u in range(4):
        x, y = OA(2*u, qt), OA(2*u+1, qt)
        for b in (x, x+2, y, y+2): o.append(f"v_pk_mul_f32 {vr(b, 2)}, {vr(b, 2)}, {vr(rl, 2)} op_sel_hi:[1,0]")
        o += [f"v_cvt_pk_bf16_f32 v{x}, v{x}, v{x+1}", f"v_cvt_pk_bf16_f32 v{x+1}, v{x+2}, v{x+3}",
              f"v_cvt_pk_bf16_f32 v{x+2}, v{y}, v{y+1}", f"v_cvt_pk_bf16_f32 v{x+3}, v{y+2}, v{y+3}"]
        o.append(lg(f"ds_write_b128 v1, {vr(x, 4)} offset:{u*4096+qt*1024}", "ow"))
    return o

def param_loads():
    x, y, z, c = 20, 21, 22, 23
    o = [f"v_bfe_u32 v{x}, v0, 4, 2", f"v_bfe_u32 v{y}, v0, 3, 1", f"v_and_b32 v{z}, 3, v0",
         f"v_lshlrev_b32 v{c}, 10, v{x}", f"v_lshl_or_b32 v{c}, v{y}, 8, v{c}", f"v_lshl_or_b32 v{c}, v{z}, 6, v{c}"]
    for p in range(2):
        for vec in range(4):
            o.append(vm(f"buffer_load_dwordx4 {ar(A_M2+16*p+4*vec, 4)}, v{c}, {srd(S_WS)}, s{sM2O} offen offset:{512*p+16*vec} sc1", "par"))
    o += [f"v_lshlrev_b32 v{c}, 8, v{x}", f"v_lshl_or_b32 v{c}, v{y}, 6, v{c}", f"v_lshl_or_b32 v{c}, v{z}, 3, v{c}", f"v_lshlrev_b32 v{x}, 3, v{x}"]
    for p in range(2):
        for h in range(2):
            o.append(vm(f"buffer_load_dwordx2 {ar(A_B2+4*p+2*h, 2)}, v{c}, {srd(S_TA)}, 0 offen offset:{128*p+32*h}{NT('p')}", "par"))
    o += [f"v_bfe_u32 v{y}, v0, 2, 1", f"v_lshl_or_b32 v{y}, v{y}, 10, v{c}"]
    for e in range(4):
        o.append(vm(f"buffer_load_dwordx2 {ar(A_B1+2*e, 2)}, v{x}, {srd(S_TB)}, s{sB1O} offen offset:{32*e}{NT('p')}", "par"))
    for p in range(2):
        for h in range(2):
            o.append(vm(f"buffer_load_dwordx2 {ar(A_XR+4*p+2*h, 2)}, v{y}, {srd(S_X)}, s{sXROW} offen offset:{128*p+32*h}{NT('p')}", "par"))
    o += [f"v_accvgpr_write_b32 a{A_OV}, v{y}"]
    return o

def flag_load(tmp, tag): return [f"v_lshlrev_b32 v{tmp}, 2, v0", f"v_and_b32 v{tmp}, 0xff, v{tmp}", vm(f"buffer_load_dword a{A_FL}, v{tmp}, {srd(S_DBG)}, 0 offen sc1", tag)]
def flag_check(tmp):
    a = P.add
    chk = [f"v_accvgpr_read_b32 v{tmp}, a{A_FL}", f"v_accvgpr_read_b32 v{tmp+1}, a{A_MSK}", f"v_and_b32 v{tmp}, v{tmp+1}, v{tmp}", f"v_cmp_ne_u32 vcc, v{tmp+1}, v{tmp}", "s_cbranch_vccz L_flagok"]
    a(wvm("fl"), chk)
    P.rare_begin()
    a(f"s_mov_b32 s{sSPIN}, {SPIN}", label("L_flagsp"), flag_load(tmp, "x"), wvm0(), chk,
      f"s_sub_u32 s{sSPIN}, s{sSPIN}, 1", f"s_cmp_lg_u32 s{sSPIN}, 0", "s_cbranch_scc1 L_flagsp")
    P.rare_end()
    a(label("L_flagok"))
def prefill(n):
    o = [vm(f"buffer_store_dwordx4 {ar(A_SEN, 4)}, v{V_PF}, {srd(S_WS)}, s{sPF} offen offset:{1024*i} sc1", "pf") for i in range(n)]
    return o + [f"s_add_u32 s{sPF}, s{sPF}, {1024*n}"]

def attention():
    a = P.add
    a(kreads(0))
    T = 32
    def conv(qt):
        o = []
        for s in range(4):
            for mm in (0, 2):
                t = T + 4*((2*s + mm//2) & 3)
                for k in range(4): o.append(f"v_accvgpr_read_b32 v{t+k}, a{A_QACC+((2*mm+k)*4+qt)*4+s}")
                o += [f"v_cvt_pk_bf16_f32 v{QF(s, qt)+mm}, v{t}, v{t+1}", f"v_cvt_pk_bf16_f32 v{QF(s, qt)+mm+1}, v{t+2}, v{t+3}"]
        return o
    def s0(qt):
        o = []
        for s in range(4):
            for kt in range(2):
                d = vr(OA(2*qt+kt, 3), 4)
                o.append(f"{MF} {d}, {ar(KF(0, kt, s), 4)}, {vr(QF(s, qt), 4)}, {d if s else 0}")
        return o
    def maxred(qt):
        r = [sreg(qt, i) for i in range(8)]
        m, t = V_NM + 4*qt, V_NM + 4*qt + 1
        return [f"v_max3_f32 v{m}, v{r[0]}, v{r[1]}, v{r[2]}", f"v_max3_f32 v{t}, v{r[3]}, v{r[4]}, v{r[5]}", f"v_max3_f32 v{m}, v{m}, v{r[6]}, v{r[7]}",
                f"v_max_f32 v{m}, v{m}, v{t}", f"v_mov_b32 v{t}, v{m}", "s_nop 1", f"v_permlane16_swap_b32 v{m}, v{t}", f"v_max_f32 v{m}, v{m}, v{t}",
                f"v_mov_b32 v{t}, v{m}", "s_nop 1", f"v_permlane32_swap_b32 v{m}, v{t}", f"v_max_f32 v{m}, v{m}, v{t}",
                f"v_mul_f32 v{m}, -1.0, v{m}", f"v_mov_b32 v{m+1}, v{m}", f"v_mov_b32 v{m+2}, v{m}", f"v_mov_b32 v{m+3}, v{m}"]
    a(f"v_mov_b32 v{V_WD}, v246")
    for i in range(1, 4): a(f"v_add_u32 v{V_WD+i}, {7168*i}, v246")
    a(conv(0), kreads(1), wlg("k0"))
    for qt in range(4):
        fl = conv(qt+1) if qt < 3 else []
        a(interleave(s0(qt), fl, cap=6))
        if qt == 3: a(vreads(0))
        if qt >= 1: a(maxred(qt-1))
    a(maxred(3))
    pre, e, c = expo(0)
    a(pre, e, f"v_mov_b32 v7, {f32(2.0**30) if not cfg.force_fallback else f32(1e-3)}", c, wlg("v0"))
    stamp("conv")
    def bar(tag, nxt=()): return [wlg0(), wvm(tag), op("s_barrier")] + list(nxt)
    pf = prefill(4)
    a(muslot(0, pf[:1]), muslot(1, pf[1:2]), muslot(2, pf[2:3]))
    a(muslot(3, pf[3:], tail=[f"s_mov_b32 s{sLOOP}, 3"]))
    a(raw(".p2align 6"))
    a(label("L_attn"))
    P.loop_begin(3)
    for half in range(2):
        u0 = 4 + 2*half
        if half == 0: a(bar("kv1"))
        kv = kv_items(u0, sKV0) + kv_items(u0+1, sKV1)
        a(kv.pop(0))
        q = kv + kv_adv()
        st = prefill(4)
        wp = [vm(f"buffer_load_dwordx4 v{V_WD+i}, {srd(S_WO)}, s{sWOP} offen offset:{1024*i}{NT('r')} lds", "wop") for i in range(4)]
        q += [f"s_add_u32 m0, s{sRING}, {16384*half}", st[0], wp[0], "BREAK", st[1], wp[1], "BREAK", st[2], wp[2], "BREAK", st[3], wp[3], st[4], f"s_add_u32 s{sWOP}, s{sWOP}, 32768"]
        if half == 1: q += [f"s_add_u32 s{sRING}, s{sRING}, s{sRD}", f"s_mul_i32 s{sRD}, s{sRD}, 3", f"s_sub_u32 s{sLOOP}, s{sLOOP}, 1"]
        for j in range(8):
            n = 4 + 8*half + j
            tail = ()
            if j == 7 and half == 0: tail = bar("kv0")
            if j == 7 and half == 1: tail = [f"s_cmp_lg_u32 s{sLOOP}, 0"]
            k = q.index("BREAK") if "BREAK" in q else len(q)
            part = q[:k]
            a(muslot(n, part, tail))
            q = part + (q[k:] if part else q[k+1:])
            if half == 0 and j == 3:
                a(f"s_lshl_b32 s{sT0}, s{sW}, 2", f"s_add_u32 s{sT0}, s{sT0}, s{sLOOP}", f"s_cmp_ge_u32 s{sT0}, 3", "s_cbranch_scc1 L_noflag")
                P.rare_begin()
                a(f"v_mov_b32 v7, s{sFLAG}", "s_mov_b64 exec, 1",
                  vm(f"buffer_store_byte v7, off, {srd(S_DBG)}, s{sPP} sc1", "x"), "s_mov_b64 exec, -1", f"s_or_b32 s{sFLAG}, s{sFLAG}, 0x80",
                  f"v_mov_b32 v7, {f32(2.0**30) if not cfg.force_fallback else f32(1e-3)}")
                P.rare_end()
                a(label("L_noflag"))
        assert not q, q
    a("s_cbranch_scc1 L_attn")
    P.loop_end()
    stamp("aloop", True)
    a(bar("kv1"))
    pf = prefill(3) + prefill(3)
    q = flag_load(20, "fl") + pf[:4]
    nrm = []
    for n in range(52, 64):
        tail = [wlg0(), op("s_barrier")] if n == 59 else ()
        if n == 55:
            assert not q
            flag_check(20)
            q = param_loads()
            for k, x in zip((8, 18, 28, 29), pf[4:]): q.insert(k, x)
        if n >= 61: nrm += normalize(n - 61)
        if n >= 62:
            take = nrm[:22]; nrm = nrm[22:]
            a(muslot(n, take))
        else:
            a(muslot(n, q, tail))
    assert not q
    a(nrm, "s_nop 2", normalize(3))
    a(f"s_cmp_lg_u32 s{sBAD}, 0", "s_cbranch_scc1 L_fallback")
    a(label("L_fb_ret"))
    a(ring_addr_setup())
    a(areads(0))
    a(wvm("wop", "pf", "par"), wlg0(), "s_barrier")
    stamp("attn")

A_AF, A_BF = 0, 32
ACCX, ACCY = 128, 192
G0, G1 = 64, 96
V_YR, V_YW, V_LB = 23, 24, 7
V_X1, V_B1F = 32, 48
def areads(sig):
    st = STAGES[sig % 6]
    hi = st >= L_E0
    off = st - (L_E0 if hi else 0)
    return [lg(f"ds_read_b64_tr_b16 {ar(A_AF+16*(sig&1)+4*e+2*hh, 2)}, v{V_TR+4*hi+e} offset:{off+2048*hh}", f"a{sig}") for e in range(4) for hh in range(2)]
def breads(sig):
    if sig < 32: t, v = sig % 16, V_LB
    elif sig < 48: t, v = sig - 32, V_YR
    else: t, v = (sig - 48) % 7, V_LB
    return [lg(f"ds_read_b128 {ar(A_BF+16*(sig&1)+4*qt, 4)}, v{v} offset:{t*4096+qt*1024}", f"a{sig}") for qt in range(4)]
def gstep(sig, acc, first, cinit=None, q=None, nxt=True, dma=True):
    mf = []
    for e in range(4):
        for qt in range(4):
            d = vr(acc + (e*4+qt)*4, 4)
            c = d if not first else (0 if cinit is None else vr(cinit + 4*e, 4))
            mf.append(f"{MF} {d}, {ar(A_AF+16*(sig&1)+4*e, 4)}, {ar(A_BF+16*(sig&1)+4*qt, 4)}, {c}")
    gaps = [[] for _ in range(16)]
    if nxt:
        t_, b_ = areads(sig+1), breads(sig+1)
        gaps[0] = t_[0:2]; gaps[1] = t_[2:4]; gaps[3] = [t_[4], b_[0]]; gaps[4] = [t_[5], b_[1]]; gaps[5] = [t_[6], b_[2]]; gaps[7] = [t_[7], b_[3]]
    if dma:
        d = stage_dma(sig+6)
        gaps[0].insert(0, d[0]); gaps[1].insert(0, d[1])
        for i, k in enumerate((2, 6, 10, 14)): gaps[k] = [d[2+i]]
    if nxt: gaps[15] = [wvm(f"st{sig+2}"), wlg(f"a{sig+1}")]
    if q: fill(gaps, list(range(16)) if not nxt else [8, 9, 11, 12, 13] if dma else [2, 6, 8, 9, 10, 11, 12, 13, 14], q)
    return template(mf, gaps)

def pack_store(acc, p, mboff):
    o = [f"s_add_u32 s{sPST}, s{sMB}, {mboff+8192*p}"]
    for qt in range(4):
        if qt == 2: o.append(f"s_add_u32 s{sPST}, s{sPST}, 4096")
        for b in range(2):
            x, y = acc + (2*b*4+qt)*4, acc + ((2*b+1)*4+qt)*4
            o += [f"v_cvt_pk_bf16_f32 v{x}, v{x}, v{x+1}", f"v_cvt_pk_bf16_f32 v{x+1}, v{x+2}, v{x+3}",
                  f"v_cvt_pk_bf16_f32 v{x+2}, v{y}, v{y+1}", f"v_cvt_pk_bf16_f32 v{x+3}, v{y+2}, v{y+3}",
                  vm(f"buffer_store_dwordx4 {vr(x, 4)}, v{V_PS}, {srd(S_WS)}, s{sPST} offen offset:{(qt&1)*2048+b*1024} sc1", "ps")]
    return o

def gather_loads(buf, n, voff, soffs, tag):
    o = []
    for i in range(n):
        o += [f"s_add_u32 s{sGAT}, s{sTEAM}, {soffs(i)}", vm(f"buffer_load_dwordx4 {vr(buf+4*i, 4)}, v{voff}, {srd(S_WS)}, s{sGAT} offen sc1", tag)]
    return o
def gather_check(buf, n, voff, soffs, tag, tmp):
    a = P.add
    ok, again = newlabel("gok"), newlabel("gre")
    def allmax():
        o = [f"v_max3_u32 v{tmp}, v{buf}, v{buf+1}, v{buf+2}", f"v_max_u32 v{tmp+1}, v{buf+3}, v{buf+4}"]
        k = 5
        while k + 3 < 4*n:
            o += [f"v_max3_u32 v{tmp}, v{tmp}, v{buf+k}, v{buf+k+1}", f"v_max3_u32 v{tmp+1}, v{tmp+1}, v{buf+k+2}, v{buf+k+3}"]; k += 4
        assert 4*n - k == 3
        o += [f"v_max3_u32 v{tmp}, v{tmp}, v{buf+k}, v{buf+k+1}", f"v_max3_u32 v{tmp}, v{tmp}, v{tmp+1}, v{buf+k+2}", f"v_cmp_eq_u32 vcc, -1, v{tmp}"]
        return o
    a(wvm(tag), allmax(), f"s_cbranch_vccz {ok}")
    P.rare_begin()
    a(f"s_mov_b32 s{sSPIN}, {SPIN}", label(again))
    for i in range(n):
        sk = newlabel("gsk")
        b = buf + 4*i
        a(f"v_max3_u32 v{tmp}, v{b}, v{b+1}, v{b+2}", f"v_max_u32 v{tmp}, v{tmp}, v{b+3}", f"v_cmp_eq_u32 vcc, -1, v{tmp}", f"s_cbranch_vccz {sk}",
          f"s_add_u32 s{sGAT}, s{sTEAM}, {soffs(i)}", vm(f"buffer_load_dwordx4 {vr(b, 4)}, v{voff}, {srd(S_WS)}, s{sGAT} offen sc1", "x"), label(sk))
    a(wvm0(), allmax(), f"s_cbranch_vccz {ok}", f"s_sub_u32 s{sSPIN}, s{sSPIN}, 1", f"s_cmp_lg_u32 s{sSPIN}, 0", f"s_cbranch_scc1 {again}")
    P.rare_end()
    a(label(ok))

def sum8(buf, dst, tmp):
    o = []
    for g in range(8):
        for d in range(4):
            if g == 0: o += unpack(dst+2*d, dst+2*d+1, buf+d)
            else:
                t = tmp + 2*d
                o += unpack(t, t+1, buf+4*g+d)
        if g:
            for d in range(4): o.append(f"v_pk_add_f32 {vr(dst+2*d, 2)}, {vr(dst+2*d, 2)}, {vr(tmp+2*d, 2)}")
    return o

def aunpack(dst, asrc, n, tmp):
    o = [f"v_accvgpr_read_b32 v{tmp+i}, a{asrc+i}" for i in range(n)]
    for i in range(n): o += unpack(dst+2*i, dst+2*i+1, tmp+i)
    return o

def rowstats(x, t):
    o = [f"v_pk_add_f32 {vr(t, 2)}, {vr(x, 2)}, {vr(x+2, 2)}", f"v_pk_mul_f32 {vr(t+2, 2)}, {vr(x, 2)}, {vr(x, 2)}",
         f"v_pk_add_f32 {vr(t+4, 2)}, {vr(x+4, 2)}, {vr(x+6, 2)}", f"v_pk_mul_f32 {vr(t+6, 2)}, {vr(x+2, 2)}, {vr(x+2, 2)}"]
    for k in range(4, 16, 2):
        if k >= 8: o.append(f"v_pk_add_f32 {vr(t+4*((k>>1)&1), 2)}, {vr(t+4*((k>>1)&1), 2)}, {vr(x+k, 2)}")
        o.append(f"v_pk_fma_f32 {vr(t+2+4*((k>>1)&1), 2)}, {vr(x+k, 2)}, {vr(x+k, 2)}, {vr(t+2+4*((k>>1)&1), 2)}")
    o += [f"v_pk_add_f32 {vr(t, 2)}, {vr(t, 2)}, {vr(t+4, 2)}", f"v_pk_add_f32 {vr(t+2, 2)}, {vr(t+2, 2)}, {vr(t+6, 2)}",
          f"v_add_f32 v{t}, v{t}, v{t+1}", f"v_add_f32 v{t+1}, v{t+2}, v{t+3}"]
    for m in ("quad_perm:[1,0,3,2]", "quad_perm:[2,3,0,1]", "row_ror:8"):
        o += ["s_nop 0", f"v_add_f32_dpp v{t}, v{t}, v{t} {m} row_mask:0xf bank_mask:0xf", f"v_add_f32_dpp v{t+1}, v{t+1}, v{t+1} {m} row_mask:0xf bank_mask:0xf"]
    for sw in ("v_permlane16_swap_b32", "v_permlane32_swap_b32"):
        o += [f"v_mov_b32 v{t+2}, v{t}", f"v_mov_b32 v{t+3}, v{t+1}", "s_nop 0", f"{sw} v{t}, v{t+2}", f"{sw} v{t+1}, v{t+3}",
              f"v_add_f32 v{t}, v{t}, v{t+2}", f"v_add_f32 v{t+1}, v{t+1}, v{t+3}"]
    o += [f"v_mul_f32 v{t+2}, {f32(1/512)}, v{t}", f"v_mul_f32 v{t+1}, {f32(1/512)}, v{t+1}", f"v_fma_f32 v{t}, -v{t+2}, v{t+2}, v{t+1}",
          f"v_max_f32 v{t}, 0, v{t}", f"v_add_f32 v{t}, {f32(1e-5)}, v{t}", f"v_rsq_f32 v{t}, v{t}", "s_nop 0", f"v_mul_f32 v{t+1}, -v{t+2}, v{t}"]
    return o

def ring_addr_setup():
    L, t0, t1, t2 = 31, 28, 29, 30
    o = [f"v_and_b32 v{L}, 63, v0"]
    o += [f"v_lshrrev_b32 v{t0}, 2, v{L}", f"v_bfe_u32 v{t1}, v{L}, 3, 2", f"v_and_b32 v{t2}, 3, v{L}", f"v_lshlrev_b32 v{t2}, 3, v{t2}",
          f"v_lshl_or_b32 v{t2}, v{t1}, 5, v{t2}", f"v_lshl_or_b32 v{t2}, v{t0}, 7, v{t2}", f"v_add_u32 v{V_TR}, s{sW4K}, v{t2}"]
    for e in range(1, 4): o.append(f"v_xor_b32 v{V_TR+e}, {32*e}, v{V_TR}")
    o += [f"v_lshlrev_b32 v{V_LIN}, 4, v{L}", f"v_add_u32 v{V_LB}, {L_B}, v{V_LIN}"]
    return o
def ring_addr_setup2():
    L, t0, t1, t2 = 31, 28, 29, 30
    o = []
    for e in range(4): o.append(f"v_add_u32 v{V_TR+4+e}, {L_E0}, v{V_TR+e}")
    o += [f"v_bfe_u32 v{t0}, v{L}, 1, 3", f"v_and_b32 v{t1}, 1, v{L}", f"v_lshrrev_b32 v{t2}, 4, v{L}", f"v_lshlrev_b32 v{V_PS}, 7, v{t0}",
          f"v_lshl_or_b32 v{V_PS}, v{t1}, 6, v{V_PS}", f"v_lshl_or_b32 v{V_PS}, v{t2}, 4, v{V_PS}"]
    o += [f"v_bfe_u32 v{t0}, v{L}, 3, 1", f"v_and_b32 v{t1}, 7, v{L}", f"v_mul_u32_u24 v{V_GA}, {MB_W}, v{t2}", f"v_lshl_add_u32 v{V_GA}, v{t0}, 10, v{V_GA}",
          f"v_lshl_add_u32 v{V_GA}, v{t1}, 4, v{V_GA}", f"s_lshl_b32 s{sT0}, s{sG}, 7", f"s_add_u32 s{sT0}, s{sT0}, s{sW2K}", f"v_add_u32 v{V_GA}, s{sT0}, v{V_GA}"]
    o += [f"v_accvgpr_read_b32 v{t0}, a{A_SW}", f"v_lshrrev_b32 v{t1}, 3, v{L}", f"v_mul_u32_u24 v{t1}, 3584, v{t1}", f"s_lshl_b32 s{sT0}, s{sW}, 7",
          f"v_add3_u32 v{V_W1D}, v{t0}, v{t1}, s{sT0}"]
    for i in range(1, 4): o.append(f"v_add_u32 v{V_W1D+i}, {(8*3584-1024)*i}, v{V_W1D}")
    o += [f"v_lshlrev_b32 v{t0}, 1, v{t2}", f"v_xor_b32 v{V_YR}, v{L}, v{t0}", f"v_lshlrev_b32 v{V_YR}, 4, v{V_YR}", f"v_add_u32 v{V_YR}, {L_B}, v{V_YR}"]
    o += [f"v_lshrrev_b32 v{t0}, 3, v{L}", f"v_and_b32 v{t1}, 3, v{L}", f"v_bfe_u32 v{t2}, v{L}, 2, 1", f"v_lshlrev_b32 v{V_YW}, 12, v{t0}",
          f"v_lshl_or_b32 v{V_YW}, v{t1}, 8, v{V_YW}", f"v_lshl_or_b32 v{V_YW}, v{t2}, 4, v{V_YW}", f"v_lshl_or_b32 v{V_YW}, v{t1}, 5, v{V_YW}",
          f"s_lshl_b32 s{sT0}, s{sW}, 10", f"s_add_u32 s{sT0}, s{sT0}, {L_B}", f"v_add_u32 v{V_YW}, s{sT0}, v{V_YW}"]
    for j in range(1, 4): o.append(f"v_xor_b32 v{V_YW+j}, {32*j}, v{V_YW}")
    o += [f"s_mul_i32 s{sT0}, s{sW}, {MB_W}", f"v_add_u32 v6, s{sT0}, v{V_LIN}"]
    return o

V_SUM, V_TMP, V_PA, V_PB = 128, 144, 160, 176
def oproj():
    a = P.add
    a(breads(0), wlg("a0"))
    ex = ring_addr_setup2() + aunpack(V_X1, A_XR, 8, G0) + aunpack(V_B1F, A_B1, 8, G0+8)
    epi, gq = [], []
    for sig in range(32):
        p, t = divmod(sig, 16)
        if sig == 16:
            assert not ex
            ex = pack_store(ACCX, 0, MB_P1)
        if sig % 4 == 0: stamp(f"o{sig}", True)
        a(gstep(sig, ACCX if p == 0 else ACCY, t == 0, q=ex, nxt=(sig != 31), dma=True))
    assert not ex and not gq
    a("s_nop 3", pack_store(ACCY, 1, MB_P1))
    a(gather_loads(G0, 8, V_GA, lambda i: i*MB_SZ + MB_P1, "g0"))
    a(gather_loads(G1, 8, V_GA, lambda i: i*MB_SZ + MB_P1 + 8192, "g1"))
    stamp("oproj")

def ln2():
    a = P.add
    a("s_barrier")
    for p in range(2): a(aunpack(V_PA+8*p, A_M2+16*p+0, 4, V_TMP))
    gather_check(G0, 8, V_GA, lambda i: i*MB_SZ + MB_P1, "g0", V_TMP)
    stamp("g0ok", True)
    a(sum8(G0, V_SUM, V_TMP))
    G2, SB = 192, 208
    for p in range(2):
        a(aunpack(G2+8*p, A_M2+16*p+8, 4, V_TMP))
        a([f"v_add_f32 v{G2+8*p+i}, 1.0, v{G2+8*p+i}" for i in range(8)])
        a([f"v_cvt_pk_bf16_f32 v{V_TMP+i}, v{G2+8*p+2*i}, v{G2+8*p+2*i+1}" for i in range(4)])
        for i in range(4): a(unpack(G2+8*p+2*i, G2+8*p+2*i+1, V_TMP+i))
        a(aunpack(SB+8*p, A_M2+16*p+4, 4, V_TMP))
    gather_check(G1, 8, V_GA, lambda i: i*MB_SZ + MB_P1 + 8192, "g1", V_TMP)
    stamp("ex1")
    a(sum8(G1, V_SUM+8, V_TMP))
    for k in range(0, 16, 2): a(f"v_pk_fma_f32 {vr(V_X1+k, 2)}, {vr(V_SUM+k, 2)}, {vr(V_PA+k, 2)}, {vr(V_X1+k, 2)}")
    a(rowstats(V_X1, V_TMP))
    H = V_SUM
    for k in range(0, 16, 2): a(f"v_pk_fma_f32 {vr(H+k, 2)}, {vr(V_X1+k, 2)}, {vr(V_TMP, 2)}, {vr(V_TMP, 2)} op_sel:[0,0,1] op_sel_hi:[1,0,1]")
    for k in range(0, 16, 2): a(f"v_pk_fma_f32 {vr(H+k, 2)}, {vr(H+k, 2)}, {vr(G2+k, 2)}, {vr(SB+k, 2)}")
    a(rowstats(H, V_TMP))
    for k in range(0, 16, 2): a(f"v_pk_fma_f32 {vr(H+k, 2)}, {vr(H+k, 2)}, {vr(V_TMP, 2)}, {vr(V_TMP, 2)} op_sel:[0,0,1] op_sel_hi:[1,0,1]")
    a(f"s_add_u32 s{sT0}, s{sMB}, {MB_Y}")
    for p in range(2):
        for i in range(4): a(f"v_cvt_pk_bf16_f32 v{V_PB+4*p+i}, v{H+8*p+2*i}, v{H+8*p+2*i+1}")
        a(vm(f"buffer_store_dwordx4 {vr(V_PB+4*p, 4)}, v{V_LIN}, {srd(S_WS)}, s{sT0} offen offset:{1024*p} sc1", "ys"))
    stamp("ln2")
    for p, buf in ((0, G0), (1, G1)): a(gather_loads(buf, 8, 6, lambda i: i*MB_SZ + MB_Y + 1024*p, f"y{p}"))
    a(wvm("st32"), areads(32))
    for p, buf in ((0, G0), (1, G1)):
        gather_check(buf, 8, 6, lambda i: i*MB_SZ + MB_Y + 1024*p, f"y{p}", V_TMP)
        for j in range(8): a(lg(f"ds_write_b128 v{V_YW+(j&3)}, {vr(buf+4*j, 4)} offset:{128*(j>>2)+32768*p}", "yw"))
    a(wlg0(), "s_barrier")
    stamp("y_in")

def mlp():
    a = P.add
    a(breads(32), wlg("a32"))
    k = 2*math.sqrt(2/math.pi)*math.log2(math.e)
    ex = [f"s_mov_b32 s{sC1}, {f32(-k*0.044715)}", f"s_mov_b32 s{sC1+1}, {f32(-k)}", f"s_lshl_b32 s{sT0}, s{sW}, 13", f"v_add_u32 v28, s{sT0}, v{V_LB}"]
    for sig in range(32, 48):
        a(gstep(sig, ACCX, sig == 32, cinit=V_B1F, q=ex, nxt=(sig != 47)))
    stamp("mlp1")
    a(wvm("st48"), areads(48), "s_barrier")
    T = ACCY
    for b in range(2):
        for qt in range(4):
            x, y = ACCX + (2*b*4+qt)*4, ACCX + ((2*b+1)*4+qt)*4
            prs = [x, x+2, y, y+2]
            t = T + 8*(qt & 1)
            for i, z in enumerate(prs): a(f"v_pk_mul_f32 {vr(t+2*i, 2)}, {vr(z, 2)}, {vr(z, 2)}")
            for i, z in enumerate(prs): a(f"v_pk_fma_f32 {vr(t+2*i, 2)}, {vr(t+2*i, 2)}, s[{sC1}:{sC1+1}], s[{sC1}:{sC1+1}] op_sel:[0,0,1] op_sel_hi:[1,0,1]")
            for i, z in enumerate(prs): a(f"v_pk_mul_f32 {vr(t+2*i, 2)}, {vr(t+2*i, 2)}, {vr(z, 2)}")
            for i in range(8): a(f"v_exp_f32 v{t+i}, v{t+i}")
            for i in range(4): a(f"v_pk_add_f32 {vr(t+2*i, 2)}, {vr(t+2*i, 2)}, 1.0 op_sel_hi:[1,0]")
            for i in range(8): a(f"v_rcp_f32 v{t+i}, v{t+i}")
            for i, z in enumerate(prs): a(f"v_pk_mul_f32 {vr(z, 2)}, {vr(t+2*i, 2)}, {vr(z, 2)}")
            a(f"v_cvt_pk_bf16_f32 v{x}, v{x}, v{x+1}", f"v_cvt_pk_bf16_f32 v{x+1}, v{x+2}, v{x+3}",
              f"v_cvt_pk_bf16_f32 v{x+2}, v{y}, v{y+1}", f"v_cvt_pk_bf16_f32 v{x+3}, v{y+2}, v{y+3}")
            a(lg(f"ds_write_b128 v28, {vr(x, 4)} offset:{b*4096+qt*1024}", "hw"))
    a(wlg0(), "s_barrier")
    stamp("gelu")
    a(breads(48), wvm("st49"), wlg("a48"))
    ex = []
    for sig in range(48, 62):
        p, t = divmod(sig - 48, 7)
        if sig == 55: ex = pack_store(ACCX, 0, MB_P2)
        if sig in (52, 55, 58): stamp(f"m{sig}", True)
        a(gstep(sig, ACCX if p == 0 else ACCY, t == 0, q=ex, nxt=(sig != 61), dma=(sig + 6 < 62)))
    a(ex)
    a("s_nop 3", pack_store(ACCY, 1, MB_P2))
    a(gather_loads(G0, 8, V_GA, lambda i: i*MB_SZ + MB_P2, "g0"))
    a(gather_loads(G1, 8, V_GA, lambda i: i*MB_SZ + MB_P2 + 8192, "g1"))
    stamp("mlp2")

def final():
    a = P.add
    GB, B2 = V_PA, V_PB
    for p in range(2): a(aunpack(GB+8*p, A_M2+16*p+12, 4, V_TMP))
    a(aunpack(B2, A_B2, 8, V_TMP))
    a(f"v_accvgpr_read_b32 v28, a{A_OV}")
    for p, buf in ((0, G0), (1, G1)):
        gather_check(buf, 8, V_GA, lambda i: i*MB_SZ + MB_P2 + 8192*p, f"g{p}", V_TMP)
        S = V_SUM + 8*p
        a(sum8(buf, S, V_TMP))
        for k in range(0, 8, 2): a(f"v_pk_add_f32 {vr(S+k, 2)}, {vr(S+k, 2)}, {vr(B2+8*p+k, 2)}")
        for k in range(0, 8, 2): a(f"v_pk_fma_f32 {vr(S+k, 2)}, {vr(S+k, 2)}, {vr(GB+8*p+k, 2)}, {vr(V_X1+8*p+k, 2)}")
        for i in range(4): a(f"v_cvt_pk_bf16_f32 v{S+i}, v{S+2*i}, v{S+2*i+1}")
        for h in range(2): a(vm(f"buffer_store_dwordx2 {vr(S+2*h, 2)}, v28, {srd(S_OUT)}, s{sXROW} offen offset:{128*p+32*h}", "out"))
    if cfg.stamps:
        stamp("end")
        a(f"s_lshl_b32 s{sT0}, s2, 10", f"s_add_u32 s{sT0}, s{sT0}, {WS_STAMP}", "v_lshlrev_b32 v7, 2, v0",
          vm(f"buffer_store_dword a{A_STAMP}, v7, {srd(S_WS)}, s{sT0} offen", "st"), f"s_add_u32 s{sT0}, s{sT0}, 0x40000",
          vm(f"buffer_store_dword a{A_STAMP+1}, v7, {srd(S_WS)}, s{sT0} offen", "st"))
        if cfg.dbgout is not None:
            a(f"s_lshl_b32 s{sT0}, s{sPP}, 2", f"s_add_u32 s{sT0}, s{sT0}, s{sW}", f"s_cmp_lg_u32 s{sT0}, {cfg.dbgout*4}", "s_cbranch_scc1 L_exit")
            a(f"v_accvgpr_read_b32 v8, a{A_STAMP}", "s_nop 1", "v_readlane_b32 s60, v8, 0", "s_nop 1", "v_subrev_u32 v8, s60, v8", "v_subrev_u32 v7, 4, v7",
              "s_mov_b64 exec, 0x1fffe", vm(f"buffer_store_dword v8, v7, {srd(S_DBG)}, 0 offen sc1", "st"))
    a(label("L_exit"), "s_endpgm")

def fallback():
    a = P.add
    P.rare_begin()
    a(label("L_fallback"), wall())
    L, KA = 32, 33
    a(f"v_and_b32 v{L}, 63, v0", f"v_and_b32 v{KA}, 15, v{L}", f"v_lshrrev_b32 v34, 4, v{L}", f"v_lshlrev_b32 v{KA}, 8, v{KA}", f"v_lshl_or_b32 v{KA}, v34, 6, v{KA}")
    a(f"v_and_b32 v36, 15, v{L}")
    for i in range(2):
        a(f"v_add_u32 v37, {4*i}, v34", f"v_lshlrev_b32 v37, 1, v37", f"v_xor_b32 v37, v37, v36", f"v_lshlrev_b32 v37, 4, v37", f"v_lshl_or_b32 v{20+i}, v34, 8, v37")
    a(f"s_lshl_b32 s{sT2}, s{sG}, 19", f"s_add_u32 s{sT2}, s{sT2}, {1536*256}", f"s_mov_b32 s{sT0}, s{sT2}", f"s_mov_b32 s{sLOOP}, 32")
    for qt in range(4): a(f"v_mov_b32 v{V_NM+4*qt}, 0xff800000")
    a(label("L_fb1"))
    for s in range(4): a(vm(f"buffer_load_dwordx4 {ar(A_KF+4*s, 4)}, v{KA}, {srd(S_K)}, s{sT0} offen offset:{16*s}", "x"))
    a(wvm0())
    for qt in range(4):
        for s in range(4): a(f"{MF} v[36:39], {ar(A_KF+4*s, 4)}, {vr(QF(s, qt), 4)}, {'v[36:39]' if s else 0}")
        a("s_nop 9", f"v_max3_f32 v{V_NM+4*qt}, v{V_NM+4*qt}, v36, v37", f"v_max3_f32 v{V_NM+4*qt}, v{V_NM+4*qt}, v38, v39", "s_nop 3")
    a(f"s_add_u32 s{sT0}, s{sT0}, 4096", f"s_sub_u32 s{sLOOP}, s{sLOOP}, 1", f"s_cmp_lg_u32 s{sLOOP}, 0", "s_cbranch_scc1 L_fb1")
    for qt in range(4):
        m, t = V_NM + 4*qt, V_NM + 4*qt + 1
        a(f"v_mov_b32 v{t}, v{m}", "s_nop 1", f"v_permlane16_swap_b32 v{m}, v{t}", f"v_max_f32 v{m}, v{m}, v{t}",
          f"v_mov_b32 v{t}, v{m}", "s_nop 1", f"v_permlane32_swap_b32 v{m}, v{t}", f"v_max_f32 v{m}, v{m}, v{t}",
          f"v_mul_f32 v{m}, -1.0, v{m}", f"v_mov_b32 v{m+1}, v{m}", f"v_mov_b32 v{m+2}, v{m}", f"v_mov_b32 v{m+3}, v{m}")
    for r in range(128): a(f"v_mov_b32 v{V_O+r}, 0")
    for r in range(16): a(f"v_accvgpr_write_b32 a{A_L+r}, 0")
    a(f"s_lshl_b32 s{sT1}, s{sW}, 14", f"s_add_u32 s{sT1}, s{sT1}, {L_B}", f"s_sub_u32 s{sT0}, s{sT1}, {L_V}")
    for dt in range(8): a(f"v_add_u32 v{V_VR+dt}, s{sT0}, v{V_VR+dt}")
    a(f"s_mov_b32 s{sT0}, s{sT2}", f"s_mov_b32 s{sLOOP}, 16")
    a(label("L_fb2"))
    for j in range(4):
        a(f"s_add_u32 m0, s{sT1}, {2048*j}", f"s_add_u32 s{sT3}, s{sT0}, {2048*j}",
          vm(f"buffer_load_dwordx4 v20, {srd(S_V)}, s{sT3} offen lds", "x"), vm(f"buffer_load_dwordx4 v21, {srd(S_V)}, s{sT3} offen offset:1024 lds", "x"))
    a(f"s_add_u32 s{sT3}, s{sT0}, 4096")
    for s in range(4):
        a(vm(f"buffer_load_dwordx4 {ar(KF(0, 0, s), 4)}, v{KA}, {srd(S_K)}, s{sT0} offen offset:{16*s}", "x"),
          vm(f"buffer_load_dwordx4 {ar(KF(0, 1, s), 4)}, v{KA}, {srd(S_K)}, s{sT3} offen offset:{16*s}", "x"))
    a(wvm0())
    a(vreads(0), wlg0())
    for qt in range(4):
        for s in range(4):
            for kt in range(2):
                d = vr(40 + 4*kt, 4)
                a(f"{MF} {d}, {ar(KF(0, kt, s), 4)}, {vr(QF(s, qt), 4)}, {d if s else vr(V_NM+4*qt, 4)}")
        a("s_nop 9")
        for i in range(8): a(f"v_exp_f32 v{40+i}, v{40+i}")
        a("s_nop 0")
        for i in range(4): a(f"v_cvt_pk_bf16_f32 v{V_P+i}, v{40+2*i}, v{41+2*i}")
        a("s_nop 1")
        for dt in range(8): a(f"{MF} {vr(OA(dt, qt), 4)}, {ar(VF(0, dt), 4)}, {vr(V_P, 4)}, {vr(OA(dt, qt), 4)}")
        a(f"{MF} {ar(A_L+4*qt, 4)}, {ar(A_ONE, 4)}, {vr(V_P, 4)}, {ar(A_L+4*qt, 4)}")
    a(f"s_add_u32 s{sT0}, s{sT0}, 8192", f"s_sub_u32 s{sLOOP}, s{sLOOP}, 1", f"s_cmp_lg_u32 s{sLOOP}, 0", "s_cbranch_scc1 L_fb2")
    a("s_nop 9")
    for qt in range(4): a(normalize(qt))
    a("s_branch L_fb_ret")
    P.rare_end()

HEADER = """; Fused adaLN-modulated block: cached sliding-window GQA attention + channel MLP, one persistent launch.
; @launch grid=(256,1,1) block=(256,1,1) lds=163840
.amdgcn_target "amdgcn-amd-amdhsa--gfx950"
.text
.globl {kn}
.p2align 8
.type {kn},@function
{kn}:
"""
FOOTER = """L_codeend:
.section .rodata,"a"
.p2align 6
.amdhsa_kernel {kn}
  .amdhsa_next_free_vgpr 512
  .amdhsa_next_free_sgpr 102
  .amdhsa_accum_offset 256
  .amdhsa_group_segment_fixed_size 0
  .amdhsa_kernarg_size 120
  .amdhsa_user_sgpr_count 2
  .amdhsa_user_sgpr_kernarg_segment_ptr 1
  .amdhsa_system_sgpr_workgroup_id_x 1
  .amdhsa_float_denorm_mode_32 3
.end_amdhsa_kernel
"""

def build():
    d = cfg.dump
    prologue()
    if d == "h": dump_lds_and_exit(0, 65536)
    qproj()
    if d == "q": dump_and_exit([f"a{i}" for i in range(128)])
    attention()
    if d == "o": dump_lds_and_exit(L_B, 65536)
    oproj()
    ln2()
    if d == "y": dump_lds_and_exit(L_B, 65536)
    mlp()
    final()
    fallback()
    for f in out_of_line: f()
    resolve_waits(P.items)
    merge_waits(P.items)
    errs = check(P.items)
    print("-- with rare regions inline")
    items2 = [x for x in P.items if x.kind not in ("rare_begin", "rare_end")]
    check(items2)
    return HEADER.format(kn=KN) + render(P.items) + FOOTER.format(kn=KN), errs

if __name__ == "__main__":
    ap = argparse.ArgumentParser()
    ap.add_argument("-o", default=f"cdna_kernels/{NAME}.s")
    ap.add_argument("--stamps", action="store_true")
    ap.add_argument("--dump")
    ap.add_argument("--dbgout", type=int, default=None)
    ap.add_argument("--mb", type=int, default=1)
    ap.add_argument("--nt", default=None)
    ap.add_argument("--mu", type=int, default=1)
    ap.add_argument("--fine", action="store_true")
    ap.add_argument("--force-fallback", action="store_true")
    args = ap.parse_args()
    cfg.stamps = args.stamps; cfg.dump = args.dump; cfg.dbgout = args.dbgout; WS_MB = args.mb << 20; NT.on = set(args.nt) if args.nt is not None else NT.on; cfg.mu = args.mu; cfg.fine = args.fine; cfg.force_fallback = args.force_fallback
    txt, errs = build()
    if cfg.stamps: txt = "; STAMPS " + ",".join(stamp_names) + "\n" + txt
    open(args.o, "w").write(txt)
    print("wrote", args.o, len(txt), "bytes;", len(errs), "hazard reports")
```

```python
import re

class Ins:
    __slots__ = ("text", "kind", "tag", "cost")
    def __init__(self, text, kind="op", tag=None, cost=1):
        self.text = text; self.kind = kind; self.tag = tag; self.cost = cost
    def __repr__(self): return f"<{self.kind}:{self.text}:{self.tag}>"

TRANS = ("v_exp_f32", "v_log_f32", "v_rcp_f32", "v_rsq_f32", "v_sqrt_f32", "v_sin_f32", "v_cos_f32")

def op(text):
    m = text.split()[0]
    return Ins(text, "op", None, 2 if m.startswith(TRANS) else 1)
def vm(text, tag): return Ins(text, "vm", tag)
def lg(text, tag): return Ins(text, "lg", tag)
def wvm(*tags): return Ins("", "wvm", tags)
def wlg(*tags): return Ins("", "wlg", tags)
def wall(): return Ins("s_waitcnt vmcnt(0) lgkmcnt(0)", "wall")
def wvm0(): return Ins("s_waitcnt vmcnt(0)", "wvm0")
def wlg0(): return Ins("s_waitcnt lgkmcnt(0)", "wlg0")
def label(name): return Ins(name + ":", "label", None, 0)
def raw(text): return Ins(text, "raw", None, 0)

class Prog:
    def __init__(self):
        self.items = []
    def add(self, *xs):
        for x in xs:
            if isinstance(x, (list, tuple)): self.add(*x)
            elif isinstance(x, str): self.items.append(op(x))
            else: self.items.append(x)
    def loop_begin(self, n): self.items.append(Ins("", "loop_begin", n, 0))
    def loop_end(self): self.items.append(Ins("", "loop_end", None, 0))
    def rare_begin(self): self.items.append(Ins("", "rare_begin", None, 0))
    def rare_end(self): self.items.append(Ins("", "rare_end", None, 0))

def interleave(mfmas, fillers, cap=2, start=0, lead=None):
    out = list(lead or [])
    q = []
    for f in fillers:
        if isinstance(f, tuple): q.append(f)
        else: q.append((f, start))
    q = [(op(f) if isinstance(f, str) else f, e) for f, e in q]
    i = 0
    for k, m in enumerate(mfmas):
        out.append(op(m) if isinstance(m, str) else m)
        used = 0
        while i < len(q) and q[i][1] <= k and (used + q[i][0].cost <= cap or used == 0):
            out.append(q[i][0]); used += q[i][0].cost; i += 1
    for f, e in q[i:]: out.append(f)
    return out

def trace(items):
    tr = []
    i = 0
    stack = []
    n = len(items)
    def run(lo, hi):
        i = lo
        while i < hi:
            it = items[i]
            if it.kind == "loop_begin":
                d = 1; j = i + 1
                while d:
                    if items[j].kind == "loop_begin": d += 1
                    if items[j].kind == "loop_end": d -= 1
                    j += 1
                for _ in range(it.tag): run(i + 1, j - 1)
                i = j
            elif it.kind == "rare_begin":
                j = i + 1
                while items[j].kind != "rare_end": j += 1
                i = j + 1
            else:
                tr.append(i); i += 1
    run(0, n)
    return tr

def resolve_waits(items):
    tr = trace(items)
    need = {}
    vmq, lgq = [], []
    for rnd in range(4):
        vmq, lgq = [], []
        changed = False
        seen = set()
        for idx in tr:
            it = items[idx]
            if it.kind in ("vm", "lg"): seen.add(it.tag)
            if it.kind in ("wvm", "wlg"):
                for t in it.tag:
                    if t not in seen and not re.fullmatch(r"st[0-5]|st6[2-9]|pf", t): raise AssertionError(f"wait on a tag that was never issued: {t}")
            if it.kind == "vm": vmq.append(it.tag)
            elif it.kind == "lg": lgq.append(it.tag)
            elif it.kind in ("wvm", "wlg"):
                q = vmq if it.kind == "wvm" else lgq
                mx = 63 if it.kind == "wvm" else 15
                last = -1
                for k, t in enumerate(q):
                    if t in it.tag: last = k
                if last >= 0:
                    nn = min(len(q) - 1 - last, mx)
                    if idx not in need or nn < need[idx]:
                        need[idx] = nn; changed = True
                if idx in need:
                    keep = need[idx]
                    if len(q) > keep: del q[:len(q) - keep]
            elif it.kind == "wall": vmq.clear(); lgq.clear()
            elif it.kind == "wvm0": vmq.clear()
            elif it.kind == "wlg0": lgq.clear()
        if not changed: break
    for idx, it in enumerate(items):
        if it.kind in ("wvm", "wlg"):
            if idx in need:
                it.text = f"s_waitcnt {'vmcnt' if it.kind == 'wvm' else 'lgkmcnt'}({need[idx]})"
            else:
                it.text = ""

def merge_waits(items):
    prev = None
    for it in items:
        if not it.text: continue
        if it.text.startswith("s_waitcnt") and prev is not None and prev.text.startswith("s_waitcnt"):
            cnt = {}
            for t in (prev.text, it.text):
                for k, v in re.findall(r"(vmcnt|lgkmcnt)\((\d+)\)", t):
                    cnt[k] = min(int(v), cnt.get(k, 99))
            prev.text = ""
            it.text = "s_waitcnt " + " ".join(f"{k}({cnt[k]})" for k in ("vmcnt", "lgkmcnt") if k in cnt)
        prev = it

def isscalar(x):
    if isinstance(x, Ins): return x.kind in ("wvm", "wlg", "wall", "wvm0", "wlg0") or (x.kind == "op" and x.text.startswith("s_"))
    return x.startswith("s_")
def _rank(x):
    if isscalar(x): return 0
    if x.kind == "lg": return 1
    if x.kind == "vm": return 2
    return 3
def _indep(a, b):
    if isscalar(a) or isscalar(b):
        if a.kind != "op" and isscalar(a) or b.kind != "op" and isscalar(b): return False
        if any(x.text.startswith(("s_barrier", "s_nop", "s_cbranch", "s_branch")) for x in (a, b)): return False
        if isscalar(a) and isscalar(b): return False
    if a.kind == b.kind and a.kind in ("lg", "vm"): return False
    ca, da, sa, _ = decode(a.text); cb, db, sb, _ = decode(b.text)
    return not (set(da) & (set(db) | set(sb))) and not (set(db) & set(sa))
def order_gap(g):
    g = [op(x) if isinstance(x, str) else x for x in g]
    for i in range(1, len(g)):
        j = i
        while j > 0 and _rank(g[j]) < _rank(g[j-1]) and _indep(g[j-1], g[j]):
            g[j-1], g[j] = g[j], g[j-1]; j -= 1
    return g

def template(mfmas, gaps, lead=()):
    out = [op(x) if isinstance(x, str) else x for x in lead]
    assert len(gaps) == len(mfmas)
    for m, g in zip(mfmas, gaps):
        out.append(op(m))
        out += order_gap(g)
    return out

def isvm(x): return isinstance(x, Ins) and x.kind == "vm"
def cost(x): return (op(x) if isinstance(x, str) else x).cost
def gap_load(g):
    n = sum(cost(x) for x in g)
    if any(isscalar(x) for x in g): n -= 1
    return n

def fill(gaps, free, queue, cap=2):
    assert list(free) == sorted(free)
    for k in free:
        g = gaps[k]
        while queue and not any(isvm(x) for x in g):
            x = queue[0]
            if x == "GAP":
                queue.pop(0); break
            if isvm(x):
                if not g: g.append(queue.pop(0))
                break
            if gap_load(g + [x]) > cap: break
            if isscalar(x) and g and not all(_indep(op(y) if isinstance(y, str) else y, op(x) if isinstance(x, str) else x) for y in g if not isscalar(y)) and gap_load(g) + 1 > cap: break
            g.append(queue.pop(0))

def render(items):
    out = []
    for it in items:
        if it.text:
            out.append(it.text if it.kind in ("label", "raw") else "\t" + it.text)
    return "\n".join(out) + "\n"

REG = re.compile(r"^(-?)(\|?)([vas])(\d+)\|?$|^(-?)([vas])\[(\d+):(\d+)\]$")
def regs_of(tok):
    tok = tok.strip()
    if tok.startswith("abs(") : tok = tok[4:-1]
    if tok in ("vcc",): return [("s", 106), ("s", 107)]
    if tok == "vcc_lo": return [("s", 106)]
    if tok == "vcc_hi": return [("s", 107)]
    if tok == "m0": return [("s", 124)]
    if tok == "exec": return [("s", 126), ("s", 127)]
    m = REG.match(tok)
    if not m: return []
    if m.group(3): return [(m.group(3), int(m.group(4)))]
    return [(m.group(6), r) for r in range(int(m.group(7)), int(m.group(8)) + 1)]

def decode(text):
    parts = text.split(None, 1)
    mn = parts[0]
    rest = parts[1] if len(parts) > 1 else ""
    toks = [t.strip() for t in rest.split(",")] if rest else []
    mods = ""
    if toks:
        l = toks[-1].split()
        if l:
            toks[-1] = l[0]; mods = " ".join(l[1:])
    ops_ = []
    for t in toks:
        ops_.append(t)
    R = [regs_of(t.split()[0]) if t else [] for t in ops_]
    flat = lambda L: [x for y in L for x in y]
    if mn.startswith("v_mfma"):
        return "mfma", R[0], flat(R[1:4]), dict(A=R[1], B=R[2], C=R[3], passes=(4 if "16x16x32" in mn else 8))
    if mn.startswith("v_cmp"):
        return "valu", R[0], flat(R[1:]), dict(mn=mn)
    if mn.startswith(("v_readfirstlane", "v_readlane")):
        return "valu", R[0], flat(R[1:]), dict(mn=mn, rdlane=True)
    if mn.startswith("v_permlane"):
        return "valu", R[0] + R[1], R[0] + R[1], dict(mn=mn, perm=True)
    if mn.startswith("v_"):
        src = flat(R[1:])
        dst = list(R[0])
        if mn.startswith(("v_fmac", "v_pk_fmac", "v_writelane")): src += R[0]
        if mn.startswith(("v_add_co", "v_addc_co", "v_sub_co")): dst += R[1]; src = flat(R[2:])
        if mn.startswith("v_cndmask") and len(R) == 3: src += regs_of("vcc")
        dpp = "dpp" in mn or "row_" in text or "quad_perm" in text
        if dpp: src += R[0]
        return "valu", dst, src, dict(mn=mn, dpp=dpp, trans=mn.startswith(TRANS))
    if mn.startswith("buffer_load"):
        if re.search(r"\blds\b", text): return "vmem", [], flat(R) + regs_of("m0"), dict(mn=mn, dma=True)
        return "vmem", R[0], flat(R[1:]), dict(mn=mn)
    if mn.startswith("buffer_store"):
        return "vmem", [], flat(R), dict(mn=mn, data=R[0], wide=("x4" in mn or "x3" in mn))
    if mn.startswith("buffer_atomic"):
        return "vmem", (R[0] if " sc0" in text else []), flat(R), dict(mn=mn)
    if mn.startswith("ds_read"): return "ds", R[0], flat(R[1:]), dict(mn=mn)
    if mn.startswith("ds_write"): return "ds", [], flat(R), dict(mn=mn)
    if mn.startswith(("s_load", "s_memtime", "s_memrealtime")): return "smem", R[0], flat(R[1:]), dict(mn=mn)
    if mn == "s_nop": return "nop", [], [], dict(n=int(toks[0]) + 1)
    if mn.startswith(("s_waitcnt", "s_barrier", "s_branch", "s_cbranch", "s_endpgm", "s_sleep", "s_setprio")):
        return "ctl", [], [], dict(mn=mn)
    if mn.startswith("s_cmp") or mn.startswith("s_bitcmp"): return "salu", [], flat(R), dict(mn=mn)
    if mn.startswith("s_"):
        dst = list(R[0]) if R else []
        src = flat(R[1:])
        if "saveexec" in mn: dst += regs_of("exec")
        if mn.startswith(("s_bitset", "s_addk", "s_mulk")): src += R[0]
        return "salu", dst, src, dict(mn=mn)
    raise ValueError("cannot decode: " + text)

def check(items, tr=None, verbose=True):
    if tr is None: tr = trace(items)
    errs = []
    pos = 0
    last_valu_w = {}; last_trans_w = {}; last_mfma_w = {}; last_mfma_c = {}; last_salu_w = {}; store_data = {}
    vmq, lgq = [], []
    smem_pending = set()
    def err(msg, it): errs.append(f"{msg}: {it.text}")
    for idx in tr:
        it = items[idx]
        if not it.text or it.kind in ("label", "raw"): continue
        cls, dst, src, info = decode(it.text)
        if cls == "nop": pos += info["n"]; continue
        if it.text.startswith("s_waitcnt"):
            m = re.search(r"vmcnt\((\d+)\)", it.text)
            if m:
                k = int(m.group(1))
                if len(vmq) > k: del vmq[:len(vmq) - k]
            m = re.search(r"lgkmcnt\((\d+)\)", it.text)
            if m:
                k = int(m.group(1))
                if k == 0: smem_pending.clear()
                if len(lgq) > k: del lgq[:len(lgq) - k]
            pos += 1; continue
        touched = set(dst) | set(src)
        for q, nm in ((vmq, "vmcnt"), (lgq, "lgkmcnt")):
            for e in q:
                if e & touched and not (it.tag == "dummy"): err(f"register with pending load ({nm}) {sorted(e & touched)[:2]}", it)
        if smem_pending & touched: err("pending smem", it)
        def dist(table, r): return pos - table[r] - 1 if r in table else 99
        if cls == "mfma":
            for r in src:
                if dist(last_valu_w, r) < 2: err(f"VALU->MFMA {r}", it)
            for r in info["A"] + info["B"]:
                if r in last_mfma_w:
                    p, ps, blk = last_mfma_w[r]
                    if pos - p - 1 < (8 if ps == 4 else 12): err(f"MFMA D->A/B {r}", it)
            for r in info["C"]:
                if r in last_mfma_w:
                    p, ps, blk = last_mfma_w[r]
                    if blk != tuple(info["C"]) and pos - p - 1 < (6 if ps == 4 else 10): err(f"MFMA D->C partial {r}", it)
            for r in dst:
                if r in last_mfma_w:
                    p, ps, blk = last_mfma_w[r]
                    if tuple(info["C"]) != blk and pos - p - 1 < (6 if ps == 4 else 10): err(f"MFMA WAW {r}", it)
        if cls in ("valu", "vmem", "ds"):
            for r in touched:
                if r in last_mfma_w:
                    p, ps, blk = last_mfma_w[r]
                    if pos - p - 1 < (8 if ps == 4 else 12): err(f"MFMA D->{cls} {r} dist {pos-p-1}", it)
        if cls == "valu":
            for r in dst:
                if r in last_mfma_c:
                    p, ps = last_mfma_c[r]
                    if pos - p - 1 < (3 if ps == 4 else 7): err(f"MFMA C WAR {r}", it)
                if dist(store_data, r) < 2: err(f"store data WAR {r}", it)
            for r in src:
                if r[0] == "s" and dist(last_valu_w, r) < 2: err(f"VALU sgpr->VALU {r}", it)
                if not info.get("trans") and dist(last_trans_w, r) < 1: err(f"trans->VALU {r}", it)
                if info.get("trans") and dist(last_trans_w, r) < 1: err(f"trans->trans {r}", it)
                if (info.get("dpp") or info.get("perm")) and r[0] == "v" and dist(last_valu_w, r) < 2: err(f"VALU->DPP/perm {r}", it)
                if info.get("rdlane") and r[0] == "v" and dist(last_valu_w, r) < 1: err(f"VALU->readlane {r}", it)
        if cls in ("vmem", "ds"):
            for r in src:
                if r[0] == "s" and dist(last_valu_w, r) < 5 and cls == "vmem": err(f"VALU sgpr->VMEM {r}", it)
                if dist(last_trans_w, r) < 1: err(f"trans->mem {r}", it)
            if info.get("dma") and dist(last_salu_w, ("s", 124)) < 1: err("m0->dma", it)
            for r in dst:
                if dist(store_data, r) < 1: err(f"store data WAR(load) {r}", it)
        if cls == "salu":
            for r in src:
                if dist(last_valu_w, r) < 1 and r[0] == "s": err(f"VALU sgpr->SALU (pad) {r}", it)
        if cls == "valu":
            for r in dst:
                last_valu_w[r] = pos; last_mfma_w.pop(r, None)
                if info.get("trans"): last_trans_w[r] = pos
                else: last_trans_w.pop(r, None)
        elif cls == "mfma":
            for r in dst: last_mfma_w[r] = (pos, info["passes"], tuple(dst)); last_valu_w.pop(r, None)
            for r in info["C"]: last_mfma_c[r] = (pos, info["passes"])
        elif cls == "salu":
            for r in dst: last_salu_w[r] = pos; last_valu_w.pop(r, None)
        elif cls == "vmem":
            vmq.append(set(dst))
            if info.get("wide"):
                for r in info["data"]: store_data[r] = pos
        elif cls == "ds": lgq.append(set(dst))
        elif cls == "smem": smem_pending |= set(dst)
        pos += 1
    if verbose:
        seen = set()
        for e in errs:
            if e not in seen: print("HAZARD", e); seen.add(e)
    return errs
```

```python
import sys, math, argparse, struct
from asmlib import *

NAME = "adaLN_cond__sliding_block_cached__mixer_channel_mlp__prompt"
KN = NAME + "_kernel"

WS_MODG = 0
WS_M2 = 4096
WS_MB = 1 << 20
MB_W = 34816
MB_SZ = 4*MB_W
MB_P1, MB_Y, MB_P2 = 0, 16384, 18432
WS_DUMP = 64 << 20
WS_STAMP = 60 << 20
WS_BYTES = 268435456
SPIN = 1 << 15

L_K = 65536
L_V = 98304
L_E0 = 131072
L_E1 = 147456
L_B = 65536
STAGES = [0, 16384, 32768, 49152, L_E0, L_E1]

sFLAG = 3
S_X, S_K, S_V, S_WQ, S_WO, S_W1, S_W2, S_WS, S_DBG, S_OUT, S_TA, S_TB = [4 + 4*i for i in range(12)]
S_B1P, S_B2P = 52, 54
sW, sG, sRB, sRHO = 56, 57, 58, 59
sT0, sT1, sT2, sT3 = 60, 61, 62, 63
sSELLO, sSELHI = 96, 97
sSTAMP = 98
sSPIN, sBAD = 100, 101
sCP = 101
sPP = 2
(sWQOFF, sKV0, sMB, sTEAM, sW4K, sW2K, sWOB, sW1B, sW2B, sPF, sLOOP, sPST, sGAT) = range(64, 77)
sEX = 78
sC1 = 80
sKV1, sWOP, sRING, sRD, sXROW, sB1O, sM2O, sIDX = range(82, 90)
def srd(b): return f"s[{b}:{b+3}]"
def vr(b, n=1): return f"v{b}" if n == 1 else f"v[{b}:{b+n-1}]"
def ar(b, n=1): return f"a{b}" if n == 1 else f"a[{b}:{b+n-1}]"
def f32(x): return "0x%08x" % struct.unpack("<I", struct.pack("<f", x))[0]

QSCALE = math.log2(math.e) / math.sqrt(128.0)
MF = "v_mfma_f32_16x16x32_bf16"

class Cfg:
    stamps = False
    fine = False
    sleep = 0
    drain = True
    g0at = 27
    depth = 4
    touch = True
    nopf = False
    dbgout = None
    dump = None
    force_fallback = False
    mu = 1
cfg = Cfg()
P = Prog()
uid = [0]
def newlabel(s):
    uid[0] += 1
    return f"L_{s}_{uid[0]}"

A_STAMP = 252
stamp_names = []
def stamp(name, fine=False):
    if not cfg.stamps or (fine and not cfg.fine): return
    k = len(stamp_names); stamp_names.append(str(name))
    assert k < 64
    P.add(Ins(f"s_memrealtime s[{sSTAMP}:{sSTAMP+1}]", "op"), Ins(f"s_memtime s[0:1]", "op"), wlg0(),
          f"s_lshl_b64 exec, 1, {k}",
          f"v_accvgpr_write_b32 a{A_STAMP}, s{sSTAMP}", f"v_accvgpr_write_b32 a{A_STAMP+1}, s0", "s_mov_b64 exec, -1")

def dump_and_exit(regs):
    P.add(wall(), "s_nop 15")
    P.add(f"s_lshl_b32 s{sT0}, s2, 18", f"s_add_u32 s{sT0}, s{sT0}, {WS_DUMP}")
    P.add("v_lshlrev_b32 v7, 2, v0")
    for i, r in enumerate(regs):
        P.add(vm(f"buffer_store_dword {r}, v7, {srd(S_WS)}, s{sT0} offen", "dump"), f"s_add_u32 s{sT0}, s{sT0}, 1024")
    P.add(wall(), "s_endpgm")

def dump_lds_and_exit(base, nbytes):
    P.add(wall(), "s_barrier")
    P.add(f"s_lshl_b32 s{sT0}, s2, 18", f"s_add_u32 s{sT0}, s{sT0}, {WS_DUMP}")
    P.add("v_lshlrev_b32 v7, 4, v0", f"v_add_u32 v6, {base}, v7")
    for i in range(nbytes // 4096):
        P.add(lg(f"ds_read_b128 v[8:11], v6", "d"), wlg0(),
              vm(f"buffer_store_dwordx4 v[8:11], v7, {srd(S_WS)}, s{sT0} offen", "dump"), f"s_add_u32 s{sT0}, s{sT0}, 4096",
              "v_add_u32 v6, 4096, v6", wvm0())
    P.add(wall(), "s_endpgm")

def mk_srd(b, p, nbytes):
    return [f"s_mov_b32 s{b}, s{p}", f"s_and_b32 s{b+1}, s{p+1}, 0xffff", f"s_mov_b32 s{b+2}, {nbytes}", f"s_mov_b32 s{b+3}, 0x20000"]

def unpack(dlo, dhi, src):
    return [f"v_lshlrev_b32 v{dlo}, 16, v{src}", f"v_and_b32 v{dhi}, 0xffff0000, v{src}"]

class _NT:
    on = set("")
    def __call__(self, k): return " nt" if k in self.on else ""
NT = _NT()

R = [32, 64, 96, 128, 160, 192]
XN = 128
FST = [224, 232]
V_WQ = 24
V_KD, V_VD = 20, 22
V_HR = 4
A_QACC = 0
A_HB = 128
V_KR, V_VR = 8, 12
V_P, V_S, V_NM, V_Q, V_O = 24, 32, 48, 64, 128
V_WD = 2
V_PF = 6
A_KF, A_VF, A_L, A_ONE, A_DUM, A_SEN, A_FL = 160, 0, 224, 240, 244, 248, 254
A_M2, A_XR, A_B2, A_B1 = 64, 96, 104, 112
A_OV, A_SW, A_MSK = 120, 247, 255
A_MM = 224

def wq_load(t, s):
    b = R[t % 6]
    return [vm(f"buffer_load_dwordx4 {vr(b+4*j, 4)}, v{V_WQ+j}, {srd(S_WQ)}, s{s} offen{NT('q')}", f"wq{t}") for j in range(8)]
def adv(s): return [f"s_add_u32 s{s}, s{s}, 262144", f"s_and_b32 s{s}, s{s}, 0x3fffff"]

out_of_line = []
def prologue():
    a = P.add
    if cfg.stamps: a(Ins("s_memrealtime s[94:95]", "op"))
    a(Ins("s_load_dwordx16 s[64:79], s[0:1], 0", "op"), Ins("s_load_dwordx8 s[80:87], s[0:1], 64", "op"),
      Ins("s_load_dwordx4 s[88:91], s[0:1], 96", "op"), Ins("s_load_dwordx2 s[92:93], s[0:1], 112", "op"))
    a("s_cmp_ge_u32 s2, 256", "s_cbranch_scc1 L_exit")
    a(f"s_getpc_b64 s[{S_TB}:{S_TB+1}]")
    a(label("L_pc"))
    a(f"s_mov_b32 s{S_TB+2}, L_codeend-L_pc", f"s_mov_b32 s{S_TB+3}, 0x20000", f"s_bfe_u32 s{sT0}, s2, 0x30003", f"s_lshl_b32 s{sT0}, s{sT0}, 13")
    a("v_lshrrev_b32 v1, 6, v0", "v_and_b32 v3, 15, v0", "v_and_b32 v2, 63, v0", "v_lshlrev_b32 v3, 7, v3", "v_lshl_or_b32 v4, v1, 11, v3")
    a(vm(f"buffer_load_dword a{A_DUM}, v4, {srd(S_TB)}, s{sT0} offen{NT('c')}", "dummy"))
    if cfg.stamps:
        a(f"v_accvgpr_write_b32 a{A_STAMP}, 0", f"v_accvgpr_write_b32 a{A_STAMP+1}, 0")
    a(f"s_and_b32 s{sT0}, s2, 3", f"v_readfirstlane_b32 s{sW}, v1")
    a(f"s_lshr_b32 s{sT1}, s2, 3", f"s_lshl_b32 s{sT0}, s{sT0}, 1", f"s_and_b32 s{sT2}, s{sT1}, 1", f"s_or_b32 s{sG}, s{sT0}, s{sT2}")
    a(f"s_lshr_b32 s{sRHO}, s{sT1}, 1", f"s_bfe_u32 s{sT2}, s2, 0x10002", f"s_lshl_b32 s{sT0}, s{sT2}, 4", f"s_or_b32 s{sRB}, s{sT0}, s{sRHO}")
    a(f"s_and_b32 s{sT0}, s2, 7", f"s_lshl_b32 s{sT2}, s{sT0}, 5", f"s_or_b32 s{sPP}, s{sT2}, s{sT1}")
    a(f"s_lshl_b32 s{sT0}, s{sT0}, 2", f"s_add_u32 s{sCP}, s{sT0}, s{sRHO}", f"s_and_b32 s{sT1}, s{sT1}, 0x19", f"s_mov_b32 s{sFLAG}, 0")
    a("v_lshrrev_b32 v4, 2, v0", "v_and_b32 v5, 3, v0", f"v_mul_u32_u24 v6, {8*6144}, v4", "v_lshlrev_b32 v5, 4, v5", f"s_lshl_b32 s{sT0}, s{sCP}, 6",
      f"v_add3_u32 v6, v6, v5, s{sT0}", "v_lshlrev_b32 v5, 4, v4", "v_lshlrev_b32 v7, 4, v2")
    a(f"s_lshl_b32 s{sT2}, s{sRB}, 2", f"s_add_u32 s{sT2}, s{sT2}, s{sW}", f"s_lshl_b32 s{sT2}, s{sT2}, 1", f"s_and_b32 s{sT0}, s{sG}, 1",
      f"s_or_b32 s{sT2}, s{sT2}, s{sT0}", f"s_lshl_b32 s{sT2}, s{sT2}, 13")
    a(wlg0())
    if cfg.stamps: a("s_lshl_b64 exec, 1, 63", f"v_accvgpr_write_b32 a{A_STAMP}, s94", "s_mov_b64 exec, -1")
    stamp("start")
    a(mk_srd(S_TB, 84, 1024), mk_srd(S_TA, 86, 512*6144), mk_srd(S_X, 64, 2097152))
    if cfg.touch:
        a(f"s_lshl_b32 s{sT0}, s{sPP}, 1", f"s_lshr_b32 s{sT3}, s{sW}, 1", f"s_add_u32 s{sT0}, s{sT0}, s{sT3}", f"s_mul_i32 s{sT0}, s{sT0}, 6144",
          f"s_and_b32 s{sT3}, s{sW}, 1", f"s_lshl_b32 s{sT3}, s{sT3}, 10", f"s_add_u32 s{sT0}, s{sT0}, s{sT3}", "v_and_b32 v8, 0x380, v3",
          vm(f"buffer_load_dword a{A_DUM+1}, v8, {srd(S_TA)}, s{sT0} offen", "dummy"))
    def xloads(tagged):
        o = []
        for i in range(16):
            if i and i % 4 == 0: o.append(op(f"s_xor_b32 s{sT2}, s{sT2}, {4096 if i % 8 else 12288}"))
            o.append(vm(f"buffer_load_dwordx4 {vr(XN+8*i+4, 4)}, v7, {srd(S_X)}, s{sT2} offen offset:{(i%4)*1024}{NT('x')}", f"x{i}" if tagged else "x"))
        return o
    rest = [mk_srd(S_WS, 92, WS_BYTES), mk_srd(S_DBG, 90, 256), mk_srd(S_WQ, 70, 4194304), mk_srd(S_K, 66, 4194304), mk_srd(S_V, 68, 4194304),
            mk_srd(S_WO, 72, 4194304), mk_srd(S_W1, 76, 512*3584), mk_srd(S_W2, 80, 1792*1024), mk_srd(S_OUT, 88, 2097152),
            f"s_mov_b64 s[{S_B1P}:{S_B1P+1}], s[78:79]", f"s_mov_b64 s[{S_B2P}:{S_B2P+1}], s[82:83]"]
    dpp = lambda r, rot: f"v_add_f32_dpp v{r}, v{r}, v{r} row_ror:{rot} row_mask:0xf bank_mask:0xf"
    xl = xloads(True)
    C0, SV, AC, T, RW = 8, 32, 40, 48, 64
    wqtouch = vm(f"buffer_load_dword a{A_DUM+2}, v12, {srd(S_WQ)}, s{sT0} offen{NT('q')}", "dummy")
    a(f"s_cmp_eq_u32 s{sT1}, 1", f"s_cselect_b32 s{sFLAG}, 1, 0", "s_cbranch_scc0 L_np1")
    P.rare_begin()
    a(vm(f"buffer_load_dwordx4 {vr(C0, 4)}, v5, {srd(S_TB)}, 0 offen{NT('m')}", "x"))
    for i in range(8):
        a(f"s_mov_b32 s{sT0}, {6144*i}", vm(f"buffer_load_dwordx4 {vr(RW+4*i, 4)}, v6, {srd(S_TA)}, s{sT0} offen{NT('m')}", "x"))
    a("s_branch L_j1")
    P.rare_end()
    a(label("L_np1"), xl[:9])
    a(mk_srd(S_WQ, 70, 4194304), "v_lshrrev_b32 v12, 3, v2", "v_and_b32 v13, 7, v2", "v_lshlrev_b32 v12, 13, v12", "v_lshl_or_b32 v12, v13, 7, v12",
      f"s_lshl_b32 s{sT0}, s{sRHO}, 2", f"s_add_u32 s{sT0}, s{sT0}, s{sW}", f"s_lshl_b32 s{sT0}, s{sT0}, 16", f"s_lshl_b32 s{sT1}, s{sG}, 10", f"s_add_u32 s{sT0}, s{sT0}, s{sT1}", wqtouch)
    a(label("L_j1"), rest)
    def producer():
        a(f"s_cmp_eq_u32 s{sFLAG}, 0", "s_cbranch_scc1 L_prodret")
        P.rare_begin()
        xq = xloads(False)[:9]
        a(f"s_lshl_b32 s{sT0}, s{sCP}, 7", f"s_add_u32 s{sT0}, s{S_WS}, s{sT0}", f"s_addc_u32 s{sT1}, s{S_WS+1}, 0")
        a(Ins(f"s_load_dwordx16 s[64:79], s[{sT0}:{sT1}], {WS_MODG}", "op"), Ins(f"s_load_dwordx16 s[80:95], s[{sT0}:{sT1}], {WS_MODG+64}", "op"))
        a("v_and_b32 v12, 3, v2", "v_bfe_u32 v13, v2, 4, 1", "v_lshrrev_b32 v14, 5, v2", "v_lshlrev_b32 v12, 5, v12", "v_lshlrev_b32 v13, 4, v13", "v_lshlrev_b32 v14, 3, v14")
        a(f"s_lshl_b32 s{sSPIN}, s{sW}, 7", "v_or_b32 v12, v12, v13", f"v_add3_u32 v12, v12, v14, s{sSPIN}", "v_and_b32 v13, 15, v2", "v_lshlrev_b32 v13, 3, v13")
        a(Ins("s_waitcnt vmcnt(8)", "xw"))
        for d in range(4): a(unpack(SV+2*d, SV+2*d+1, C0+d))
        for i in range(8): a(f"v_mul_f32 v{T+i}, {f32(-math.log2(math.e))}, v{SV+i}")
        for i in range(8): a(f"v_exp_f32 v{T+i}, v{T+i}")
        for i in range(8): a(f"v_add_f32 v{T+i}, 1.0, v{T+i}")
        for i in range(8): a(f"v_rcp_f32 v{T+i}, v{T+i}")
        for i in range(8): a(f"v_mul_f32 v{SV+i}, v{SV+i}, v{T+i}")
        for d in range(4): a(f"v_cvt_pk_bf16_f32 v{C0+d}, v{SV+2*d}, v{SV+2*d+1}")
        for d in range(4): a(unpack(SV+2*d, SV+2*d+1, C0+d))
        for i in range(8):
            a(Ins("s_waitcnt vmcnt(7)", "xw"))
            if xq[0].kind == "op": a(xq.pop(0))
            a(xq.pop(0))
            for c in range(4): a(unpack(T+2*c, T+2*c+1, RW+4*i+c))
            sel = "op_sel:[0,1] op_sel_hi:[1,1]" if i & 1 else "op_sel:[0,0] op_sel_hi:[1,0]"
            sel3 = "op_sel:[0,1,0] op_sel_hi:[1,1,1]" if i & 1 else "op_sel:[0,0,0] op_sel_hi:[1,0,1]"
            for c in range(4):
                if i == 0: a(f"v_pk_mul_f32 {vr(AC+2*c, 2)}, {vr(T+2*c, 2)}, {vr(SV+(i&~1), 2)} {sel}")
                else: a(f"v_pk_fma_f32 {vr(AC+2*c, 2)}, {vr(T+2*c, 2)}, {vr(SV+(i&~1), 2)}, {vr(AC+2*c, 2)} {sel3}")
        a(vm(f"buffer_load_dword a{A_DUM+2}, off, {srd(S_TB)}, 0", "x"))
        a(f"s_mov_b32 s{sSPIN}, 1", wlg0())
        for i in range(16):
            a(f"s_min_u32 s{sT0}, s{65+2*i}, 31", f"s_bitset1_b32 s{sSPIN}, s{sT0}", dpp(AC+(i&7), 4 if i < 8 else 8))
        a(f"s_ff0_i32_b32 s{sFLAG}, s{sSPIN}")
        for k in range(4): a(f"v_permlane16_swap_b32 v{AC+k}, v{AC+k+4}")
        for k in range(4): a(f"v_add_f32 v{AC+k}, v{AC+k}, v{AC+k+4}")
        a(f"v_mov_b32 v14, s{sFLAG}")
        for k in range(2): a(f"v_permlane32_swap_b32 v{AC+k}, v{AC+k+2}")
        for k in range(2): a(f"v_add_f32 v{AC+k}, v{AC+k}, v{AC+k+2}")
        a(lg(f"ds_write_b64 v12, {vr(AC, 2)}", "ms"))
        a(f"s_cmp_lg_u32 s{sW}, 0", "s_cbranch_scc1 L_noann")
        a("s_mov_b64 exec, 1", vm(f"buffer_store_byte v14, off, {srd(S_DBG)}, s{sPP} sc1", "x"), "s_mov_b64 exec, -1")
        a(label("L_noann"), wlg0(), "s_barrier")
        a(f"s_cmp_lg_u32 s{sW}, 3", "s_cbranch_scc1 L_prodret")
        for w in range(4): a(lg(f"ds_read_b64 {vr(T+2*w, 2)}, v13 offset:{128*w}", "mr"))
        a(f"v_mov_b32 v{AC+1}, s{sFLAG}", f"s_lshl_b32 s{sT0}, s{sCP}, 7", wlg0())
        a(f"v_pk_add_f32 {vr(T, 2)}, {vr(T, 2)}, {vr(T+2, 2)}", f"v_pk_add_f32 {vr(T+4, 2)}, {vr(T+4, 2)}, {vr(T+6, 2)}",
          f"v_pk_add_f32 {vr(T, 2)}, {vr(T, 2)}, {vr(T+4, 2)}", f"v_cvt_pk_bf16_f32 v{AC}, v{T}, v{T+1}")
        a("s_mov_b64 exec, 0xffff", vm(f"buffer_store_dwordx2 {vr(AC, 2)}, v13, {srd(S_WS)}, s{sT0} offen sc1", "x"), "s_mov_b64 exec, -1", "s_nop 0")
        P.rare_end()
        a(label("L_prodret"))
        stamp("pub")
    a("v_lshrrev_b32 v4, 4, v2", "v_and_b32 v5, 15, v2", "v_lshlrev_b32 v4, 16, v4", "v_lshlrev_b32 v5, 4, v5")
    a(f"s_lshl_b32 s{sT0}, s{sG}, 10", f"s_lshl_b32 s{sT1}, s{sW}, 8", f"s_add_u32 s{sT0}, s{sT0}, s{sT1}")
    a(f"v_add3_u32 v{V_WQ}, v4, v5, s{sT0}")
    for j in range(1, 8): a(f"v_add_u32 v{V_WQ+j}, {8192*j}, v{V_WQ}")
    a(f"s_mov_b32 s{sSELLO}, 0x05040100", f"s_mov_b32 s{sSELHI}, 0x07060302", f"s_lshl_b32 s{sT3}, s{sRHO}, 18")
    a("v_mov_b32 v19, v7")
    a(addr_early())
    producer()
    x2 = [Ins(x.text.replace(" v7,", " v19,"), x.kind, x.tag) for x in xl[9:]]
    pq = [x2[0:2]] + [[x] for x in x2[2:5]] + [x2[5:7]] + [[x] for x in x2[7:10]] + [[x] for x in wq_load(0, sT3)]
    ST = R[2]
    TT = 4
    for i in range(16):
        b = XN + 8*i
        a(wvm(f"x{i}"))
        pass
        a(pq.pop(0))
        for d in range(4): a(unpack(b+2*d, b+2*d+1, b+4+d))
        t = TT + 16*(i & 1)
        a(f"v_pk_add_f32 {vr(t, 2)}, {vr(b, 2)}, {vr(b+2, 2)}", f"v_pk_mul_f32 {vr(t+2, 2)}, {vr(b, 2)}, {vr(b, 2)}",
          f"v_pk_add_f32 {vr(t, 2)}, {vr(t, 2)}, {vr(b+4, 2)}", f"v_pk_fma_f32 {vr(t+2, 2)}, {vr(b+2, 2)}, {vr(b+2, 2)}, {vr(t+2, 2)}",
          f"v_pk_add_f32 {vr(t, 2)}, {vr(t, 2)}, {vr(b+6, 2)}", f"v_pk_fma_f32 {vr(t+2, 2)}, {vr(b+4, 2)}, {vr(b+4, 2)}, {vr(t+2, 2)}",
          f"v_add_f32 v{ST+i}, v{t}, v{t+1}", f"v_pk_fma_f32 {vr(t+2, 2)}, {vr(b+6, 2)}, {vr(b+6, 2)}, {vr(t+2, 2)}",
          f"v_add_f32 v{ST+16+i}, v{t+2}, v{t+3}")
    stamp("x_in")
    a("s_nop 0")
    for h in (0, 16):
        for i in range(8): a(f"v_permlane32_swap_b32 v{ST+h+i}, v{ST+h+i+8}")
    for h in (0, 16):
        for i in range(8): a(f"v_add_f32 v{ST+h+i}, v{ST+h+i}, v{ST+h+i+8}")
    for h in (0, 16):
        for i in range(4): a(f"v_permlane16_swap_b32 v{ST+h+i}, v{ST+h+i+4}")
    for h in (0, 16):
        for i in range(4): a(f"v_add_f32 v{ST+h+i}, v{ST+h+i}, v{ST+h+i+4}")
    a(adv(sT3))
    w1q = wq_load(1, sT3)
    for rot in (8, 4, 2, 1):
        for h in (0, 16):
            a(w1q.pop(0))
            for i in range(4): a(dpp(ST+h+i, rot))
    for i in range(4): a(f"v_mul_f32 v{ST+i}, {f32(1/512)}, v{ST+i}")
    for i in range(4): a(f"v_mul_f32 v{ST+4+i}, v{ST+i}, v{ST+i}")
    a(f"s_mov_b32 s{sT0}, {f32(1/512)}")
    for i in range(4): a(f"v_fma_f32 v{ST+4+i}, v{ST+16+i}, s{sT0}, -v{ST+4+i}")
    for i in range(4): a(f"v_max_f32 v{ST+4+i}, 0, v{ST+4+i}")
    for i in range(4): a(f"v_add_f32 v{ST+4+i}, {f32(1e-5)}, v{ST+4+i}")
    for i in range(4): a(f"v_rsq_f32 v{ST+4+i}, v{ST+4+i}")
    for i in range(4): a(f"v_mul_f32 v{ST+i}, -v{ST+i}, v{ST+4+i}")
    for G in range(4):
        for i in range(4):
            row = i + 4*G
            a(f"v_readlane_b32 s{64+2*row}, v{ST+4+i}, {16*G}", f"v_readlane_b32 s{65+2*row}, v{ST+i}, {16*G}")
    pass
    def poll(tag): return [vm(f"buffer_load_dwordx4 v[4:7], v1, {srd(S_WS)}, 0 offen sc1", tag), vm(f"buffer_load_ubyte v8, v3, {srd(S_DBG)}, 0 offen sc1", tag)]
    a("v_lshlrev_b32 v1, 4, v0", "v_and_b32 v3, 0xe0, v0", "v_bfe_u32 v4, v0, 3, 2", "v_lshl_or_b32 v3, v4, 1, v3", "v_or_b32 v3, 1, v3", poll("pl"))
    for i in range(16):
        for d in range(4):
            b = XN + 8*i + 2*d
            a(f"v_pk_fma_f32 {vr(b, 2)}, {vr(b, 2)}, s[{64+2*i}:{65+2*i}], s[{64+2*i}:{65+2*i}] op_sel:[0,0,1] op_sel_hi:[1,0,1]")
    a("v_lshrrev_b32 v23, 2, v2", f"v_subrev_u32 v23, s{sRHO}, v23", "v_and_b32 v23, 15, v23", "v_and_b32 v22, 1, v23", "v_lshlrev_b32 v23, 12, v23",
      "v_lshl_or_b32 v23, v22, 6, v23", "v_and_b32 v22, 3, v2", "v_lshl_or_b32 v23, v22, 8, v23", "v_lshl_or_b32 v23, v22, 4, v23",
      f"s_lshl_b32 s{sT0}, s{sW}, 3", f"s_and_b32 s{sT1}, s{sG}, 1", f"s_or_b32 s{sT0}, s{sT0}, s{sT1}", f"s_lshl_b32 s{sT0}, s{sT0}, 7", f"v_or_b32 v23, s{sT0}, v23")
    a(f"v_add_u32 v21, {L_E1}, v1", "v_lshlrev_b32 v20, 5, v2", f"v_add_u32 v20, {L_E1}, v20")
    pass
    a(f"s_mov_b32 s{sSPIN}, {SPIN}")
    a(f"s_cmp_ge_u32 s{sW}, 2", f"s_cselect_b32 s{sT2}, 1.0, 0", f"s_mov_b32 s{sWQOFF}, s{sT3}")
    stamp("ln1")
    chk = ["v_and_b32 v8, 31, v8", "v_cmp_ne_u32 vcc, v5, v8", f"v_cmp_ne_u32 s[{sT0}:{sT1}], v7, v8", f"v_cmp_eq_u32 s[{sEX}:{sEX+1}], 0, v8", "s_nop 1",
           f"s_or_b64 vcc, vcc, s[{sT0}:{sT1}]", f"s_or_b64 vcc, vcc, s[{sEX}:{sEX+1}]", "s_cbranch_vccz L_polld"]
    a(wvm("pl"), chk)
    P.rare_begin()
    a(label("L_poll"), poll("x"), wvm0(), chk, f"s_sub_u32 s{sSPIN}, s{sSPIN}, 1", f"s_cmp_lg_u32 s{sSPIN}, 0", "s_cbranch_scc1 L_poll")
    P.rare_end()
    a(label("L_polld"))
    stamp("mod_in")
    a(unpack(8, 9, 4), unpack(10, 11, 6))
    for i in range(4): a(f"v_add_f32 v{8+i}, s{sT2}, v{8+i}")
    a("v_cvt_pk_bf16_f32 v4, v8, v9", "v_cvt_pk_bf16_f32 v6, v10, v11", unpack(8, 9, 4), unpack(10, 11, 6))
    for i in range(4): a(f"v_mul_f32 v{8+i}, {f32(QSCALE)}, v{8+i}")
    a(lg("ds_write_b128 v21, v[8:11]", "gs"), wlg0(), "s_barrier")
    pass
    SA, GG = 4, 12
    a(lg(f"ds_read_b128 {vr(SA, 4)}, v20", "g"), lg(f"ds_read_b128 {vr(GG, 4)}, v20 offset:2048", "g"),
      lg(f"ds_read_b128 {vr(SA+4, 4)}, v20 offset:16", "g"), lg(f"ds_read_b128 {vr(GG+4, 4)}, v20 offset:2064", "g"), wlg0())
    a(adv(sWQOFF))
    vq = wq_load(cfg.depth-2, sWQOFF) + wq_load(cfg.depth-1, sWQOFF)
    for row in range(16):
        b = XN + 8*row
        if row: a(f"v_xor_b32 v{20+(row&1)}, {16*row}, v23")
        for d in range(4): a(f"v_pk_fma_f32 {vr(b+2*d, 2)}, {vr(b+2*d, 2)}, {vr(GG+2*d, 2)}, {vr(SA+2*d, 2)}")
        if row == 8: a(wlg("hw3"), adv(sWQOFF))
        a(vq.pop(0))
        for d in range(4): a(f"v_cvt_pk_bf16_f32 v{b+d}, v{b+2*d}, v{b+2*d+1}")
        a(lg(f"ds_write_b128 v{20+(row&1) if row else 23}, {vr(b, 4)}", f"hw{row}"))
    a("v_lshrrev_b32 v6, 4, v2", "v_xor_b32 v4, v2, v6", "v_lshlrev_b32 v4, 4, v4", "v_xor_b32 v5, 64, v4")
    a(f"s_lshl_b32 s{sW2K}, s{sW}, 11", f"s_lshl_b32 s{sW4K}, s{sW}, 12")
    a(wlg0(), wvm("wq0"), perms(0, 0), "s_barrier")
    stamp("h_done")

def early_touches():
    return ["v_and_b32 v240, 15, v2", "v_lshlrev_b32 v240, 7, v240",
            f"s_lshl_b32 s{sT0}, s{sRHO}, 2", f"s_add_u32 s{sT0}, s{sT0}, s{sW}", f"s_lshl_b32 s{sT0}, s{sT0}, 11", f"s_lshl_b32 s{sT1}, s{sG}, 19",
            f"s_add_u32 s{sT0}, s{sT0}, s{sT1}", f"s_add_u32 s{sT2}, s{sT0}, {1536*256}",
            vm(f"buffer_load_dword a{A_DUM+2}, v240, {srd(S_K)}, s{sT2} offen{NT('w')}", "dummy"),
            vm(f"buffer_load_dword a{A_DUM+1}, v240, {srd(S_V)}, s{sT2} offen{NT('w')}", "dummy"),
            "v_bfe_u32 v241, v2, 2, 2", "v_and_b32 v242, 3, v2", "v_mul_u32_u24 v241, 6144, v241", "v_lshl_add_u32 v241, v242, 7, v241", "v_lshlrev_b32 v242, 2, v0",
            f"s_and_b32 s{sT0}, s{sPP}, 31", f"s_lshl_b32 s{sT0}, s{sT0}, 2", f"s_add_u32 s{sT0}, s{sT0}, s{sW}", f"s_mul_i32 s{sT0}, s{sT0}, {4*6144}",
            f"s_lshr_b32 s{sT1}, s{sPP}, 5", f"s_lshl_b32 s{sT1}, s{sT1}, 9", f"s_add_u32 s{sT0}, s{sT0}, s{sT1}", f"s_add_u32 s{sT0}, s{sT0}, 2048",
            vm(f"buffer_load_dword a{A_DUM}, v241, {srd(S_TA)}, s{sT0} offen{NT('m')}", "dummy"),
            vm(f"buffer_load_dword a{A_MM+8}, v242, {srd(S_TB)}, 0 offen{NT('m')}", "c")]
def m2_loads():
    return [f"v_mul_u32_u24 v250, {2*6144}, v0", f"s_lshl_b32 s{sT2}, s{sPP}, 4", f"s_add_u32 s{sT2}, s{sT2}, 2048", f"s_add_u32 s{sT1}, s{sT2}, 6144",
            vm(f"buffer_load_dwordx4 {ar(A_MM, 4)}, v250, {srd(S_TA)}, s{sT2} offen{NT('m')}", "mm"), vm(f"buffer_load_dwordx4 {ar(A_MM+4, 4)}, v250, {srd(S_TA)}, s{sT1} offen{NT('m')}", "mm")]
def m2_calc():
    RW, SV, T, AC = 240, 248, 32, list(range(40, 48))
    dpp = lambda r, rot: f"v_add_f32_dpp v{r}, v{r}, v{r} row_ror:{rot} row_mask:0xf bank_mask:0xf"
    L2E = f32(-math.log2(math.e))
    o = [f"v_accvgpr_read_b32 v{T}, a{A_MM+8}"] + unpack(SV, SV+1, T) + [f"v_mul_f32 v{T}, {L2E}, v{SV}", f"v_mul_f32 v{T+1}, {L2E}, v{SV+1}", f"v_exp_f32 v{T}, v{T}", f"v_exp_f32 v{T+1}, v{T+1}",
         "GAP", f"v_add_f32 v{T}, 1.0, v{T}", f"v_add_f32 v{T+1}, 1.0, v{T+1}", f"v_rcp_f32 v{T}, v{T}", f"v_rcp_f32 v{T+1}, v{T+1}", "GAP",
         f"v_mul_f32 v{SV}, v{SV}, v{T}", f"v_mul_f32 v{SV+1}, v{SV+1}, v{T+1}", f"v_cvt_pk_bf16_f32 v{T}, v{SV}, v{SV+1}"] + unpack(SV, SV+1, T)
    o += ["MARK", wvm("mm")] + [f"v_accvgpr_read_b32 v{RW+i}, a{A_MM+i}" for i in range(8)]
    for r in range(2):
        for d in range(4): o += unpack(T+2*d, T+2*d+1, RW+4*r+d)
        for k in range(8):
            o.append(f"v_mul_f32 v{AC[k]}, v{T+k}, v{SV}" if r == 0 else f"v_fmac_f32 v{AC[k]}, v{T+k}, v{SV+1}")
    o += ["v_lshrrev_b32 v48, 4, v2", f"s_lshl_b32 s{sT0}, s{sW}, 5", f"s_add_u32 s{sT0}, s{sT0}, {L_E0}", f"v_lshl_add_u32 v48, v48, 3, s{sT0}"]
    o += [f"v_permlane32_swap_b32 v{AC[k]}, v{AC[k+4]}" for k in range(4)] + [f"v_add_f32 v{AC[k]}, v{AC[k]}, v{AC[k+4]}" for k in range(4)]
    o += ["v_and_b32 v7, 1, v2"]
    o += [f"v_permlane16_swap_b32 v{AC[k]}, v{AC[k+2]}" for k in range(2)] + [f"v_add_f32 v{AC[k]}, v{AC[k]}, v{AC[k+2]}" for k in range(2)]
    for rot in (8, 4, 2, 1): o += ["GAP", dpp(AC[0], rot), dpp(AC[1], rot)]
    o += ["GAP", lg(f"ds_write_b64 v48, {vr(AC[0], 2)}", "ms"), f"v_lshlrev_b32 v49, 4, v7", f"v_add_u32 v49, {L_E0}, v49", "v_lshlrev_b32 v7, 6, v7"]
    return o
def m2_publish():
    T = 128
    o = [lg(f"ds_read_b128 {vr(T+4*w, 4)}, v49 offset:{32*w}", "mr") for w in range(4)]
    o += [f"s_bfe_u32 s{sT0}, s{sPP}, 0x40002", f"s_lshl_b32 s{sT0}, s{sT0}, 8", f"s_lshr_b32 s{sT1}, s{sPP}, 6", f"s_lshl_b32 s{sT1}, s{sT1}, 4", f"s_add_u32 s{sT0}, s{sT0}, s{sT1}",
          f"s_and_b32 s{sT1}, s{sPP}, 1", f"s_lshl_b32 s{sT1}, s{sT1}, 7", f"s_add_u32 s{sT0}, s{sT0}, s{sT1}",
          f"s_bfe_u32 s{sT1}, s{sPP}, 0x10001", f"s_lshl_b32 s{sT1}, s{sT1}, 3", f"s_add_u32 s{sT0}, s{sT0}, s{sT1}", f"s_add_u32 s{sT0}, s{sT0}, {WS_M2}", wlg("mr")]
    for h in range(4): o += [f"v_add_f32 v{T+h}, v{T+h}, v{T+4+h}", f"v_add_f32 v{T+8+h}, v{T+8+h}, v{T+12+h}"]
    for h in range(4): o.append(f"v_add_f32 v{T+h}, v{T+h}, v{T+8+h}")
    o += [f"v_cvt_pk_bf16_f32 v{T}, v{T}, v{T+1}", f"v_cvt_pk_bf16_f32 v{T+1}, v{T+2}, v{T+3}",
          vm(f"buffer_store_dwordx2 {vr(T, 2)}, v7, {srd(S_WS)}, s{sT0} offen sc1", "m2s")]
    return o

def perms(t, c):
    b = R[t % 6]; F = FST[c & 1]
    o = []
    for par, sel in ((0, sSELLO), (1, sSELHI)):
        for m in range(4):
            o.append(f"v_perm_b32 v{F+4*par+m}, v{b+4*(2*m+1)+c}, v{b+4*(2*m)+c}, s{sel}")
    return o
def hreads(t):
    return [lg(f"ds_read_b128 {ar(A_HB+16*(t&1)+4*qt, 4)}, v{V_HR+(t&1)} offset:{t*4096+qt*1024}", f"h{t}") for qt in range(4)]
def kv_items(u, soff):
    s = u & 3
    tg = f"kv{u//2 & 1}"
    return [f"s_add_u32 m0, s{sW2K}, {L_K+8192*s}",
            vm(f"buffer_load_dwordx4 v{V_KD}, {srd(S_K)}, s{soff} offen{NT('k')} lds", tg),
            vm(f"buffer_load_dwordx4 v{V_KD+1}, {srd(S_K)}, s{soff} offen offset:1024{NT('k')} lds", tg),
            f"s_add_u32 m0, s{sW2K}, {L_V+8192*s}",
            vm(f"buffer_load_dwordx4 v{V_VD}, {srd(S_V)}, s{soff} offen{NT('k')} lds", tg),
            vm(f"buffer_load_dwordx4 v{V_VD+1}, {srd(S_V)}, s{soff} offen offset:1024{NT('k')} lds", tg)]
def kv_adv(): return [f"s_add_u32 s{sKV0}, s{sKV0}, 16384", f"s_add_u32 s{sKV1}, s{sKV1}, 16384"]

def fkey(dst, k, t1, t2):
    return [f"v_lshrrev_b32 v{t1}, 1, v{k}", f"v_xor_b32 v{t2}, v{t1}, v{k}", f"v_and_b32 v{t1}, 4, v{t1}", f"v_and_b32 v{t2}, 4, v{t2}",
            f"v_and_b32 v{dst}, 3, v{k}", f"v_lshl_or_b32 v{dst}, v{t2}, 1, v{dst}", f"v_or_b32 v{dst}, v{dst}, v{t1}"]

A_PK = 160
def addr_early():
    t0, t1, t2, t3, t4, d = 12, 13, 14, 15, 16, 17
    pk = lambda i: f"v_accvgpr_write_b32 a{A_PK+i}, v{d}"
    o = [f"v_lshrrev_b32 v{t0}, 4, v2", f"v_and_b32 v{t4}, 15, v2", f"s_lshl_b32 s{sT0}, s{sW}, 3", f"v_add_u32 v{t0}, s{sT0}, v{t0}"]
    for i in range(2):
        o += [f"v_add_u32 v{t3}, {4*i}, v{t0}", f"v_and_b32 v{t3}, 15, v{t3}"]
        o += fkey(d, t3, t1, t2)
        o += [f"v_xor_b32 v{d}, v{d}, v{t4}", f"v_lshlrev_b32 v{d}, 4, v{d}", f"v_lshl_or_b32 v{d}, v{t0}, 8, v{d}", pk(i)]
        o += [f"v_and_b32 v{t3}, 7, v{t3}", f"v_lshlrev_b32 v{t3}, 1, v{t3}", f"v_xor_b32 v{d}, v{t3}, v{t4}",
              f"v_lshlrev_b32 v{d}, 4, v{d}", f"v_lshl_or_b32 v{d}, v{t0}, 8, v{d}", pk(2+i)]
    o += fkey(t3, t4, t1, t2)
    o += [f"v_lshrrev_b32 v{t0}, 4, v2", f"v_lshlrev_b32 v{t1}, 2, v{t0}", f"v_xor_b32 v{t3}, v{t3}, v{t1}", f"v_lshlrev_b32 v{t3}, 4, v{t3}",
          f"v_lshl_or_b32 v{t3}, v{t4}, 8, v{t3}", f"v_add_u32 v{d}, {L_K}, v{t3}", pk(4)]
    o += [f"v_lshrrev_b32 v{t0}, 2, v2", f"v_and_b32 v{t1}, 7, v{t0}", f"v_and_b32 v{t2}, 3, v2", f"v_lshlrev_b32 v{t2}, 3, v{t2}",
          f"v_lshl_or_b32 v{t2}, v{t1}, 5, v{t2}", f"v_lshl_or_b32 v{t2}, v{t0}, 8, v{t2}", f"v_add_u32 v{d}, {L_V}, v{t2}", pk(5)]
    o += [f"v_mov_b32 v{t0}, 0x3f803f80"] + [f"v_accvgpr_write_b32 a{A_ONE+i}, v{t0}" for i in range(4)]
    o += [f"v_accvgpr_write_b32 a{A_SEN+i}, -1" for i in range(4)]
    o += [f"v_lshrrev_b32 v{t1}, 5, v2", f"v_and_b32 v{t2}, 7, v2", f"v_lshl_or_b32 v{t1}, v{t1}, 3, v{t2}",
          f"s_lshr_b32 s{sT0}, s{sRB}, 1", f"v_cmp_eq_u32 vcc, s{sT0}, v{t1}", f"s_and_b32 s{sT0}, s{sRB}, 1", f"s_lshl_b32 s{sT0}, s{sT0}, 4", f"s_lshl_b32 s{sT0}, 0x8080, s{sT0}",
          f"v_mov_b32 v{t2}, s{sT0}", f"v_cndmask_b32 v{t2}, 0, v{t2}, vcc", f"v_or_b32 v{t2}, 0x40404040, v{t2}", f"v_accvgpr_write_b32 a{A_MSK}, v{t2}"]
    o += [f"v_lshrrev_b32 v{t0}, 3, v2", f"v_lshrrev_b32 v{t1}, 4, v2", f"v_and_b32 v{t2}, 7, v2", f"v_lshlrev_b32 v{t1}, 1, v{t1}", f"v_xor_b32 v{t2}, v{t2}, v{t1}",
          f"v_lshlrev_b32 v{t2}, 4, v{t2}", f"v_accvgpr_write_b32 a{A_SW}, v{t2}", f"s_lshl_b32 s{sT0}, s{sW}, 8", f"v_lshl_or_b32 v{d}, v{t0}, 10, v{t2}", f"v_add_u32 v{d}, s{sT0}, v{d}", pk(6)]
    return o
def addr_setup():
    o = [f"v_accvgpr_read_b32 v{V_KD+i}, a{A_PK+i}" for i in range(4)] + ["MARK"]
    o += [f"v_accvgpr_read_b32 v{V_KR}, a{A_PK+4}", f"v_accvgpr_read_b32 v{V_VR}, a{A_PK+5}", f"v_accvgpr_read_b32 v253, a{A_PK+6}"]
    for s in range(1, 4): o += [f"v_xor_b32 v{V_KR+s}, {16*s}, v{V_KR}"]
    for dt in range(1, 8): o += [f"v_xor_b32 v{V_VR+dt}, {32*dt}, v{V_VR}"]
    o += [f"v_lshlrev_b32 v{V_PF}, 4, v2", f"s_lshl_b32 s{sT0}, s{sW}, 14", f"s_add_u32 s{sT0}, s{sT0}, {L_B}", f"v_add_u32 v1, s{sT0}, v{V_PF}"]
    return o

def scalar_setup():
    o = [f"s_lshl_b32 s{sKV0}, s{sG}, 19", f"s_add_u32 s{sKV0}, s{sKV0}, {1536*256}", f"s_add_u32 s{sKV1}, s{sKV0}, 8192"]
    o += [f"s_lshl_b32 s{sWOB}, s{sG}, 19", f"s_mul_i32 s{sW1B}, s{sG}, 448", f"s_mul_i32 s{sW2B}, s{sG}, {224*1024}"]
    o += [f"s_mul_i32 s{sTEAM}, s{sRB}, {8*MB_SZ}", f"s_add_u32 s{sTEAM}, s{sTEAM}, {WS_MB}",
          f"s_mul_i32 s{sEX}, s{sG}, {MB_SZ}", f"s_add_u32 s{sMB}, s{sTEAM}, s{sEX}",
          f"s_mul_i32 s{sEX}, s{sW}, {MB_W}", f"s_add_u32 s{sMB}, s{sMB}, s{sEX}", f"s_mov_b32 s{sPF}, s{sMB}", f"s_mov_b32 s{sBAD}, 0",
          f"s_mov_b32 s{sWOP}, s{sWOB}", f"s_mov_b32 s{sRING}, s{sW4K}", f"s_mov_b32 s{sRD}, 32768", f"s_or_b32 s{sFLAG}, s{sFLAG}, 0x40"]
    o += mk_srd(S_TA, S_B2P, 1024) + mk_srd(S_TB, S_B1P, 3584)
    o += [f"s_lshl_b32 s{sEX}, s{sRB}, 2", f"s_add_u32 s{sEX}, s{sEX}, s{sW}", f"s_lshl_b32 s{sEX}, s{sEX}, 3", f"s_add_u32 s{sEX}, s{sEX}, s{sG}",
          f"s_lshl_b32 s{sXROW}, s{sEX}, 11", f"s_lshl_b32 s{sB1O}, s{sW}, 7", f"s_add_u32 s{sB1O}, s{sB1O}, s{sW1B}", f"s_mov_b32 s{sM2O}, {WS_M2}"]
    return o

def warmups():
    return [f"v_and_b32 v20, 63, v0", f"v_min_u32 v21, 27, v20", f"v_lshlrev_b32 v21, 7, v21", f"s_lshl_b32 s{sT2}, s{sRHO}, 2", f"s_add_u32 s{sT2}, s{sT2}, s{sW}",
            f"s_mul_i32 s{sT1}, s{sT2}, 3584", f"s_add_u32 s{sT1}, s{sT1}, s{sW2B}",
            f"v_bfe_u32 v22, v20, 2, 3", f"v_mul_u32_u24 v22, 3584, v22", f"v_and_b32 v20, 3, v20", f"v_lshl_add_u32 v22, v20, 7, v22",
            f"s_mul_i32 s{sT2}, s{sT2}, {8*3584}", f"s_and_b32 s{sT0}, s{sW1B}, 0xffffff80", f"s_add_u32 s{sT2}, s{sT2}, s{sT0}",
            vm(f"buffer_load_dword a{A_DUM+2}, v22, {srd(S_W1)}, s{sT2} offen{NT('W')}", "dummy"),
            vm(f"buffer_load_dword a{A_DUM+1}, v21, {srd(S_W2)}, s{sT1} offen{NT('W')}", "dummy")]

def qproj():
    a = P.add
    a(hreads(0))
    mc = m2_calc(); k = mc.index("MARK")
    silu = [x.replace("v32", "v240").replace("v33", "v241") if isinstance(x, str) else x for x in mc[:k]]
    extra = early_touches() + [x for x in addr_setup() if x != "MARK"] + ["WAIT8", wvm("c")] + silu
    m2dot = mc[k+1:]
    scal = scalar_setup()
    tail_srd = mk_srd(S_TA, S_B2P, 1024) + mk_srd(S_TB, S_B1P, 3584)[:3]
    scal = [x for x in scal if x not in tail_srd]
    mmq = m2_loads() + tail_srd
    late = kv_items(0, sKV0) + kv_items(1, sKV1) + kv_adv() + kv_items(2, sKV0) + kv_items(3, sKV1) + kv_adv()
    a(wlg("h0"))
    for t in range(16):
        mf, gaps = [], [[] for _ in range(32)]
        for c in range(4):
            F = FST[c & 1]
            for par in range(2):
                for qt in range(4):
                    d = ar(A_QACC + ((2*c+par)*4+qt)*4, 4)
                    mf.append(f"{MF} {d}, {vr(F+4*par, 4)}, {ar(A_HB+16*(t&1)+4*qt, 4)}, {d if t else 0}")
        if t + cfg.depth < 16:
            ad = adv(sWQOFF); gaps[0].append(ad[0]); gaps[1].append(ad[1])
            for j, x in enumerate(wq_load(t+cfg.depth, sWQOFF)): gaps[4*j+2].append(x)
        for c in range(4):
            g0 = 8*c
            pm = perms(t, c+1) if c < 3 else perms(t+1, 0) if t < 15 else []
            for k in (0, 1, 3, 4): gaps[g0+k] += pm[:2]; pm = pm[2:]
        if t < 15:
            hr = hreads(t+1)
            gaps[5] += hr[:2]; gaps[7] += hr[2:]
            gaps[23].append(wvm(f"wq{t+1}")); gaps[31].append(wlg(f"h{t+1}"))
        free = list(range(8, 32))
        for k in range(2, 31):
            if scal and not any(isscalar(x) or isvm(x) for x in gaps[k]) and k % 8 in (0, 1, 3, 4): gaps[k].insert(0, scal.pop(0))
        if t == 12: fill(gaps, list(range(32)), mmq); assert not mmq
        if t >= 13: fill(gaps, [k for k in range(32) if (t > 13 or k >= 12) and k % 4 in (1, 2)], late)
        if extra and extra[0] == "WAIT8" and t >= 8: extra.pop(0)
        k = extra.index("WAIT8") if "WAIT8" in extra else len(extra)
        part = extra[:k]; fill(gaps, free, part); extra = part + extra[k:]
        if t >= 14:
            assert not extra
            fill(gaps, list(range(32)), m2dot)
        if t in (4, 8, 12): stamp(f"q{t}", True)
        a(raw(f"; MARK q{t}"))
        a(template(mf, gaps))
    assert not extra
    print("left after Q projection:", len(late), len(m2dot))
    a("s_nop 1", [x if x != "GAP" else "s_nop 1" for x in m2dot], late)
    a(wvm("kv0"), wlg0(), "s_barrier")
    stamp("qproj")

def KF(u, kt, s): return A_KF + 32*(u & 1) + 16*kt + 4*s
def VF(u, dt): return A_VF + 32*(u & 1) + 4*dt
def OA(dt, qt): return V_O + (dt*4 + qt)*4
def QF(s, qt): return V_Q + (s*4 + qt)*4
def kreads(u):
    return [lg(f"ds_read_b128 {ar(KF(u, kt, s), 4)}, v{V_KR+s} offset:{(u&3)*8192+kt*4096}", f"k{u&1}") for s in range(4) for kt in range(2)]
def vreads(u):
    return [lg(f"ds_read_b64_tr_b16 {ar(VF(u, dt)+2*hh, 2)}, v{V_VR+dt} offset:{(u&3)*8192+hh*4096}", f"v{u&1}") for dt in range(8) for hh in range(2)]
def qk(n):
    u, qt = divmod(n, 4)
    o = []
    for s in range(4):
        for kt in range(2):
            d = vr(V_S + 8*(n & 1) + 4*kt, 4)
            o.append(f"{MF} {d}, {ar(KF(u, kt, s), 4)}, {vr(QF(s, qt), 4)}, {d if s else vr(V_NM+4*qt, 4)}")
    return o
def pv(n):
    u, qt = divmod(n, 4)
    p = vr(V_P + 4*(n & 1), 4)
    o = []
    for dt in range(8):
        d = vr(OA(dt, qt), 4)
        o.append(f"{MF} {d}, {ar(VF(u, dt), 4)}, {p}, {d if u else 0}")
    d = ar(A_L + 4*qt, 4)
    o.append(f"{MF} {d}, {ar(A_ONE, 4)}, {p}, {d if u else 0}")
    return o
def sreg(n, i):
    if n < 4: return OA(2*n + (i >> 2), 3) + (i & 3)
    return V_S + 8*(n & 1) + i
def expo(n):
    e = [f"v_exp_f32 v{sreg(n, i)}, v{sreg(n, i)}" for i in range(8)]
    c = [f"v_cvt_pk_bf16_f32 v{V_P+4*(n&1)+i}, v{sreg(n, 2*i)}, v{sreg(n, 2*i+1)}" for i in range(4)]
    pre = [f"v_add_f32 v{sreg(n, i)}, v{sreg(n, i)}, v{V_NM+4*n}" for i in range(8)] if n < 4 else []
    return pre, e, c
def frag_reads(n):
    u, ph = n // 4 + 1, n % 4
    if u > 15: return []
    kr, vrd = kreads(u), vreads(u)
    if n < 4: kr = []
    if ph < 2: return kr[4*ph:4*ph+4] + vrd[2*ph:2*ph+2]
    return vrd[4+6*(ph-2):10+6*(ph-2)]

MU_TEMPLATES = [
    dict(e=[0,2,4,6,8,10,12,14], c=[9,9,16,16], d=[1,1,3,3,5,5], w=15),
    dict(e=[0,2,4,6,8,10,12,14], c=[7,7,15,15], d=[1,1,3,3,5,5], w=13),
    dict(e=[0,2,4,6,8,10,12,14], c=[9,9,16,16], d=[1,1,5,5,11,11], w=15),
    dict(e=[0,2,4,6,9,11,13,15], c=[8,8,16,16], d=[1,1,3,3,5,5], w=14),
    dict(e=[0,1,3,4,7,8,10,11], c=[6,6,13,13], d=[2,2,5,5,9,9], w=15),
    dict(e=[0,2,4,6,8,10,12,14], c=[11,11,16,16], d=[1,1,3,3,7,7], w=15),
]
carry = []
def muslot(n, q=None, tail=()):
    has_qk = 4 <= n + 2 <= 63
    mf = (qk(n+2) if has_qk else []) + pv(n)
    pre, e, c = expo(n+1) if n + 1 <= 63 else ([], [], [])
    ds = frag_reads(n)
    endw = []
    if n % 4 == 1 and n + 3 <= 63: endw.append(wlg(f"k{((n+3)//4) & 1}"))
    if n % 4 == 3 and n < 63: endw.append(wlg(f"v{((n+1)//4) & 1}"))
    if has_qk and not pre and e:
        gaps = [[] for _ in range(17)]
        T = MU_TEMPLATES[cfg.mu]
        for i in range(8): gaps[T["e"][i]].append(e[i])
        for k, x in carry: gaps[k].append(x)
        del carry[:]
        for i in range(4):
            if T["c"][i] >= 0: gaps[T["c"][i]].append(c[i])
            elif n % 16 == 3 or n >= 61: gaps[16].append(c[i])
            else: carry.append((-T["c"][i], c[i]))
        for k in sorted(T["d"]):
            if ds: gaps[k].append(ds.pop(0))
        assert not ds
        if not tail: gaps[14] = endw + gaps[14]
        if q is not None: fill(gaps, [k for k in range(17) if not (tail and k == 16)], q)
        if tail: gaps[16] += list(tail)
        return template(mf, gaps)
    ev = list(pre)
    for i in range(len(e)):
        ev.append(e[i])
        if i >= 2 and i % 2 == 0: ev.append(c[i//2 - 1])
    if c: ev += ["s_nop 0", c[3]]
    oth = ds + (q or [])
    if q is not None: del q[:]
    out = [] if has_qk else [op("s_nop 1")]
    ev = [op(x) if isinstance(x, str) else x for x in ev]
    oth = [op(x) if isinstance(x, str) else x for x in oth]
    for k, m in enumerate(mf):
        out.append(op(m))
        left = len(mf) - k
        cap = max(2, -(-(sum(x.cost for x in ev) + sum(x.cost for x in oth)) // left))
        used = 0
        while used < cap and (ev or oth):
            src = None
            for L in ((ev, oth) if k % 2 == 0 else (oth, ev)):
                if L and used + L[0].cost <= cap:
                    if L is ev and L[0].text.startswith("v_cvt") and out[-1].text.startswith("v_exp"): continue
                    src = L; break
            if src is None: break
            x = src.pop(0); out.append(x); used += x.cost
    return out + ev + oth + endw + [op(x) if isinstance(x, str) else x for x in tail]

def stage_dma(sig):
    st = STAGES[sig % 6]
    if sig < 32:
        p, t = divmod(sig, 16); S, vb, base, off = S_WO, V_WD, sWOB, t*32768 + 128*p
    elif sig < 48:
        pos = sig - 32; tb = 4*((pos >> 1) & 3) + 2*(pos >> 3) + (pos & 1)
        S, vb, base, off = S_W1, V_W1D, sW1B, tb*32*3584
    else:
        p, t = divmod(sig - 48, 7); S, vb, base, off = S_W2, V_WD, sW2B, t*32768 + 128*p
    return [f"s_add_u32 s{sT3}, s{base}, {off}", f"s_add_u32 m0, s{sW4K}, {st}"] + \
           [vm(f"buffer_load_dwordx4 v{vb+i}, {srd(S)}, s{sT3} offen offset:{1024*i}{NT('r')} lds", f"st{sig}") for i in range(4)]

V_W1D, V_TR, V_LIN, V_PS, V_GA = 17, 8, 16, 21, 22
def normalize(qt):
    rl = V_NM + 2*qt
    o = [f"v_accvgpr_read_b32 v{rl}, a{A_L+4*qt}", f"v_cmp_nle_f32 vcc, v{rl}, v7", f"v_rcp_f32 v{rl}, v{rl}", "s_nop 0",
         f"s_or_b32 s{sBAD}, s{sBAD}, vcc_lo", f"s_or_b32 s{sBAD}, s{sBAD}, vcc_hi"]
    for u in range(4):
        x, y = OA(2*u, qt), OA(2*u+1, qt)
        for b in (x, x+2, y, y+2): o.append(f"v_pk_mul_f32 {vr(b, 2)}, {vr(b, 2)}, {vr(rl, 2)} op_sel_hi:[1,0]")
        o += [f"v_cvt_pk_bf16_f32 v{x}, v{x}, v{x+1}", f"v_cvt_pk_bf16_f32 v{x+1}, v{x+2}, v{x+3}",
              f"v_cvt_pk_bf16_f32 v{x+2}, v{y}, v{y+1}", f"v_cvt_pk_bf16_f32 v{x+3}, v{y+2}, v{y+3}"]
        o.append(lg(f"ds_write_b128 v1, {vr(x, 4)} offset:{u*4096+qt*1024}", "ow"))
    return o

def param_loads():
    x, y, z, c = 20, 21, 22, 23
    o = [f"v_bfe_u32 v{x}, v0, 4, 2", f"v_bfe_u32 v{y}, v0, 3, 1", f"v_and_b32 v{z}, 3, v0",
         f"v_lshlrev_b32 v{c}, 10, v{x}", f"v_lshl_or_b32 v{c}, v{y}, 8, v{c}", f"v_lshl_or_b32 v{c}, v{z}, 6, v{c}"]
    for p in range(2):
        for vec in range(4):
            o.append(vm(f"buffer_load_dwordx4 {ar(A_M2+16*p+4*vec, 4)}, v{c}, {srd(S_WS)}, s{sM2O} offen offset:{512*p+16*vec} sc1", "par"))
    o += [f"v_lshlrev_b32 v{c}, 8, v{x}", f"v_lshl_or_b32 v{c}, v{y}, 6, v{c}", f"v_lshl_or_b32 v{c}, v{z}, 3, v{c}", f"v_lshlrev_b32 v{x}, 3, v{x}"]
    for p in range(2):
        for h in range(2):
            o.append(vm(f"buffer_load_dwordx2 {ar(A_B2+4*p+2*h, 2)}, v{c}, {srd(S_TA)}, 0 offen offset:{128*p+32*h}{NT('p')}", "par"))
    o += [f"v_bfe_u32 v{y}, v0, 2, 1", f"v_lshl_or_b32 v{y}, v{y}, 10, v{c}"]
    for e in range(4):
        o.append(vm(f"buffer_load_dwordx2 {ar(A_B1+2*e, 2)}, v{x}, {srd(S_TB)}, s{sB1O} offen offset:{32*e}{NT('p')}", "par"))
    for p in range(2):
        for h in range(2):
            o.append(vm(f"buffer_load_dwordx2 {ar(A_XR+4*p+2*h, 2)}, v{y}, {srd(S_X)}, s{sXROW} offen offset:{128*p+32*h}{NT('p')}", "par"))
    o += [f"v_accvgpr_write_b32 a{A_OV}, v{y}"]
    return o

def flag_load(tmp, tag): return [f"v_lshlrev_b32 v{tmp}, 2, v0", f"v_and_b32 v{tmp}, 0xff, v{tmp}", vm(f"buffer_load_dword a{A_FL}, v{tmp}, {srd(S_DBG)}, 0 offen sc1", tag)]
def flag_check(tmp):
    a = P.add
    chk = [f"v_accvgpr_read_b32 v{tmp}, a{A_FL}", f"v_accvgpr_read_b32 v{tmp+1}, a{A_MSK}", f"v_and_b32 v{tmp}, v{tmp+1}, v{tmp}", f"v_cmp_ne_u32 vcc, v{tmp+1}, v{tmp}", "s_cbranch_vccz L_flagok"]
    a(wvm("fl"), chk)
    P.rare_begin()
    a(f"s_mov_b32 s{sSPIN}, {SPIN}", label("L_flagsp"), flag_load(tmp, "x"), wvm0(), chk,
      f"s_sub_u32 s{sSPIN}, s{sSPIN}, 1", f"s_cmp_lg_u32 s{sSPIN}, 0", "s_cbranch_scc1 L_flagsp")
    P.rare_end()
    a(label("L_flagok"))
def prefill(n):
    if cfg.nopf: return [f"s_nop 0" for i in range(n)] + [f"s_add_u32 s{sPF}, s{sPF}, {1024*n}"]
    o = [vm(f"buffer_store_dwordx4 {ar(A_SEN, 4)}, v{V_PF}, {srd(S_WS)}, s{sPF} offen offset:{1024*i} sc1", "pf") for i in range(n)]
    return o + [f"s_add_u32 s{sPF}, s{sPF}, {1024*n}"]

def attention():
    a = P.add
    a(kreads(0))
    a(m2_publish())
    T = 32
    def conv(qt):
        o = []
        for s in range(4):
            for mm in (0, 2):
                t = T + 4*((2*s + mm//2) & 3)
                for k in range(4): o.append(f"v_accvgpr_read_b32 v{t+k}, a{A_QACC+((2*mm+k)*4+qt)*4+s}")
                o += [f"v_cvt_pk_bf16_f32 v{QF(s, qt)+mm}, v{t}, v{t+1}", f"v_cvt_pk_bf16_f32 v{QF(s, qt)+mm+1}, v{t+2}, v{t+3}"]
        return o
    def s0(qt):
        o = []
        for s in range(4):
            for kt in range(2):
                d = vr(OA(2*qt+kt, 3), 4)
                o.append(f"{MF} {d}, {ar(KF(0, kt, s), 4)}, {vr(QF(s, qt), 4)}, {d if s else 0}")
        return o
    def maxred(qt):
        r = [sreg(qt, i) for i in range(8)]
        m, t = V_NM + 4*qt, V_NM + 4*qt + 1
        return [f"v_max3_f32 v{m}, v{r[0]}, v{r[1]}, v{r[2]}", f"v_max3_f32 v{t}, v{r[3]}, v{r[4]}, v{r[5]}", f"v_max3_f32 v{m}, v{m}, v{r[6]}, v{r[7]}",
                f"v_max_f32 v{m}, v{m}, v{t}", f"v_mov_b32 v{t}, v{m}", "s_nop 1", f"v_permlane16_swap_b32 v{m}, v{t}", f"v_max_f32 v{m}, v{m}, v{t}",
                f"v_mov_b32 v{t}, v{m}", "s_nop 1", f"v_permlane32_swap_b32 v{m}, v{t}", f"v_max_f32 v{m}, v{m}, v{t}",
                f"v_mul_f32 v{m}, -1.0, v{m}", f"v_mov_b32 v{m+1}, v{m}", f"v_mov_b32 v{m+2}, v{m}", f"v_mov_b32 v{m+3}, v{m}"]
    a(f"v_mov_b32 v{V_WD}, v253")
    for i in range(1, 4): a(f"v_add_u32 v{V_WD+i}, {7168*i}, v253")
    a(conv(0), kreads(1), wlg("k0"))
    for qt in range(4):
        fl = conv(qt+1) if qt < 3 else []
        a(interleave(s0(qt), fl, cap=6))
        if qt == 3: a(vreads(0))
        if qt >= 1: a(maxred(qt-1))
    a("v_and_b32 v7, 15, v0", "v_min_u32 v7, 10, v7", "v_lshlrev_b32 v7, 7, v7", f"s_lshl_b32 s{sT2}, s{sRHO}, 2", f"s_add_u32 s{sT2}, s{sT2}, s{sW}",
      f"s_lshl_b32 s{sT0}, s{sT2}, 13", f"s_add_u32 s{sIDX}, s{sT0}, s{sWOB}")
    a(maxred(3))
    pre, e, c = expo(0)
    a(pre, e, "s_nop 0", c, wlg("v0"))
    stamp("conv")
    def bar(tag, nxt=()): return [wlg0(), wvm(tag), op("s_barrier")] + list(nxt)
    pf = prefill(4)
    a(muslot(0, pf[:1]), muslot(1, pf[1:2]), muslot(2, pf[2:3]))
    a(muslot(3, pf[3:], tail=[f"s_mov_b32 s{sLOOP}, 3"]))
    a(raw(".p2align 6"))
    a(label("L_attn"))
    P.loop_begin(3)
    for half in range(2):
        u0 = 4 + 2*half
        if half == 0: a(bar("kv1"))
        kv = kv_items(u0, sKV0) + kv_items(u0+1, sKV1)
        a(kv.pop(0))
        q = kv + kv_adv()
        st = prefill(4)
        wp = [vm(f"buffer_load_dwordx4 v{V_WD+i}, {srd(S_WO)}, s{sWOP} offen offset:{1024*i}{NT('r')} lds", "wop") for i in range(4)]
        q += [vm(f"buffer_load_dword a{A_DUM}, v7, {srd(S_WO)}, s{sIDX} offen{NT('W')}", "dummy"), f"s_add_u32 s{sIDX}, s{sIDX}, 1408"]
        q += [f"s_add_u32 m0, s{sRING}, {16384*half}", st[0], wp[0], "BREAK", st[1], wp[1], "BREAK", st[2], wp[2], "BREAK", st[3], wp[3], st[4], f"s_add_u32 s{sWOP}, s{sWOP}, 32768"]
        if half == 1: q += [f"s_add_u32 s{sRING}, s{sRING}, s{sRD}", f"s_mul_i32 s{sRD}, s{sRD}, 3", f"s_sub_u32 s{sLOOP}, s{sLOOP}, 1"]
        for j in range(8):
            n = 4 + 8*half + j
            tail = ()
            if j == 7 and half == 0: tail = bar("kv0")
            if j == 7 and half == 1: tail = [f"s_cmp_lg_u32 s{sLOOP}, 0"]
            k = q.index("BREAK") if "BREAK" in q else len(q)
            part = q[:k]
            a(muslot(n, part, tail))
            q = part + (q[k:] if part else q[k+1:])
            if half == 0 and j == 3:
                a(f"s_lshl_b32 s{sT0}, s{sW}, 2", f"s_add_u32 s{sT0}, s{sT0}, s{sLOOP}", f"s_cmp_ge_u32 s{sT0}, 3", "s_cbranch_scc1 L_noflag")
                P.rare_begin()
                a("s_mov_b64 exec, 1", f"v_accvgpr_write_b32 a{A_FL}, s{sFLAG}",
                  vm(f"buffer_store_byte a{A_FL}, off, {srd(S_DBG)}, s{sPP} sc1", "x"), "s_mov_b64 exec, -1", f"s_or_b32 s{sFLAG}, s{sFLAG}, 0x80")
                P.rare_end()
                a(label("L_noflag"))
        assert not q, q
    a("s_cbranch_scc1 L_attn")
    P.loop_end()
    stamp("aloop", True)
    a(bar("kv1"))
    pf = prefill(3) + prefill(3)
    q = flag_load(20, "fl") + [f"v_mov_b32 v7, {f32(2.0**30) if not cfg.force_fallback else f32(1e-3)}"] + warmups()
    nrm = []
    for n in range(52, 64):
        tail = [wlg0(), op("s_barrier")] if n == 59 else ()
        if n == 55:
            assert not q
            flag_check(20)
            q = param_loads()
            for k, x in zip((8, 12, 16, 17, 24, 30, 36, 37), pf): q.insert(k, x)
        if n >= 61: nrm += normalize(n - 61)
        if n >= 62:
            take = nrm[:22]; nrm = nrm[22:]
            a(muslot(n, take))
        else:
            a(muslot(n, q, tail))
    assert not q
    a(nrm, "s_nop 2", normalize(3))
    a(f"s_cmp_lg_u32 s{sBAD}, 0", "s_cbranch_scc1 L_fallback")
    a(label("L_fb_ret"))
    a(ring_addr_setup())
    a(areads(0))
    a(wvm("wop", "pf", "par"), wlg0(), "s_barrier")
    stamp("attn")

A_AF, A_BF = 0, 32
ACCX, ACCY = 128, 192
G0, G1 = 64, 96
V_YR, V_YW, V_LB = 23, 24, 7
V_X1, V_B1F = 32, 48
AFB = [0, 16, 160, 176, 192, 208, 224]
def afb(sig):
    if 26 <= sig < 32: return AFB[(sig - 26 + (26 & 1)) if sig < 28 else sig - 26]
    if sig >= 48: return AFB[(sig - 48) % 7]
    return AFB[sig & 1]
def areads(sig):
    st = STAGES[sig % 6]
    hi = st >= L_E0
    off = st - (L_E0 if hi else 0)
    return [lg(f"ds_read_b64_tr_b16 {ar(afb(sig)+4*e+2*hh, 2)}, v{V_TR+4*hi+e} offset:{off+2048*hh}", f"a{sig}") for e in range(4) for hh in range(2)]
def bfb(sig, qt): return A_BF + 16*(sig & 1) + 4*qt
def breads(sig, qts=range(4)):
    if sig < 32: t, v = sig % 16, V_LB
    elif sig < 48: t, v = sig - 32, V_YR
    else: t, v = (sig - 48) % 7, V_LB
    return [lg(f"ds_read_b128 {ar(bfb(sig, qt), 4)}, v{v} offset:{t*4096+qt*1024}", f"a{sig}") for qt in qts]
def mfmas(sig, acc, first, cinit, qts):
    mf = []
    for e in range(4):
        for qt in qts:
            d = vr(acc + (e*4+qt)*4, 4)
            c = d if not first else (0 if cinit is None else vr(cinit + 4*e, 4))
            mf.append(f"{MF} {d}, {ar(afb(sig)+4*e, 4)}, {ar(bfb(sig, qt), 4)}, {c}")
    return mf
def gstep(sig, acc, first, cinit=None, q=None, nxt=True, dma=True, nq=range(4), end=()):
    mf = mfmas(sig, acc, first, cinit, range(4))
    gaps = [[] for _ in range(16)]
    if nxt:
        t_, b_ = areads(sig+1), breads(sig+1, nq) + [None]*4
        gaps[0] = t_[0:2]; gaps[1] = t_[2:4]
        for i, k in enumerate((3, 4, 5, 7)): gaps[k] = [t_[4+i]] + ([b_[i]] if b_[i] else [])
    if dma:
        d = stage_dma(sig+6)
        gaps[0].insert(0, d[0]); gaps[1].insert(0, d[1])
        for i, k in enumerate((2, 6, 10, 14)): gaps[k] = [d[2+i]]
    if nxt: gaps[15] = [wvm(f"st{sig+2}"), wlg(f"a{sig+1}")]
    gaps[15] += list(end)
    if q: fill(gaps, list(range(16)) if not nxt else [8, 9, 11, 12, 13] if dma else [2, 6, 8, 9, 10, 11, 12, 13, 14], q)
    return template(mf, gaps)
def hstep(sig, acc, first, half, rd, dq=None, q=None):
    mf = mfmas(sig, acc, first, None, (2*half, 2*half+1))
    gaps = [[] for _ in range(8)]
    rd = list(rd)
    tags = {x.tag for x in rd if x.kind == "lg"}
    for k in (0, 1, 3, 4, 5):
        while rd and rd[0].kind != "lg": gaps[k].append(rd.pop(0))
        gaps[k] += rd[:2]; rd = rd[2:]
    assert not rd
    if tags: gaps[7] = [wlg(*tags)]
    if dq:
        for k in (2, 6):
            j = k - 2
            while dq and not isvm(dq[0]):
                gaps[j].insert(0, dq.pop(0)); j += 1
            if dq: gaps[k].append(dq.pop(0))
    if q: fill(gaps, list(range(8)), q)
    return template(mf, gaps)

def pack_store(acc, p, mboff, halves=(0, 1), tag="ps"):
    o = []
    for qt in [2*h + i for h in halves for i in range(2)]:
        if qt % 2 == 0: o.append(f"s_add_u32 s{sPST}, s{sMB}, {mboff+8192*p+2048*qt}")
        for b in range(2):
            x, y = acc + (2*b*4+qt)*4, acc + ((2*b+1)*4+qt)*4
            o += [f"v_cvt_pk_bf16_f32 v{x}, v{x}, v{x+1}", f"v_cvt_pk_bf16_f32 v{x+1}, v{x+2}, v{x+3}",
                  f"v_cvt_pk_bf16_f32 v{x+2}, v{y}, v{y+1}", f"v_cvt_pk_bf16_f32 v{x+3}, v{y+2}, v{y+3}",
                  vm(f"buffer_store_dwordx4 {vr(x, 4)}, v{V_PS}, {srd(S_WS)}, s{sPST} offen offset:{(qt&1)*2048+b*1024} sc1", tag)]
    return o

def gather_loads(buf, n, voff, soffs, tag):
    o = []
    for i in range(n):
        o += [f"s_add_u32 s{sGAT}, s{sTEAM}, {soffs(i)}", vm(f"buffer_load_dwordx4 {vr(buf+4*i, 4)}, v{voff}, {srd(S_WS)}, s{sGAT} offen sc1", tag)]
    return o
def allmax(buf, n, tmp):
    o = [f"v_max3_u32 v{tmp}, v{buf}, v{buf+1}, v{buf+2}", f"v_max_u32 v{tmp+1}, v{buf+3}, v{buf+4}"]
    k = 5
    while k + 3 < 4*n:
        o += [f"v_max3_u32 v{tmp}, v{tmp}, v{buf+k}, v{buf+k+1}", f"v_max3_u32 v{tmp+1}, v{tmp+1}, v{buf+k+2}, v{buf+k+3}"]; k += 4
    assert 4*n - k == 3
    return o + [f"v_max3_u32 v{tmp}, v{tmp}, v{buf+k}, v{buf+k+1}", f"v_max3_u32 v{tmp}, v{tmp}, v{tmp+1}, v{buf+k+2}", f"v_cmp_eq_u32 vcc, -1, v{tmp}"]
def gather_check(buf, n, voff, soffs, tag, tmp, reduced=False):
    a = P.add
    ok, again = newlabel("gok"), newlabel("gre")
    if cfg.stamps and cfg.fine: a(f"s_mov_b32 s{sSPIN}, {SPIN+1}")
    if not reduced:
        a(wvm(tag))
        stamp("w_" + tag + str(uid[0]), True)
        a(allmax(buf, n, tmp))
    a(f"s_cbranch_vccz {ok}")
    P.rare_begin()
    a(f"s_mov_b32 s{sSPIN}, {SPIN}", label(again))
    if cfg.sleep: a(f"s_sleep {cfg.sleep}")
    for i in range(n):
        sk = newlabel("gsk")
        b = buf + 4*i
        a(f"v_max3_u32 v{tmp}, v{b}, v{b+1}, v{b+2}", f"v_max_u32 v{tmp}, v{tmp}, v{b+3}", f"v_cmp_eq_u32 vcc, -1, v{tmp}", f"s_cbranch_vccz {sk}",
          f"s_add_u32 s{sGAT}, s{sTEAM}, {soffs(i)}", vm(f"buffer_load_dwordx4 {vr(b, 4)}, v{voff}, {srd(S_WS)}, s{sGAT} offen sc1", "x"), label(sk))
    a(wvm0(), allmax(buf, n, tmp), f"s_cbranch_vccz {ok}", f"s_sub_u32 s{sSPIN}, s{sSPIN}, 1", f"s_cmp_lg_u32 s{sSPIN}, 0", f"s_cbranch_scc1 {again}")
    P.rare_end()
    a(label(ok))
    if cfg.stamps and cfg.fine:
        k = len(stamp_names); stamp_names.append("N_" + tag + str(uid[0]))
        a(f"s_sub_u32 s0, {SPIN+2}, s{sSPIN}", f"s_lshl_b64 exec, 1, {k}", f"v_accvgpr_write_b32 a{A_STAMP}, s0", f"v_accvgpr_write_b32 a{A_STAMP+1}, s0", "s_mov_b64 exec, -1")

def sum8(buf, dst, tmp):
    o = []
    for g in range(8):
        for d in range(4):
            if g == 0: o += unpack(dst+2*d, dst+2*d+1, buf+d)
            else:
                t = tmp + 2*d
                o += unpack(t, t+1, buf+4*g+d)
        if g:
            for d in range(4): o.append(f"v_pk_add_f32 {vr(dst+2*d, 2)}, {vr(dst+2*d, 2)}, {vr(tmp+2*d, 2)}")
    return o

def aunpack(dst, asrc, n, tmp):
    o = [f"v_accvgpr_read_b32 v{tmp+i}, a{asrc+i}" for i in range(n)]
    for i in range(n): o += unpack(dst+2*i, dst+2*i+1, tmp+i)
    return o

def rowstats(x, t):
    o = [f"v_pk_add_f32 {vr(t, 2)}, {vr(x, 2)}, {vr(x+2, 2)}", f"v_pk_mul_f32 {vr(t+2, 2)}, {vr(x, 2)}, {vr(x, 2)}",
         f"v_pk_add_f32 {vr(t+4, 2)}, {vr(x+4, 2)}, {vr(x+6, 2)}", f"v_pk_mul_f32 {vr(t+6, 2)}, {vr(x+2, 2)}, {vr(x+2, 2)}"]
    for k in range(4, 16, 2):
        if k >= 8: o.append(f"v_pk_add_f32 {vr(t+4*((k>>1)&1), 2)}, {vr(t+4*((k>>1)&1), 2)}, {vr(x+k, 2)}")
        o.append(f"v_pk_fma_f32 {vr(t+2+4*((k>>1)&1), 2)}, {vr(x+k, 2)}, {vr(x+k, 2)}, {vr(t+2+4*((k>>1)&1), 2)}")
    o += [f"v_pk_add_f32 {vr(t, 2)}, {vr(t, 2)}, {vr(t+4, 2)}", f"v_pk_add_f32 {vr(t+2, 2)}, {vr(t+2, 2)}, {vr(t+6, 2)}",
          f"v_add_f32 v{t}, v{t}, v{t+1}", f"v_add_f32 v{t+1}, v{t+2}, v{t+3}"]
    for m in ("quad_perm:[1,0,3,2]", "quad_perm:[2,3,0,1]", "row_ror:8"):
        o += ["s_nop 0", f"v_add_f32_dpp v{t}, v{t}, v{t} {m} row_mask:0xf bank_mask:0xf", f"v_add_f32_dpp v{t+1}, v{t+1}, v{t+1} {m} row_mask:0xf bank_mask:0xf"]
    for sw in ("v_permlane16_swap_b32", "v_permlane32_swap_b32"):
        o += [f"v_mov_b32 v{t+2}, v{t}", f"v_mov_b32 v{t+3}, v{t+1}", "s_nop 0", f"{sw} v{t}, v{t+2}", f"{sw} v{t+1}, v{t+3}",
              f"v_add_f32 v{t}, v{t}, v{t+2}", f"v_add_f32 v{t+1}, v{t+1}, v{t+3}"]
    o += [f"v_mul_f32 v{t+2}, {f32(1/512)}, v{t}", f"v_mul_f32 v{t+1}, {f32(1/512)}, v{t+1}", f"v_fma_f32 v{t}, -v{t+2}, v{t+2}, v{t+1}",
          f"v_max_f32 v{t}, 0, v{t}", f"v_add_f32 v{t}, {f32(1e-5)}, v{t}", f"v_rsq_f32 v{t}, v{t}", "s_nop 0", f"v_mul_f32 v{t+1}, -v{t+2}, v{t}"]
    return o

def ring_addr_setup():
    L, t0, t1, t2 = 31, 28, 29, 30
    o = [f"v_and_b32 v{L}, 63, v0"]
    o += [f"v_lshrrev_b32 v{t0}, 2, v{L}", f"v_bfe_u32 v{t1}, v{L}, 3, 2", f"v_and_b32 v{t2}, 3, v{L}", f"v_lshlrev_b32 v{t2}, 3, v{t2}",
          f"v_lshl_or_b32 v{t2}, v{t1}, 5, v{t2}", f"v_lshl_or_b32 v{t2}, v{t0}, 7, v{t2}", f"v_add_u32 v{V_TR}, s{sW4K}, v{t2}"]
    for e in range(1, 4): o.append(f"v_xor_b32 v{V_TR+e}, {32*e}, v{V_TR}")
    o += [f"v_lshlrev_b32 v{V_LIN}, 4, v{L}", f"v_add_u32 v{V_LB}, {L_B}, v{V_LIN}"]
    return o
def ring_addr_setup2():
    L, t0, t1, t2 = 31, 28, 29, 30
    o = []
    for e in range(4): o.append(f"v_add_u32 v{V_TR+4+e}, {L_E0}, v{V_TR+e}")
    o += [f"v_bfe_u32 v{t0}, v{L}, 1, 3", f"v_and_b32 v{t1}, 1, v{L}", f"v_lshrrev_b32 v{t2}, 4, v{L}", f"v_lshlrev_b32 v{V_PS}, 7, v{t0}",
          f"v_lshl_or_b32 v{V_PS}, v{t1}, 6, v{V_PS}", f"v_lshl_or_b32 v{V_PS}, v{t2}, 4, v{V_PS}"]
    o += [f"v_bfe_u32 v{t0}, v{L}, 3, 1", f"v_and_b32 v{t1}, 7, v{L}", f"v_mul_u32_u24 v{V_GA}, {MB_W}, v{t2}", f"v_lshl_add_u32 v{V_GA}, v{t0}, 10, v{V_GA}",
          f"v_lshl_add_u32 v{V_GA}, v{t1}, 4, v{V_GA}", f"s_lshl_b32 s{sT0}, s{sG}, 7", f"s_add_u32 s{sT0}, s{sT0}, s{sW2K}", f"v_add_u32 v{V_GA}, s{sT0}, v{V_GA}"]
    o += [f"v_accvgpr_read_b32 v{t0}, a{A_SW}", f"v_lshrrev_b32 v{t1}, 3, v{L}", f"v_mul_u32_u24 v{t1}, 3584, v{t1}", f"s_lshl_b32 s{sT0}, s{sW}, 7",
          f"v_add3_u32 v{V_W1D}, v{t0}, v{t1}, s{sT0}"]
    for i in range(1, 4): o.append(f"v_add_u32 v{V_W1D+i}, {(8*3584-1024)*i}, v{V_W1D}")
    o += [f"v_lshlrev_b32 v{t0}, 1, v{t2}", f"v_xor_b32 v{V_YR}, v{L}, v{t0}", f"v_lshlrev_b32 v{V_YR}, 4, v{V_YR}", f"v_add_u32 v{V_YR}, {L_B}, v{V_YR}"]
    o += [f"v_lshrrev_b32 v{t0}, 3, v{L}", f"v_and_b32 v{t1}, 3, v{L}", f"v_bfe_u32 v{t2}, v{L}, 2, 1", f"v_lshlrev_b32 v{V_YW}, 12, v{t0}",
          f"v_lshl_or_b32 v{V_YW}, v{t1}, 8, v{V_YW}", f"v_lshl_or_b32 v{V_YW}, v{t2}, 4, v{V_YW}", f"v_lshl_or_b32 v{V_YW}, v{t1}, 5, v{V_YW}",
          f"s_lshl_b32 s{sT0}, s{sW}, 10", f"s_add_u32 s{sT0}, s{sT0}, {L_B}", f"v_add_u32 v{V_YW}, s{sT0}, v{V_YW}"]
    for j in range(1, 4): o.append(f"v_xor_b32 v{V_YW+j}, {32*j}, v{V_YW}")
    o += [f"s_mul_i32 s{sT0}, s{sW}, {MB_W}", f"v_add_u32 v6, s{sT0}, v{V_LIN}"]
    return o

V_SUM, V_TMP, V_PA, V_PB = 128, 144, 160, 176
def masked(lo):
    return [f"s_cmp_lt_u32 s{sW}, 2", "s_cselect_b64 exec, -1, 0" if lo else "s_cselect_b64 exec, 0, -1"]
def last_gather(mboff):
    a = P.add
    gl = lambda tag: gather_loads(G1, 8, V_GA, lambda i: i*MB_SZ + mboff + 8192, tag)
    a(wvm("psA"), masked(True), gl("g1"), wvm("psB"), masked(False), gl("g1"), "s_mov_b64 exec, -1")
def oproj():
    a = P.add
    a(breads(0), wlg("a0"))
    ex = ring_addr_setup2() + aunpack(V_X1, A_XR, 8, G0) + aunpack(V_B1F, A_B1, 8, G0+8)
    for sig in range(26):
        p, t = divmod(sig, 16)
        if sig == 16:
            assert not ex
            ex = pack_store(ACCX, 0, MB_P1)
        if sig % 4 == 0: stamp(f"o{sig}", True)
        a(raw(f"; MARK o{sig}"))
        a(gstep(sig, ACCX if p == 0 else ACCY, t == 0, q=ex, nq=(range(4) if sig < 25 else (0, 1))))
    assert not ex
    stamp("oA", True)
    for sig in range(26, 32):
        rd = [wvm(f"st{sig+1}")] + areads(sig+1) + breads(sig+1, (0, 1)) if sig < 31 else breads(26, (2, 3))
        a(hstep(sig, ACCY, False, 0, rd))
    stamp("oB", True)
    st, gl = pack_store(ACCY, 1, MB_P1, (0,), "psA"), gather_loads(G0, 8, V_GA, lambda i: i*MB_SZ + MB_P1, "g0")
    ex = ["GAP", "GAP", "GAP"] + st + gl
    for sig in range(26, 32):
        a(hstep(sig, ACCY, False, 1, breads(sig+1, (2, 3)) if sig < 31 else [], q=ex))
    a(ex)
    stamp("o32", True)
    a("s_nop 3", pack_store(ACCY, 1, MB_P1, (1,), "psB"))
    stamp("o_st", True)

def ywrites(p): return [lg(f"ds_write_b128 v{V_YW+(j&3)}, {vr((G0, G1)[p]+4*j, 4)} offset:{128*(j>>2)+32768*p}", "yw") for j in range(8)]
def ln2():
    a = P.add
    a("s_barrier")
    for p in range(2): a(aunpack(V_PA+8*p, A_M2+16*p+0, 4, V_TMP))
    last_gather(MB_P1)
    stamp("oproj")
    gather_check(G0, 8, V_GA, lambda i: i*MB_SZ + MB_P1, "g0", V_TMP)
    stamp("g0ok", True)
    a(sum8(G0, V_SUM, V_TMP))
    G2, SB = 192, 208
    for p in range(2):
        a(aunpack(G2+8*p, A_M2+16*p+8, 4, V_TMP))
        a([f"v_add_f32 v{G2+8*p+i}, 1.0, v{G2+8*p+i}" for i in range(8)])
        a([f"v_cvt_pk_bf16_f32 v{V_TMP+i}, v{G2+8*p+2*i}, v{G2+8*p+2*i+1}" for i in range(4)])
        for i in range(4): a(unpack(G2+8*p+2*i, G2+8*p+2*i+1, V_TMP+i))
        a(aunpack(SB+8*p, A_M2+16*p+4, 4, V_TMP))
    gather_check(G1, 8, V_GA, lambda i: i*MB_SZ + MB_P1 + 8192, "g1", V_TMP)
    stamp("ex1")
    w1q = []
    for sig in range(32, 38):
        d = stage_dma(sig); w1q += [d[:2] + ["s_nop 0", d[2]], [d[3]], [d[4]], [d[5]]]
    s8 = sum8(G1, V_SUM+8, V_TMP)
    for i in range(0, len(s8), 12): a(w1q.pop(0), s8[i:i+12])
    for k in range(0, 16, 2): a(f"v_pk_fma_f32 {vr(V_X1+k, 2)}, {vr(V_SUM+k, 2)}, {vr(V_PA+k, 2)}, {vr(V_X1+k, 2)}")
    a(rowstats(V_X1, V_TMP))
    H = V_SUM
    for k in range(0, 16, 2): a(f"v_pk_fma_f32 {vr(H+k, 2)}, {vr(V_X1+k, 2)}, {vr(V_TMP, 2)}, {vr(V_TMP, 2)} op_sel:[0,0,1] op_sel_hi:[1,0,1]")
    for k in range(0, 16, 2): a(f"v_pk_fma_f32 {vr(H+k, 2)}, {vr(H+k, 2)}, {vr(G2+k, 2)}, {vr(SB+k, 2)}")
    a(rowstats(H, V_TMP))
    for k in range(0, 16, 2): a(f"v_pk_fma_f32 {vr(H+k, 2)}, {vr(H+k, 2)}, {vr(V_TMP, 2)}, {vr(V_TMP, 2)} op_sel:[0,0,1] op_sel_hi:[1,0,1]")
    a(f"s_add_u32 s{sT0}, s{sMB}, {MB_Y}")
    for p in range(2):
        for i in range(4): a(f"v_cvt_pk_bf16_f32 v{V_PB+4*p+i}, v{H+8*p+2*i}, v{H+8*p+2*i+1}")
        a(vm(f"buffer_store_dwordx4 {vr(V_PB+4*p, 4)}, v{V_LIN}, {srd(S_WS)}, s{sT0} offen offset:{1024*p} sc1", "ys"))
    stamp("ln2")
    a(w1q)
    if cfg.drain: a(wvm("ys"))
    for p, buf in ((0, G0), (1, G1)): a(gather_loads(buf, 8, 6, lambda i: i*MB_SZ + MB_Y + 1024*p, f"y{p}"))
    a(wvm("st32"), areads(32))
    gather_check(G0, 8, 6, lambda i: i*MB_SZ + MB_Y, "y0", V_TMP)
    a(ywrites(0), wlg0(), "s_barrier")
    stamp("y_in")

def mlp():
    a = P.add
    a(breads(32), wlg("a32"))
    k = 2*math.sqrt(2/math.pi)*math.log2(math.e)
    ex = []
    ex2 = [f"s_mov_b32 s{sC1}, {f32(-k*0.044715)}", f"s_mov_b32 s{sC1+1}, {f32(-k)}", f"s_lshl_b32 s{sT0}, s{sW}, 13", f"v_add_u32 v28, s{sT0}, v{V_LB}"]
    for sig in range(32, 48):
        end = ()
        if sig == 34: ex = [wvm("y1")] + allmax(G1, 8, 28)
        if sig == 36:
            assert not ex
            gather_check(G1, 8, 6, lambda i: i*MB_SZ + MB_Y + 1024, "y1", 28, reduced=True)
            ex = ywrites(1)
        if sig == 38: end = [wlg0(), op("s_barrier")]
        if sig == 40: ex = ex2
        a(gstep(sig, ACCX, sig == 32, cinit=V_B1F, q=ex, nxt=(sig != 47), end=end))
        if sig == 37: assert not ex
    stamp("mlp1")
    a(wvm("st48"), areads(48), "s_barrier")
    T = ACCY
    for b in range(2):
        for qt in range(4):
            x, y = ACCX + (2*b*4+qt)*4, ACCX + ((2*b+1)*4+qt)*4
            prs = [x, x+2, y, y+2]
            t = T + 8*(qt & 1)
            for i, z in enumerate(prs): a(f"v_pk_mul_f32 {vr(t+2*i, 2)}, {vr(z, 2)}, {vr(z, 2)}")
            for i, z in enumerate(prs): a(f"v_pk_fma_f32 {vr(t+2*i, 2)}, {vr(t+2*i, 2)}, s[{sC1}:{sC1+1}], s[{sC1}:{sC1+1}] op_sel:[0,0,1] op_sel_hi:[1,0,1]")
            for i, z in enumerate(prs): a(f"v_pk_mul_f32 {vr(t+2*i, 2)}, {vr(t+2*i, 2)}, {vr(z, 2)}")
            for i in range(8): a(f"v_exp_f32 v{t+i}, v{t+i}")
            for i in range(4): a(f"v_pk_add_f32 {vr(t+2*i, 2)}, {vr(t+2*i, 2)}, 1.0 op_sel_hi:[1,0]")
            for i in range(8): a(f"v_rcp_f32 v{t+i}, v{t+i}")
            for i, z in enumerate(prs): a(f"v_pk_mul_f32 {vr(z, 2)}, {vr(t+2*i, 2)}, {vr(z, 2)}")
            a(f"v_cvt_pk_bf16_f32 v{x}, v{x}, v{x+1}", f"v_cvt_pk_bf16_f32 v{x+1}, v{x+2}, v{x+3}",
              f"v_cvt_pk_bf16_f32 v{x+2}, v{y}, v{y+1}", f"v_cvt_pk_bf16_f32 v{x+3}, v{y+2}, v{y+3}")
            a(lg(f"ds_write_b128 v28, {vr(x, 4)} offset:{b*4096+qt*1024}", "hw"))
    a(wlg0(), "s_barrier")
    stamp("gelu")
    a(breads(48, (0, 1)), wlg("a48"))
    dq, ex = [], []
    for p in range(2):
        acc = (ACCX, ACCY)[p]
        for half in range(2):
            stamp(f"m{p}{half}", True)
            for t in range(7):
                sig = 48 + 7*p + t
                if half == 0:
                    if sig + 6 < 62: dq += stage_dma(sig+6)
                    rd = [wvm(f"st{sig+1}")] + areads(sig+1) + breads(sig+1, (0, 1)) if t < 6 else breads(48 + 7*p, (2, 3))
                else:
                    rd = breads(sig+1, (2, 3)) if t < 6 else ([wvm("st55")] + areads(55) + breads(55, (0, 1)) if p == 0 else [])
                a(hstep(sig, acc, t == 0, half, rd, dq, ex))
            assert not ex, ex
            if (p, half) != (1, 1):
                ex = ["GAP", "GAP", "GAP"] + pack_store(acc, p, MB_P2, (half,), "psA" if p else "ps")
    assert not dq
    stamp("m62", True)
    a("s_nop 3", pack_store(ACCY, 1, MB_P2, (1,), "psB"))
    stamp("m_st", True)
    a(gather_loads(G0, 8, V_GA, lambda i: i*MB_SZ + MB_P2, "g0"))
    last_gather(MB_P2)
    stamp("mlp2")

def final():
    a = P.add
    GB, B2 = V_PA, V_PB
    for p in range(2): a(aunpack(GB+8*p, A_M2+16*p+12, 4, V_TMP))
    a(aunpack(B2, A_B2, 8, V_TMP))
    a(f"v_accvgpr_read_b32 v28, a{A_OV}")
    for p, buf in ((0, G0), (1, G1)):
        gather_check(buf, 8, V_GA, lambda i: i*MB_SZ + MB_P2 + 8192*p, f"g{p}", V_TMP)
        S = V_SUM + 8*p
        a(sum8(buf, S, V_TMP))
        for k in range(0, 8, 2): a(f"v_pk_add_f32 {vr(S+k, 2)}, {vr(S+k, 2)}, {vr(B2+8*p+k, 2)}")
        for k in range(0, 8, 2): a(f"v_pk_fma_f32 {vr(S+k, 2)}, {vr(S+k, 2)}, {vr(GB+8*p+k, 2)}, {vr(V_X1+8*p+k, 2)}")
        for i in range(4): a(f"v_cvt_pk_bf16_f32 v{S+i}, v{S+2*i}, v{S+2*i+1}")
        for h in range(2): a(vm(f"buffer_store_dwordx2 {vr(S+2*h, 2)}, v28, {srd(S_OUT)}, s{sXROW} offen offset:{128*p+32*h}", "out"))
    if cfg.stamps:
        stamp("end")
        a(f"s_lshl_b32 s{sT0}, s2, 10", f"s_add_u32 s{sT0}, s{sT0}, {WS_STAMP}", "v_lshlrev_b32 v7, 2, v0",
          vm(f"buffer_store_dword a{A_STAMP}, v7, {srd(S_WS)}, s{sT0} offen", "st"), f"s_add_u32 s{sT0}, s{sT0}, 0x40000",
          vm(f"buffer_store_dword a{A_STAMP+1}, v7, {srd(S_WS)}, s{sT0} offen", "st"))
        if cfg.dbgout is not None:
            a(f"s_lshl_b32 s{sT0}, s{sPP}, 2", f"s_add_u32 s{sT0}, s{sT0}, s{sW}", f"s_cmp_lg_u32 s{sT0}, {cfg.dbgout*4}", "s_cbranch_scc1 L_exit")
            a(f"v_accvgpr_read_b32 v8, a{A_STAMP}", "s_nop 1", "v_readlane_b32 s60, v8, 0", "s_nop 1", "v_subrev_u32 v8, s60, v8", "v_subrev_u32 v7, 4, v7",
              "s_mov_b64 exec, 0x1fffe", vm(f"buffer_store_dword v8, v7, {srd(S_DBG)}, 0 offen sc1", "st"))
    a(label("L_exit"), "s_endpgm")

def fallback():
    a = P.add
    P.rare_begin()
    a(label("L_fallback"), wall())
    L, KA = 32, 33
    a(f"v_and_b32 v{L}, 63, v0", f"v_and_b32 v{KA}, 15, v{L}", f"v_lshrrev_b32 v34, 4, v{L}", f"v_lshlrev_b32 v{KA}, 8, v{KA}", f"v_lshl_or_b32 v{KA}, v34, 6, v{KA}")
    a(f"v_and_b32 v36, 15, v{L}")
    for i in range(2):
        a(f"v_add_u32 v37, {4*i}, v34", f"v_lshlrev_b32 v37, 1, v37", f"v_xor_b32 v37, v37, v36", f"v_lshlrev_b32 v37, 4, v37", f"v_lshl_or_b32 v{20+i}, v34, 8, v37")
    a(f"s_lshl_b32 s{sT2}, s{sG}, 19", f"s_add_u32 s{sT2}, s{sT2}, {1536*256}", f"s_mov_b32 s{sT0}, s{sT2}", f"s_mov_b32 s{sLOOP}, 32")
    for qt in range(4): a(f"v_mov_b32 v{V_NM+4*qt}, 0xff800000")
    a(label("L_fb1"))
    for s in range(4): a(vm(f"buffer_load_dwordx4 {ar(A_KF+4*s, 4)}, v{KA}, {srd(S_K)}, s{sT0} offen offset:{16*s}", "x"))
    a(wvm0())
    for qt in range(4):
        for s in range(4): a(f"{MF} v[36:39], {ar(A_KF+4*s, 4)}, {vr(QF(s, qt), 4)}, {'v[36:39]' if s else 0}")
        a("s_nop 9", f"v_max3_f32 v{V_NM+4*qt}, v{V_NM+4*qt}, v36, v37", f"v_max3_f32 v{V_NM+4*qt}, v{V_NM+4*qt}, v38, v39", "s_nop 3")
    a(f"s_add_u32 s{sT0}, s{sT0}, 4096", f"s_sub_u32 s{sLOOP}, s{sLOOP}, 1", f"s_cmp_lg_u32 s{sLOOP}, 0", "s_cbranch_scc1 L_fb1")
    for qt in range(4):
        m, t = V_NM + 4*qt, V_NM + 4*qt + 1
        a(f"v_mov_b32 v{t}, v{m}", "s_nop 1", f"v_permlane16_swap_b32 v{m}, v{t}", f"v_max_f32 v{m}, v{m}, v{t}",
          f"v_mov_b32 v{t}, v{m}", "s_nop 1", f"v_permlane32_swap_b32 v{m}, v{t}", f"v_max_f32 v{m}, v{m}, v{t}",
          f"v_mul_f32 v{m}, -1.0, v{m}", f"v_mov_b32 v{m+1}, v{m}", f"v_mov_b32 v{m+2}, v{m}", f"v_mov_b32 v{m+3}, v{m}")
    for r in range(128): a(f"v_mov_b32 v{V_O+r}, 0")
    for r in range(16): a(f"v_accvgpr_write_b32 a{A_L+r}, 0")
    a(f"s_lshl_b32 s{sT1}, s{sW}, 14", f"s_add_u32 s{sT1}, s{sT1}, {L_B}", f"s_sub_u32 s{sT0}, s{sT1}, {L_V}")
    for dt in range(8): a(f"v_add_u32 v{V_VR+dt}, s{sT0}, v{V_VR+dt}")
    a(f"s_mov_b32 s{sT0}, s{sT2}", f"s_mov_b32 s{sLOOP}, 16")
    a(label("L_fb2"))
    for j in range(4):
        a(f"s_add_u32 m0, s{sT1}, {2048*j}", f"s_add_u32 s{sT3}, s{sT0}, {2048*j}",
          vm(f"buffer_load_dwordx4 v20, {srd(S_V)}, s{sT3} offen lds", "x"), vm(f"buffer_load_dwordx4 v21, {srd(S_V)}, s{sT3} offen offset:1024 lds", "x"))
    a(f"s_add_u32 s{sT3}, s{sT0}, 4096")
    for s in range(4):
        a(vm(f"buffer_load_dwordx4 {ar(KF(0, 0, s), 4)}, v{KA}, {srd(S_K)}, s{sT0} offen offset:{16*s}", "x"),
          vm(f"buffer_load_dwordx4 {ar(KF(0, 1, s), 4)}, v{KA}, {srd(S_K)}, s{sT3} offen offset:{16*s}", "x"))
    a(wvm0())
    a(vreads(0), wlg0())
    for qt in range(4):
        for s in range(4):
            for kt in range(2):
                d = vr(40 + 4*kt, 4)
                a(f"{MF} {d}, {ar(KF(0, kt, s), 4)}, {vr(QF(s, qt), 4)}, {d if s else vr(V_NM+4*qt, 4)}")
        a("s_nop 9")
        for i in range(8): a(f"v_exp_f32 v{40+i}, v{40+i}")
        a("s_nop 0")
        for i in range(4): a(f"v_cvt_pk_bf16_f32 v{V_P+i}, v{40+2*i}, v{41+2*i}")
        a("s_nop 1")
        for dt in range(8): a(f"{MF} {vr(OA(dt, qt), 4)}, {ar(VF(0, dt), 4)}, {vr(V_P, 4)}, {vr(OA(dt, qt), 4)}")
        a(f"{MF} {ar(A_L+4*qt, 4)}, {ar(A_ONE, 4)}, {vr(V_P, 4)}, {ar(A_L+4*qt, 4)}")
    a(f"s_add_u32 s{sT0}, s{sT0}, 8192", f"s_sub_u32 s{sLOOP}, s{sLOOP}, 1", f"s_cmp_lg_u32 s{sLOOP}, 0", "s_cbranch_scc1 L_fb2")
    a("s_nop 9")
    for qt in range(4): a(normalize(qt))
    a("s_branch L_fb_ret")
    P.rare_end()

HEADER = """; Fused adaLN-modulated block: cached sliding-window GQA attention + channel MLP, one persistent launch.
; @launch grid=(256,1,1) block=(256,1,1) lds=163840
.amdgcn_target "amdgcn-amd-amdhsa--gfx950"
.text
.globl {kn}
.p2align 8
.type {kn},@function
{kn}:
"""
FOOTER = """L_codeend:
.section .rodata,"a"
.p2align 6
.amdhsa_kernel {kn}
  .amdhsa_next_free_vgpr 512
  .amdhsa_next_free_sgpr 102
  .amdhsa_accum_offset 256
  .amdhsa_group_segment_fixed_size 0
  .amdhsa_kernarg_size 120
  .amdhsa_user_sgpr_count 2
  .amdhsa_user_sgpr_kernarg_segment_ptr 1
  .amdhsa_system_sgpr_workgroup_id_x 1
  .amdhsa_float_denorm_mode_32 3
.end_amdhsa_kernel
"""

def build():
    d = cfg.dump
    prologue()
    if d == "h": dump_lds_and_exit(0, 65536)
    qproj()
    if d == "q": dump_and_exit([f"a{i}" for i in range(128)])
    attention()
    if d == "o": dump_lds_and_exit(L_B, 65536)
    oproj()
    ln2()
    if d == "y": dump_lds_and_exit(L_B, 65536)
    mlp()
    final()
    fallback()
    for f in out_of_line: f()
    resolve_waits(P.items)
    merge_waits(P.items)
    errs = check(P.items)
    print("-- with rare regions inline")
    items2 = [x for x in P.items if x.kind not in ("rare_begin", "rare_end")]
    check(items2)
    return HEADER.format(kn=KN) + render(P.items) + FOOTER.format(kn=KN), errs

if __name__ == "__main__":
    ap = argparse.ArgumentParser()
    ap.add_argument("-o", default=f"cdna_kernels/{NAME}.s")
    ap.add_argument("--stamps", action="store_true")
    ap.add_argument("--dump")
    ap.add_argument("--sleep", type=int, default=0)
    ap.add_argument("--nodrain", action="store_true")
    ap.add_argument("--g0at", type=int, default=27)
    ap.add_argument("--depth", type=int, default=4)
    ap.add_argument("--notouch", action="store_true")
    ap.add_argument("--nopf", action="store_true")
    ap.add_argument("--dbgout", type=int, default=None)
    ap.add_argument("--mb", type=int, default=1)
    ap.add_argument("--nt", default=None)
    ap.add_argument("--mu", type=int, default=1)
    ap.add_argument("--fine", action="store_true")
    ap.add_argument("--force-fallback", action="store_true")
    args = ap.parse_args()
    cfg.stamps = args.stamps; cfg.dump = args.dump; cfg.sleep = args.sleep; cfg.drain = not args.nodrain; cfg.g0at = args.g0at; cfg.depth = args.depth; cfg.touch = not args.notouch; cfg.nopf = args.nopf; cfg.dbgout = args.dbgout; WS_MB = args.mb << 20; NT.on = set(args.nt) if args.nt is not None else NT.on; cfg.mu = args.mu; cfg.fine = args.fine; cfg.force_fallback = args.force_fallback
    txt, errs = build()
    if cfg.stamps: txt = "; STAMPS " + ",".join(stamp_names) + "\n" + txt
    open(args.o, "w").write(txt)
    print("wrote", args.o, len(txt), "bytes;", len(errs), "hazard reports")
```

```python
import sys, math, argparse, struct
from asmlib import *

NAME = "adaLN_cond__sliding_block_cached__mixer_channel_mlp__prompt"
KN = NAME + "_kernel"

WS_MODG = 0
WS_M2 = 4096
WS_MB = 1 << 20
MB_W = 34816
MB_SZ = 4*MB_W
MB_P1, MB_Y, MB_P2 = 0, 16384, 18432
WS_DUMP = 64 << 20
WS_STAMP = 60 << 20
WS_BYTES = 268435456
SPIN = 1 << 15

L_K = 65536
L_V = 98304
L_E0 = 131072
L_E1 = 147456
L_B = 65536
STAGES = [0, 16384, 32768, 49152, L_E0, L_E1]

sFLAG = 3
S_X, S_K, S_V, S_WQ, S_WO, S_W1, S_W2, S_WS, S_DBG, S_OUT, S_TA, S_TB = [4 + 4*i for i in range(12)]
S_B1P, S_B2P = 52, 54
sW, sG, sRB, sRHO = 56, 57, 58, 59
sT0, sT1, sT2, sT3 = 60, 61, 62, 63
sSELLO, sSELHI = 96, 97
sSTAMP = 98
sSPIN, sBAD = 100, 101
sCP = 101
sPP = 2
(sWQOFF, sKV0, sMB, sTEAM, sW4K, sW2K, sWOB, sW1B, sW2B, sPF, sLOOP, sPST, sGAT) = range(64, 77)
sEX = 78
sC1 = 80
sKV1, sWOP, sRING, sRD, sXROW, sB1O, sM2O, sIDX = range(82, 90)
def srd(b): return f"s[{b}:{b+3}]"
def vr(b, n=1): return f"v{b}" if n == 1 else f"v[{b}:{b+n-1}]"
def ar(b, n=1): return f"a{b}" if n == 1 else f"a[{b}:{b+n-1}]"
def f32(x): return "0x%08x" % struct.unpack("<I", struct.pack("<f", x))[0]

QSCALE = math.log2(math.e) / math.sqrt(128.0)
MF = "v_mfma_f32_16x16x32_bf16"

class Cfg:
    stamps = False
    fine = False
    probe = None
    kvtouch = True
    sleep = 0
    drain = True
    g0at = 27
    depth = 4
    touch = True
    nopf = False
    dbgout = None
    dump = None
    force_fallback = False
    mu = 1
cfg = Cfg()
P = Prog()
uid = [0]
def newlabel(s):
    uid[0] += 1
    return f"L_{s}_{uid[0]}"

A_STAMP = 252
stamp_names = []
def stamp(name, fine=False):
    if not cfg.stamps or (fine and not cfg.fine): return
    k = len(stamp_names); stamp_names.append(str(name))
    assert k < 64
    P.add(Ins(f"s_memrealtime s[{sSTAMP}:{sSTAMP+1}]", "op"), Ins(f"s_memtime s[0:1]", "op"), wlg0(),
          f"s_lshl_b64 exec, 1, {k}",
          f"v_accvgpr_write_b32 a{A_STAMP}, s{sSTAMP}", f"v_accvgpr_write_b32 a{A_STAMP+1}, s0", "s_mov_b64 exec, -1")

def dump_and_exit(regs):
    P.add(wall(), "s_nop 15")
    P.add(f"s_lshl_b32 s{sT0}, s2, 18", f"s_add_u32 s{sT0}, s{sT0}, {WS_DUMP}")
    P.add("v_lshlrev_b32 v7, 2, v0")
    for i, r in enumerate(regs):
        P.add(vm(f"buffer_store_dword {r}, v7, {srd(S_WS)}, s{sT0} offen", "dump"), f"s_add_u32 s{sT0}, s{sT0}, 1024")
    P.add(wall(), "s_endpgm")

def dump_lds_and_exit(base, nbytes):
    P.add(wall(), "s_barrier")
    P.add(f"s_lshl_b32 s{sT0}, s2, 18", f"s_add_u32 s{sT0}, s{sT0}, {WS_DUMP}")
    P.add("v_lshlrev_b32 v7, 4, v0", f"v_add_u32 v6, {base}, v7")
    for i in range(nbytes // 4096):
        P.add(lg(f"ds_read_b128 v[8:11], v6", "d"), wlg0(),
              vm(f"buffer_store_dwordx4 v[8:11], v7, {srd(S_WS)}, s{sT0} offen", "dump"), f"s_add_u32 s{sT0}, s{sT0}, 4096",
              "v_add_u32 v6, 4096, v6", wvm0())
    P.add(wall(), "s_endpgm")

def mk_srd(b, p, nbytes):
    return [f"s_mov_b32 s{b}, s{p}", f"s_and_b32 s{b+1}, s{p+1}, 0xffff", f"s_mov_b32 s{b+2}, {nbytes}", f"s_mov_b32 s{b+3}, 0x20000"]

def unpack(dlo, dhi, src):
    return [f"v_lshlrev_b32 v{dlo}, 16, v{src}", f"v_and_b32 v{dhi}, 0xffff0000, v{src}"]

class _NT:
    on = set("")
    def __call__(self, k): return " nt" if k in self.on else ""
NT = _NT()

R = [32, 64, 96, 128, 160, 192]
XN = 128
FST = [224, 232]
V_WQ = 24
V_KD, V_VD = 20, 22
V_HR = 4
A_QACC = 0
A_HB = 128
V_KR, V_VR = 8, 12
V_P, V_S, V_NM, V_Q, V_O = 24, 32, 48, 64, 128
V_WD = 2
V_PF = 6
A_KF, A_VF, A_L, A_ONE, A_DUM, A_SEN, A_FL = 160, 0, 224, 240, 244, 248, 254
A_M2, A_XR, A_B2, A_B1 = 64, 96, 104, 112
A_OV, A_SW, A_MSK = 120, 247, 255
A_MM = 224

def wq_load(t, s):
    b = R[t % 6]
    return [vm(f"buffer_load_dwordx4 {vr(b+4*j, 4)}, v{V_WQ+j}, {srd(S_WQ)}, s{s} offen{NT('q')}", f"wq{t}") for j in range(8)]
def adv(s): return [f"s_add_u32 s{s}, s{s}, 262144", f"s_and_b32 s{s}, s{s}, 0x3fffff"]

out_of_line = []
def prologue():
    a = P.add
    if cfg.stamps: a(Ins("s_memrealtime s[94:95]", "op"))
    a(Ins("s_load_dwordx16 s[64:79], s[0:1], 0", "op"), Ins("s_load_dwordx8 s[80:87], s[0:1], 64", "op"),
      Ins("s_load_dwordx4 s[88:91], s[0:1], 96", "op"), Ins("s_load_dwordx2 s[92:93], s[0:1], 112", "op"))
    a("s_cmp_ge_u32 s2, 256", "s_cbranch_scc1 L_exit")
    a(f"s_getpc_b64 s[{S_TB}:{S_TB+1}]")
    a(label("L_pc"))
    a(f"s_mov_b32 s{S_TB+2}, L_codeend-L_pc", f"s_mov_b32 s{S_TB+3}, 0x20000", f"s_bfe_u32 s{sT0}, s2, 0x30003", f"s_lshl_b32 s{sT0}, s{sT0}, 13")
    a("v_lshrrev_b32 v1, 6, v0", "v_and_b32 v3, 15, v0", "v_and_b32 v2, 63, v0", "v_lshlrev_b32 v3, 7, v3", "v_lshl_or_b32 v4, v1, 11, v3")
    a(vm(f"buffer_load_dword a{A_DUM}, v4, {srd(S_TB)}, s{sT0} offen{NT('c')}", "dummy"))
    if cfg.stamps:
        a(f"v_accvgpr_write_b32 a{A_STAMP}, 0", f"v_accvgpr_write_b32 a{A_STAMP+1}, 0")
    a(f"s_and_b32 s{sT0}, s2, 3", f"v_readfirstlane_b32 s{sW}, v1")
    a(f"s_lshr_b32 s{sT1}, s2, 3", f"s_lshl_b32 s{sT0}, s{sT0}, 1", f"s_and_b32 s{sT2}, s{sT1}, 1", f"s_or_b32 s{sG}, s{sT0}, s{sT2}")
    a(f"s_lshr_b32 s{sRHO}, s{sT1}, 1", f"s_bfe_u32 s{sT2}, s2, 0x10002", f"s_lshl_b32 s{sT0}, s{sT2}, 4", f"s_or_b32 s{sRB}, s{sT0}, s{sRHO}")
    a(f"s_and_b32 s{sT0}, s2, 7", f"s_lshl_b32 s{sT2}, s{sT0}, 5", f"s_or_b32 s{sPP}, s{sT2}, s{sT1}")
    a(f"s_lshl_b32 s{sT0}, s{sT0}, 2", f"s_add_u32 s{sCP}, s{sT0}, s{sRHO}", f"s_and_b32 s{sT1}, s{sT1}, 0x19", f"s_mov_b32 s{sFLAG}, 0")
    a("v_lshrrev_b32 v4, 2, v0", "v_and_b32 v5, 3, v0", f"v_mul_u32_u24 v6, {8*6144}, v4", "v_lshlrev_b32 v5, 4, v5", f"s_lshl_b32 s{sT0}, s{sCP}, 6",
      f"v_add3_u32 v6, v6, v5, s{sT0}", "v_lshlrev_b32 v5, 4, v4", "v_lshlrev_b32 v7, 4, v2")
    a(f"s_lshl_b32 s{sT2}, s{sRB}, 2", f"s_add_u32 s{sT2}, s{sT2}, s{sW}", f"s_lshl_b32 s{sT2}, s{sT2}, 1", f"s_and_b32 s{sT0}, s{sG}, 1",
      f"s_or_b32 s{sT2}, s{sT2}, s{sT0}", f"s_lshl_b32 s{sT2}, s{sT2}, 13")
    a(wlg0())
    if cfg.stamps: a("s_lshl_b64 exec, 1, 63", f"v_accvgpr_write_b32 a{A_STAMP}, s94", "s_mov_b64 exec, -1")
    stamp("start")
    a(mk_srd(S_TB, 84, 1024), mk_srd(S_TA, 86, 512*6144), mk_srd(S_X, 64, 2097152))
    if cfg.touch:
        a(f"s_lshl_b32 s{sT0}, s{sPP}, 1", f"s_lshr_b32 s{sT3}, s{sW}, 1", f"s_add_u32 s{sT0}, s{sT0}, s{sT3}", f"s_mul_i32 s{sT0}, s{sT0}, 6144",
          f"s_and_b32 s{sT3}, s{sW}, 1", f"s_lshl_b32 s{sT3}, s{sT3}, 10", f"s_add_u32 s{sT0}, s{sT0}, s{sT3}", "v_and_b32 v8, 0x380, v3",
          vm(f"buffer_load_dword a{A_DUM+1}, v8, {srd(S_TA)}, s{sT0} offen", "dummy"))
    def xloads(tagged):
        o = []
        for i in range(16):
            if i and i % 4 == 0: o.append(op(f"s_xor_b32 s{sT2}, s{sT2}, {4096 if i % 8 else 12288}"))
            o.append(vm(f"buffer_load_dwordx4 {vr(XN+8*i+4, 4)}, v7, {srd(S_X)}, s{sT2} offen offset:{(i%4)*1024}{NT('x')}", f"x{i}" if tagged else "x"))
        return o
    rest = [mk_srd(S_WS, 92, WS_BYTES), mk_srd(S_DBG, 90, 256), mk_srd(S_WQ, 70, 4194304), mk_srd(S_K, 66, 4194304), mk_srd(S_V, 68, 4194304),
            mk_srd(S_WO, 72, 4194304), mk_srd(S_W1, 76, 512*3584), mk_srd(S_W2, 80, 1792*1024), mk_srd(S_OUT, 88, 2097152),
            f"s_mov_b64 s[{S_B1P}:{S_B1P+1}], s[78:79]", f"s_mov_b64 s[{S_B2P}:{S_B2P+1}], s[82:83]"]
    dpp = lambda r, rot: f"v_add_f32_dpp v{r}, v{r}, v{r} row_ror:{rot} row_mask:0xf bank_mask:0xf"
    xl = xloads(True)
    C0, SV, AC, T, RW = 8, 32, 40, 48, 64
    wqtouch = vm(f"buffer_load_dword a{A_DUM+2}, v12, {srd(S_WQ)}, s{sT0} offen{NT('q')}", "dummy")
    a(f"s_cmp_eq_u32 s{sT1}, 1", f"s_cselect_b32 s{sFLAG}, 1, 0", "s_cbranch_scc0 L_np1")
    P.rare_begin()
    a(vm(f"buffer_load_dwordx4 {vr(C0, 4)}, v5, {srd(S_TB)}, 0 offen{NT('m')}", "x"))
    for i in range(8):
        a(f"s_mov_b32 s{sT0}, {6144*i}", vm(f"buffer_load_dwordx4 {vr(RW+4*i, 4)}, v6, {srd(S_TA)}, s{sT0} offen{NT('m')}", "x"))
    a("s_branch L_j1")
    P.rare_end()
    a(label("L_np1"), xl[:9])
    a(mk_srd(S_WQ, 70, 4194304), "v_lshrrev_b32 v12, 3, v2", "v_and_b32 v13, 7, v2", "v_lshlrev_b32 v12, 13, v12", "v_lshl_or_b32 v12, v13, 7, v12",
      f"s_lshl_b32 s{sT0}, s{sRHO}, 2", f"s_add_u32 s{sT0}, s{sT0}, s{sW}", f"s_lshl_b32 s{sT0}, s{sT0}, 16", f"s_lshl_b32 s{sT1}, s{sG}, 10", f"s_add_u32 s{sT0}, s{sT0}, s{sT1}", wqtouch)
    a(label("L_j1"), rest)
    def producer():
        a(f"s_cmp_eq_u32 s{sFLAG}, 0", "s_cbranch_scc1 L_prodret")
        P.rare_begin()
        xq = xloads(False)[:9]
        a(f"s_lshl_b32 s{sT0}, s{sCP}, 7", f"s_add_u32 s{sT0}, s{S_WS}, s{sT0}", f"s_addc_u32 s{sT1}, s{S_WS+1}, 0")
        a(Ins(f"s_load_dwordx16 s[64:79], s[{sT0}:{sT1}], {WS_MODG}", "op"), Ins(f"s_load_dwordx16 s[80:95], s[{sT0}:{sT1}], {WS_MODG+64}", "op"))
        a("v_and_b32 v12, 3, v2", "v_bfe_u32 v13, v2, 4, 1", "v_lshrrev_b32 v14, 5, v2", "v_lshlrev_b32 v12, 5, v12", "v_lshlrev_b32 v13, 4, v13", "v_lshlrev_b32 v14, 3, v14")
        a(f"s_lshl_b32 s{sSPIN}, s{sW}, 7", "v_or_b32 v12, v12, v13", f"v_add3_u32 v12, v12, v14, s{sSPIN}", "v_and_b32 v13, 15, v2", "v_lshlrev_b32 v13, 3, v13")
        a(Ins("s_waitcnt vmcnt(8)", "xw"))
        for d in range(4): a(unpack(SV+2*d, SV+2*d+1, C0+d))
        for i in range(8): a(f"v_mul_f32 v{T+i}, {f32(-math.log2(math.e))}, v{SV+i}")
        for i in range(8): a(f"v_exp_f32 v{T+i}, v{T+i}")
        for i in range(8): a(f"v_add_f32 v{T+i}, 1.0, v{T+i}")
        for i in range(8): a(f"v_rcp_f32 v{T+i}, v{T+i}")
        for i in range(8): a(f"v_mul_f32 v{SV+i}, v{SV+i}, v{T+i}")
        for d in range(4): a(f"v_cvt_pk_bf16_f32 v{C0+d}, v{SV+2*d}, v{SV+2*d+1}")
        for d in range(4): a(unpack(SV+2*d, SV+2*d+1, C0+d))
        for i in range(8):
            a(Ins("s_waitcnt vmcnt(7)", "xw"))
            if xq[0].kind == "op": a(xq.pop(0))
            a(xq.pop(0))
            for c in range(4): a(unpack(T+2*c, T+2*c+1, RW+4*i+c))
            sel = "op_sel:[0,1] op_sel_hi:[1,1]" if i & 1 else "op_sel:[0,0] op_sel_hi:[1,0]"
            sel3 = "op_sel:[0,1,0] op_sel_hi:[1,1,1]" if i & 1 else "op_sel:[0,0,0] op_sel_hi:[1,0,1]"
            for c in range(4):
                if i == 0: a(f"v_pk_mul_f32 {vr(AC+2*c, 2)}, {vr(T+2*c, 2)}, {vr(SV+(i&~1), 2)} {sel}")
                else: a(f"v_pk_fma_f32 {vr(AC+2*c, 2)}, {vr(T+2*c, 2)}, {vr(SV+(i&~1), 2)}, {vr(AC+2*c, 2)} {sel3}")
        a(vm(f"buffer_load_dword a{A_DUM+2}, off, {srd(S_TB)}, 0", "x"))
        a(f"s_mov_b32 s{sSPIN}, 1", wlg0())
        for i in range(16):
            a(f"s_min_u32 s{sT0}, s{65+2*i}, 31", f"s_bitset1_b32 s{sSPIN}, s{sT0}", dpp(AC+(i&7), 4 if i < 8 else 8))
        a(f"s_ff0_i32_b32 s{sFLAG}, s{sSPIN}")
        for k in range(4): a(f"v_permlane16_swap_b32 v{AC+k}, v{AC+k+4}")
        for k in range(4): a(f"v_add_f32 v{AC+k}, v{AC+k}, v{AC+k+4}")
        a(f"v_mov_b32 v14, s{sFLAG}")
        for k in range(2): a(f"v_permlane32_swap_b32 v{AC+k}, v{AC+k+2}")
        for k in range(2): a(f"v_add_f32 v{AC+k}, v{AC+k}, v{AC+k+2}")
        a(lg(f"ds_write_b64 v12, {vr(AC, 2)}", "ms"))
        a(f"s_cmp_lg_u32 s{sW}, 0", "s_cbranch_scc1 L_noann")
        a("s_mov_b64 exec, 1", vm(f"buffer_store_byte v14, off, {srd(S_DBG)}, s{sPP} sc1", "x"), "s_mov_b64 exec, -1")
        a(label("L_noann"), wlg0(), "s_barrier")
        a(f"s_cmp_lg_u32 s{sW}, 3", "s_cbranch_scc1 L_prodret")
        for w in range(4): a(lg(f"ds_read_b64 {vr(T+2*w, 2)}, v13 offset:{128*w}", "mr"))
        a(f"v_mov_b32 v{AC+1}, s{sFLAG}", f"s_lshl_b32 s{sT0}, s{sCP}, 7", wlg0())
        a(f"v_pk_add_f32 {vr(T, 2)}, {vr(T, 2)}, {vr(T+2, 2)}", f"v_pk_add_f32 {vr(T+4, 2)}, {vr(T+4, 2)}, {vr(T+6, 2)}",
          f"v_pk_add_f32 {vr(T, 2)}, {vr(T, 2)}, {vr(T+4, 2)}", f"v_cvt_pk_bf16_f32 v{AC}, v{T}, v{T+1}")
        a("s_mov_b64 exec, 0xffff", vm(f"buffer_store_dwordx2 {vr(AC, 2)}, v13, {srd(S_WS)}, s{sT0} offen sc1", "x"), "s_mov_b64 exec, -1", "s_nop 0")
        P.rare_end()
        a(label("L_prodret"))
        stamp("pub")
    a("v_lshrrev_b32 v4, 4, v2", "v_and_b32 v5, 15, v2", "v_lshlrev_b32 v4, 16, v4", "v_lshlrev_b32 v5, 4, v5")
    a(f"s_lshl_b32 s{sT0}, s{sG}, 10", f"s_lshl_b32 s{sT1}, s{sW}, 8", f"s_add_u32 s{sT0}, s{sT0}, s{sT1}")
    a(f"v_add3_u32 v{V_WQ}, v4, v5, s{sT0}")
    for j in range(1, 8): a(f"v_add_u32 v{V_WQ+j}, {8192*j}, v{V_WQ}")
    a(f"s_mov_b32 s{sSELLO}, 0x05040100", f"s_mov_b32 s{sSELHI}, 0x07060302", f"s_lshl_b32 s{sT3}, s{sRHO}, 18")
    a("v_mov_b32 v19, v7")
    a(addr_early())
    producer()
    x2 = [Ins(x.text.replace(" v7,", " v19,"), x.kind, x.tag) for x in xl[9:]]
    pq = [x2[0:2]] + [[x] for x in x2[2:5]] + [x2[5:7]] + [[x] for x in x2[7:10]] + [[x] for x in wq_load(0, sT3)]
    ST = R[2]
    TT = 4
    for i in range(16):
        b = XN + 8*i
        a(wvm(f"x{i}"))
        pass
        a(pq.pop(0))
        for d in range(4): a(unpack(b+2*d, b+2*d+1, b+4+d))
        t = TT + 16*(i & 1)
        a(f"v_pk_add_f32 {vr(t, 2)}, {vr(b, 2)}, {vr(b+2, 2)}", f"v_pk_mul_f32 {vr(t+2, 2)}, {vr(b, 2)}, {vr(b, 2)}",
          f"v_pk_add_f32 {vr(t, 2)}, {vr(t, 2)}, {vr(b+4, 2)}", f"v_pk_fma_f32 {vr(t+2, 2)}, {vr(b+2, 2)}, {vr(b+2, 2)}, {vr(t+2, 2)}",
          f"v_pk_add_f32 {vr(t, 2)}, {vr(t, 2)}, {vr(b+6, 2)}", f"v_pk_fma_f32 {vr(t+2, 2)}, {vr(b+4, 2)}, {vr(b+4, 2)}, {vr(t+2, 2)}",
          f"v_add_f32 v{ST+i}, v{t}, v{t+1}", f"v_pk_fma_f32 {vr(t+2, 2)}, {vr(b+6, 2)}, {vr(b+6, 2)}, {vr(t+2, 2)}",
          f"v_add_f32 v{ST+16+i}, v{t+2}, v{t+3}")
    stamp("x_in")
    a("s_nop 0")
    for h in (0, 16):
        for i in range(8): a(f"v_permlane32_swap_b32 v{ST+h+i}, v{ST+h+i+8}")
    for h in (0, 16):
        for i in range(8): a(f"v_add_f32 v{ST+h+i}, v{ST+h+i}, v{ST+h+i+8}")
    for h in (0, 16):
        for i in range(4): a(f"v_permlane16_swap_b32 v{ST+h+i}, v{ST+h+i+4}")
    for h in (0, 16):
        for i in range(4): a(f"v_add_f32 v{ST+h+i}, v{ST+h+i}, v{ST+h+i+4}")
    a(adv(sT3))
    w1q = wq_load(1, sT3)
    for rot in (8, 4, 2, 1):
        for h in (0, 16):
            a(w1q.pop(0))
            for i in range(4): a(dpp(ST+h+i, rot))
    for i in range(4): a(f"v_mul_f32 v{ST+i}, {f32(1/512)}, v{ST+i}")
    for i in range(4): a(f"v_mul_f32 v{ST+4+i}, v{ST+i}, v{ST+i}")
    a(f"s_mov_b32 s{sT0}, {f32(1/512)}")
    for i in range(4): a(f"v_fma_f32 v{ST+4+i}, v{ST+16+i}, s{sT0}, -v{ST+4+i}")
    for i in range(4): a(f"v_max_f32 v{ST+4+i}, 0, v{ST+4+i}")
    for i in range(4): a(f"v_add_f32 v{ST+4+i}, {f32(1e-5)}, v{ST+4+i}")
    for i in range(4): a(f"v_rsq_f32 v{ST+4+i}, v{ST+4+i}")
    for i in range(4): a(f"v_mul_f32 v{ST+i}, -v{ST+i}, v{ST+4+i}")
    for G in range(4):
        for i in range(4):
            row = i + 4*G
            a(f"v_readlane_b32 s{64+2*row}, v{ST+4+i}, {16*G}", f"v_readlane_b32 s{65+2*row}, v{ST+i}, {16*G}")
    pass
    def poll(tag): return [vm(f"buffer_load_dwordx4 v[4:7], v1, {srd(S_WS)}, 0 offen sc1", tag), vm(f"buffer_load_ubyte v8, v3, {srd(S_DBG)}, 0 offen sc1", tag)]
    a("v_lshlrev_b32 v1, 4, v0", "v_and_b32 v3, 0xe0, v0", "v_bfe_u32 v4, v0, 3, 2", "v_lshl_or_b32 v3, v4, 1, v3", "v_or_b32 v3, 1, v3", poll("pl"))
    for i in range(16):
        for d in range(4):
            b = XN + 8*i + 2*d
            a(f"v_pk_fma_f32 {vr(b, 2)}, {vr(b, 2)}, s[{64+2*i}:{65+2*i}], s[{64+2*i}:{65+2*i}] op_sel:[0,0,1] op_sel_hi:[1,0,1]")
    a("v_lshrrev_b32 v23, 2, v2", f"v_subrev_u32 v23, s{sRHO}, v23", "v_and_b32 v23, 15, v23", "v_and_b32 v22, 1, v23", "v_lshlrev_b32 v23, 12, v23",
      "v_lshl_or_b32 v23, v22, 6, v23", "v_and_b32 v22, 3, v2", "v_lshl_or_b32 v23, v22, 8, v23", "v_lshl_or_b32 v23, v22, 4, v23",
      f"s_lshl_b32 s{sT0}, s{sW}, 3", f"s_and_b32 s{sT1}, s{sG}, 1", f"s_or_b32 s{sT0}, s{sT0}, s{sT1}", f"s_lshl_b32 s{sT0}, s{sT0}, 7", f"v_or_b32 v23, s{sT0}, v23")
    a(f"v_add_u32 v21, {L_E1}, v1", "v_lshlrev_b32 v20, 5, v2", f"v_add_u32 v20, {L_E1}, v20")
    pass
    a(f"s_mov_b32 s{sSPIN}, {SPIN}")
    a(f"s_cmp_ge_u32 s{sW}, 2", f"s_cselect_b32 s{sT2}, 1.0, 0", f"s_mov_b32 s{sWQOFF}, s{sT3}")
    stamp("ln1")
    chk = ["v_and_b32 v8, 31, v8", "v_cmp_ne_u32 vcc, v5, v8", f"v_cmp_ne_u32 s[{sT0}:{sT1}], v7, v8", f"v_cmp_eq_u32 s[{sEX}:{sEX+1}], 0, v8", "s_nop 1",
           f"s_or_b64 vcc, vcc, s[{sT0}:{sT1}]", f"s_or_b64 vcc, vcc, s[{sEX}:{sEX+1}]", "s_cbranch_vccz L_polld"]
    a(wvm("pl"), chk)
    P.rare_begin()
    a(label("L_poll"), poll("x"), wvm0(), chk, f"s_sub_u32 s{sSPIN}, s{sSPIN}, 1", f"s_cmp_lg_u32 s{sSPIN}, 0", "s_cbranch_scc1 L_poll")
    P.rare_end()
    a(label("L_polld"))
    stamp("mod_in")
    a(unpack(8, 9, 4), unpack(10, 11, 6))
    for i in range(4): a(f"v_add_f32 v{8+i}, s{sT2}, v{8+i}")
    a("v_cvt_pk_bf16_f32 v4, v8, v9", "v_cvt_pk_bf16_f32 v6, v10, v11", unpack(8, 9, 4), unpack(10, 11, 6))
    for i in range(4): a(f"v_mul_f32 v{8+i}, {f32(QSCALE)}, v{8+i}")
    a(lg("ds_write_b128 v21, v[8:11]", "gs"), wlg0(), "s_barrier")
    pass
    SA, GG = 4, 12
    a(lg(f"ds_read_b128 {vr(SA, 4)}, v20", "g"), lg(f"ds_read_b128 {vr(GG, 4)}, v20 offset:2048", "g"),
      lg(f"ds_read_b128 {vr(SA+4, 4)}, v20 offset:16", "g"), lg(f"ds_read_b128 {vr(GG+4, 4)}, v20 offset:2064", "g"), wlg0())
    a(adv(sWQOFF))
    vq = wq_load(cfg.depth-2, sWQOFF) + wq_load(cfg.depth-1, sWQOFF)
    for row in range(16):
        b = XN + 8*row
        if row: a(f"v_xor_b32 v{20+(row&1)}, {16*row}, v23")
        for d in range(4): a(f"v_pk_fma_f32 {vr(b+2*d, 2)}, {vr(b+2*d, 2)}, {vr(GG+2*d, 2)}, {vr(SA+2*d, 2)}")
        if row == 8: a(wlg("hw3"), adv(sWQOFF))
        a(vq.pop(0))
        for d in range(4): a(f"v_cvt_pk_bf16_f32 v{b+d}, v{b+2*d}, v{b+2*d+1}")
        a(lg(f"ds_write_b128 v{20+(row&1) if row else 23}, {vr(b, 4)}", f"hw{row}"))
    a("v_lshrrev_b32 v6, 4, v2", "v_xor_b32 v4, v2, v6", "v_lshlrev_b32 v4, 4, v4", "v_xor_b32 v5, 64, v4")
    a(f"s_lshl_b32 s{sW2K}, s{sW}, 11", f"s_lshl_b32 s{sW4K}, s{sW}, 12")
    a(wlg0(), wvm("wq0"), perms(0, 0), "s_barrier")
    stamp("h_done")

def early_touches():
    return ["v_and_b32 v240, 15, v2", "v_lshlrev_b32 v240, 7, v240",
            f"s_lshl_b32 s{sT0}, s{sRHO}, 2", f"s_add_u32 s{sT0}, s{sT0}, s{sW}", f"s_lshl_b32 s{sT0}, s{sT0}, 11", f"s_lshl_b32 s{sT1}, s{sG}, 19",
            f"s_add_u32 s{sT0}, s{sT0}, s{sT1}", f"s_add_u32 s{sT2}, s{sT0}, {1536*256}",
            vm(f"buffer_load_dword a{A_DUM+2}, v240, {srd(S_K)}, s{sT2} offen{NT('w')}", "dummy"),
            vm(f"buffer_load_dword a{A_DUM+1}, v240, {srd(S_V)}, s{sT2} offen{NT('w')}", "dummy"),
            "v_bfe_u32 v241, v2, 2, 2", "v_and_b32 v242, 3, v2", "v_mul_u32_u24 v241, 6144, v241", "v_lshl_add_u32 v241, v242, 7, v241", "v_lshlrev_b32 v242, 2, v0",
            f"s_and_b32 s{sT0}, s{sPP}, 31", f"s_lshl_b32 s{sT0}, s{sT0}, 2", f"s_add_u32 s{sT0}, s{sT0}, s{sW}", f"s_mul_i32 s{sT0}, s{sT0}, {4*6144}",
            f"s_lshr_b32 s{sT1}, s{sPP}, 5", f"s_lshl_b32 s{sT1}, s{sT1}, 9", f"s_add_u32 s{sT0}, s{sT0}, s{sT1}", f"s_add_u32 s{sT0}, s{sT0}, 2048",
            vm(f"buffer_load_dword a{A_DUM}, v241, {srd(S_TA)}, s{sT0} offen{NT('m')}", "dummy"),
            vm(f"buffer_load_dword a{A_MM+8}, v242, {srd(S_TB)}, 0 offen{NT('m')}", "c")]
def m2_loads():
    return [f"v_mul_u32_u24 v250, {2*6144}, v0", f"s_lshl_b32 s{sT2}, s{sPP}, 4", f"s_add_u32 s{sT2}, s{sT2}, 2048", f"s_add_u32 s{sT1}, s{sT2}, 6144",
            vm(f"buffer_load_dwordx4 {ar(A_MM, 4)}, v250, {srd(S_TA)}, s{sT2} offen{NT('m')}", "mm"), vm(f"buffer_load_dwordx4 {ar(A_MM+4, 4)}, v250, {srd(S_TA)}, s{sT1} offen{NT('m')}", "mm")]
def m2_calc():
    RW, SV, T, AC = 240, 248, 32, list(range(40, 48))
    dpp = lambda r, rot: f"v_add_f32_dpp v{r}, v{r}, v{r} row_ror:{rot} row_mask:0xf bank_mask:0xf"
    L2E = f32(-math.log2(math.e))
    o = [f"v_accvgpr_read_b32 v{T}, a{A_MM+8}"] + unpack(SV, SV+1, T) + [f"v_mul_f32 v{T}, {L2E}, v{SV}", f"v_mul_f32 v{T+1}, {L2E}, v{SV+1}", f"v_exp_f32 v{T}, v{T}", f"v_exp_f32 v{T+1}, v{T+1}",
         "GAP", f"v_add_f32 v{T}, 1.0, v{T}", f"v_add_f32 v{T+1}, 1.0, v{T+1}", f"v_rcp_f32 v{T}, v{T}", f"v_rcp_f32 v{T+1}, v{T+1}", "GAP",
         f"v_mul_f32 v{SV}, v{SV}, v{T}", f"v_mul_f32 v{SV+1}, v{SV+1}, v{T+1}", f"v_cvt_pk_bf16_f32 v{T}, v{SV}, v{SV+1}"] + unpack(SV, SV+1, T)
    o += ["MARK", wvm("mm")] + [f"v_accvgpr_read_b32 v{RW+i}, a{A_MM+i}" for i in range(8)]
    for r in range(2):
        for d in range(4): o += unpack(T+2*d, T+2*d+1, RW+4*r+d)
        for k in range(8):
            o.append(f"v_mul_f32 v{AC[k]}, v{T+k}, v{SV}" if r == 0 else f"v_fmac_f32 v{AC[k]}, v{T+k}, v{SV+1}")
    o += ["v_lshrrev_b32 v48, 4, v2", f"s_lshl_b32 s{sT0}, s{sW}, 5", f"s_add_u32 s{sT0}, s{sT0}, {L_E0}", f"v_lshl_add_u32 v48, v48, 3, s{sT0}"]
    o += [f"v_permlane32_swap_b32 v{AC[k]}, v{AC[k+4]}" for k in range(4)] + [f"v_add_f32 v{AC[k]}, v{AC[k]}, v{AC[k+4]}" for k in range(4)]
    o += ["v_and_b32 v7, 1, v2"]
    o += [f"v_permlane16_swap_b32 v{AC[k]}, v{AC[k+2]}" for k in range(2)] + [f"v_add_f32 v{AC[k]}, v{AC[k]}, v{AC[k+2]}" for k in range(2)]
    for rot in (8, 4, 2, 1): o += ["GAP", dpp(AC[0], rot), dpp(AC[1], rot)]
    o += ["GAP", lg(f"ds_write_b64 v48, {vr(AC[0], 2)}", "ms"), f"v_lshlrev_b32 v49, 4, v7", f"v_add_u32 v49, {L_E0}, v49", "v_lshlrev_b32 v7, 6, v7"]
    return o
def m2_publish():
    T = 128
    o = [lg(f"ds_read_b128 {vr(T+4*w, 4)}, v49 offset:{32*w}", "mr") for w in range(4)]
    o += [f"s_bfe_u32 s{sT0}, s{sPP}, 0x40002", f"s_lshl_b32 s{sT0}, s{sT0}, 8", f"s_lshr_b32 s{sT1}, s{sPP}, 6", f"s_lshl_b32 s{sT1}, s{sT1}, 4", f"s_add_u32 s{sT0}, s{sT0}, s{sT1}",
          f"s_and_b32 s{sT1}, s{sPP}, 1", f"s_lshl_b32 s{sT1}, s{sT1}, 7", f"s_add_u32 s{sT0}, s{sT0}, s{sT1}",
          f"s_bfe_u32 s{sT1}, s{sPP}, 0x10001", f"s_lshl_b32 s{sT1}, s{sT1}, 3", f"s_add_u32 s{sT0}, s{sT0}, s{sT1}", f"s_add_u32 s{sT0}, s{sT0}, {WS_M2}", wlg("mr")]
    for h in range(4): o += [f"v_add_f32 v{T+h}, v{T+h}, v{T+4+h}", f"v_add_f32 v{T+8+h}, v{T+8+h}, v{T+12+h}"]
    for h in range(4): o.append(f"v_add_f32 v{T+h}, v{T+h}, v{T+8+h}")
    o += [f"v_cvt_pk_bf16_f32 v{T}, v{T}, v{T+1}", f"v_cvt_pk_bf16_f32 v{T+1}, v{T+2}, v{T+3}",
          vm(f"buffer_store_dwordx2 {vr(T, 2)}, v7, {srd(S_WS)}, s{sT0} offen sc1", "m2s")]
    return o

def perms(t, c):
    b = R[t % 6]; F = FST[c & 1]
    o = []
    for par, sel in ((0, sSELLO), (1, sSELHI)):
        for m in range(4):
            o.append(f"v_perm_b32 v{F+4*par+m}, v{b+4*(2*m+1)+c}, v{b+4*(2*m)+c}, s{sel}")
    return o
def hreads(t):
    return [lg(f"ds_read_b128 {ar(A_HB+16*(t&1)+4*qt, 4)}, v{V_HR+(t&1)} offset:{t*4096+qt*1024}", f"h{t}") for qt in range(4)]
def kv_items(u, soff):
    s = u & 3
    tg = f"kv{u//2 & 1}"
    return [f"s_add_u32 m0, s{sW2K}, {L_K+8192*s}",
            vm(f"buffer_load_dwordx4 v{V_KD}, {srd(S_K)}, s{soff} offen{NT('k')} lds", tg),
            vm(f"buffer_load_dwordx4 v{V_KD+1}, {srd(S_K)}, s{soff} offen offset:1024{NT('k')} lds", tg),
            f"s_add_u32 m0, s{sW2K}, {L_V+8192*s}",
            vm(f"buffer_load_dwordx4 v{V_VD}, {srd(S_V)}, s{soff} offen{NT('k')} lds", tg),
            vm(f"buffer_load_dwordx4 v{V_VD+1}, {srd(S_V)}, s{soff} offen offset:1024{NT('k')} lds", tg)]
def kv_adv(): return [f"s_add_u32 s{sKV0}, s{sKV0}, 16384", f"s_add_u32 s{sKV1}, s{sKV1}, 16384"]

def fkey(dst, k, t1, t2):
    return [f"v_lshrrev_b32 v{t1}, 1, v{k}", f"v_xor_b32 v{t2}, v{t1}, v{k}", f"v_and_b32 v{t1}, 4, v{t1}", f"v_and_b32 v{t2}, 4, v{t2}",
            f"v_and_b32 v{dst}, 3, v{k}", f"v_lshl_or_b32 v{dst}, v{t2}, 1, v{dst}", f"v_or_b32 v{dst}, v{dst}, v{t1}"]

A_PK = 160
def addr_early():
    t0, t1, t2, t3, t4, d = 12, 13, 14, 15, 16, 17
    pk = lambda i: f"v_accvgpr_write_b32 a{A_PK+i}, v{d}"
    o = [f"v_lshrrev_b32 v{t0}, 4, v2", f"v_and_b32 v{t4}, 15, v2", f"s_lshl_b32 s{sT0}, s{sW}, 3", f"v_add_u32 v{t0}, s{sT0}, v{t0}"]
    for i in range(2):
        o += [f"v_add_u32 v{t3}, {4*i}, v{t0}", f"v_and_b32 v{t3}, 15, v{t3}"]
        o += fkey(d, t3, t1, t2)
        o += [f"v_xor_b32 v{d}, v{d}, v{t4}", f"v_lshlrev_b32 v{d}, 4, v{d}", f"v_lshl_or_b32 v{d}, v{t0}, 8, v{d}", pk(i)]
        o += [f"v_and_b32 v{t3}, 7, v{t3}", f"v_lshlrev_b32 v{t3}, 1, v{t3}", f"v_xor_b32 v{d}, v{t3}, v{t4}",
              f"v_lshlrev_b32 v{d}, 4, v{d}", f"v_lshl_or_b32 v{d}, v{t0}, 8, v{d}", pk(2+i)]
    o += fkey(t3, t4, t1, t2)
    o += [f"v_lshrrev_b32 v{t0}, 4, v2", f"v_lshlrev_b32 v{t1}, 2, v{t0}", f"v_xor_b32 v{t3}, v{t3}, v{t1}", f"v_lshlrev_b32 v{t3}, 4, v{t3}",
          f"v_lshl_or_b32 v{t3}, v{t4}, 8, v{t3}", f"v_add_u32 v{d}, {L_K}, v{t3}", pk(4)]
    o += [f"v_lshrrev_b32 v{t0}, 2, v2", f"v_and_b32 v{t1}, 7, v{t0}", f"v_and_b32 v{t2}, 3, v2", f"v_lshlrev_b32 v{t2}, 3, v{t2}",
          f"v_lshl_or_b32 v{t2}, v{t1}, 5, v{t2}", f"v_lshl_or_b32 v{t2}, v{t0}, 8, v{t2}", f"v_add_u32 v{d}, {L_V}, v{t2}", pk(5)]
    o += [f"v_mov_b32 v{t0}, 0x3f803f80"] + [f"v_accvgpr_write_b32 a{A_ONE+i}, v{t0}" for i in range(4)]
    o += [f"v_accvgpr_write_b32 a{A_SEN+i}, -1" for i in range(4)]
    o += [f"v_lshrrev_b32 v{t1}, 5, v2", f"v_and_b32 v{t2}, 7, v2", f"v_lshl_or_b32 v{t1}, v{t1}, 3, v{t2}",
          f"s_lshr_b32 s{sT0}, s{sRB}, 1", f"v_cmp_eq_u32 vcc, s{sT0}, v{t1}", f"s_and_b32 s{sT0}, s{sRB}, 1", f"s_lshl_b32 s{sT0}, s{sT0}, 4", f"s_lshl_b32 s{sT0}, 0x8080, s{sT0}",
          f"v_mov_b32 v{t2}, s{sT0}", f"v_cndmask_b32 v{t2}, 0, v{t2}, vcc", f"v_or_b32 v{t2}, 0x40404040, v{t2}", f"v_accvgpr_write_b32 a{A_MSK}, v{t2}"]
    o += [f"v_lshrrev_b32 v{t0}, 3, v2", f"v_lshrrev_b32 v{t1}, 4, v2", f"v_and_b32 v{t2}, 7, v2", f"v_lshlrev_b32 v{t1}, 1, v{t1}", f"v_xor_b32 v{t2}, v{t2}, v{t1}",
          f"v_lshlrev_b32 v{t2}, 4, v{t2}", f"v_accvgpr_write_b32 a{A_SW}, v{t2}", f"s_lshl_b32 s{sT0}, s{sW}, 8", f"v_lshl_or_b32 v{d}, v{t0}, 10, v{t2}", f"v_add_u32 v{d}, s{sT0}, v{d}", pk(6)]
    return o
def addr_setup():
    o = [f"v_accvgpr_read_b32 v{V_KD+i}, a{A_PK+i}" for i in range(4)] + ["MARK"]
    o += [f"v_accvgpr_read_b32 v{V_KR}, a{A_PK+4}", f"v_accvgpr_read_b32 v{V_VR}, a{A_PK+5}", f"v_accvgpr_read_b32 v253, a{A_PK+6}"]
    for s in range(1, 4): o += [f"v_xor_b32 v{V_KR+s}, {16*s}, v{V_KR}"]
    for dt in range(1, 8): o += [f"v_xor_b32 v{V_VR+dt}, {32*dt}, v{V_VR}"]
    o += [f"v_lshlrev_b32 v{V_PF}, 4, v2", f"s_lshl_b32 s{sT0}, s{sW}, 14", f"s_add_u32 s{sT0}, s{sT0}, {L_B}", f"v_add_u32 v1, s{sT0}, v{V_PF}"]
    return o

def scalar_setup():
    o = [f"s_lshl_b32 s{sKV0}, s{sG}, 19", f"s_add_u32 s{sKV0}, s{sKV0}, {1536*256}", f"s_add_u32 s{sKV1}, s{sKV0}, 8192"]
    o += [f"s_lshl_b32 s{sWOB}, s{sG}, 19", f"s_mul_i32 s{sW1B}, s{sG}, 448", f"s_mul_i32 s{sW2B}, s{sG}, {224*1024}"]
    o += [f"s_mul_i32 s{sTEAM}, s{sRB}, {8*MB_SZ}", f"s_add_u32 s{sTEAM}, s{sTEAM}, {WS_MB}",
          f"s_mul_i32 s{sEX}, s{sG}, {MB_SZ}", f"s_add_u32 s{sMB}, s{sTEAM}, s{sEX}",
          f"s_mul_i32 s{sEX}, s{sW}, {MB_W}", f"s_add_u32 s{sMB}, s{sMB}, s{sEX}", f"s_mov_b32 s{sPF}, s{sMB}", f"s_mov_b32 s{sBAD}, 0",
          f"s_mov_b32 s{sWOP}, s{sWOB}", f"s_mov_b32 s{sRING}, s{sW4K}", f"s_mov_b32 s{sRD}, 32768", f"s_or_b32 s{sFLAG}, s{sFLAG}, 0x40"]
    o += mk_srd(S_TA, S_B2P, 1024) + mk_srd(S_TB, S_B1P, 3584)
    o += [f"s_lshl_b32 s{sEX}, s{sRB}, 2", f"s_add_u32 s{sEX}, s{sEX}, s{sW}", f"s_lshl_b32 s{sEX}, s{sEX}, 3", f"s_add_u32 s{sEX}, s{sEX}, s{sG}",
          f"s_lshl_b32 s{sXROW}, s{sEX}, 11", f"s_lshl_b32 s{sB1O}, s{sW}, 7", f"s_add_u32 s{sB1O}, s{sB1O}, s{sW1B}", f"s_mov_b32 s{sM2O}, {WS_M2}"]
    return o

def warmups():
    return [f"v_and_b32 v20, 63, v0", f"v_min_u32 v21, 27, v20", f"v_lshlrev_b32 v21, 7, v21", f"s_lshl_b32 s{sT2}, s{sRHO}, 2", f"s_add_u32 s{sT2}, s{sT2}, s{sW}",
            f"s_mul_i32 s{sT1}, s{sT2}, 3584", f"s_add_u32 s{sT1}, s{sT1}, s{sW2B}",
            f"v_bfe_u32 v22, v20, 2, 3", f"v_mul_u32_u24 v22, 3584, v22", f"v_and_b32 v20, 3, v20", f"v_lshl_add_u32 v22, v20, 7, v22",
            f"s_mul_i32 s{sT2}, s{sT2}, {8*3584}", f"s_and_b32 s{sT0}, s{sW1B}, 0xffffff80", f"s_add_u32 s{sT2}, s{sT2}, s{sT0}",
            vm(f"buffer_load_dword a{A_DUM+2}, v22, {srd(S_W1)}, s{sT2} offen{NT('W')}", "dummy"),
            vm(f"buffer_load_dword a{A_DUM+1}, v21, {srd(S_W2)}, s{sT1} offen{NT('W')}", "dummy")]

def qproj():
    a = P.add
    a(hreads(0))
    mc = m2_calc(); k = mc.index("MARK")
    silu = [x.replace("v32", "v240").replace("v33", "v241") if isinstance(x, str) else x for x in mc[:k]]
    et = early_touches()
    if not cfg.kvtouch: et = [et[14], et[-1]]
    extra = et + [x for x in addr_setup() if x != "MARK"] + ["WAIT8", wvm("c")] + silu
    m2dot = mc[k+1:]
    scal = scalar_setup()
    tail_srd = mk_srd(S_TA, S_B2P, 1024) + mk_srd(S_TB, S_B1P, 3584)[:3]
    scal = [x for x in scal if x not in tail_srd]
    mmq = m2_loads() + tail_srd
    late = kv_items(0, sKV0) + kv_items(1, sKV1) + kv_adv() + kv_items(2, sKV0) + kv_items(3, sKV1) + kv_adv()
    a(wlg("h0"))
    for t in range(16):
        mf, gaps = [], [[] for _ in range(32)]
        for c in range(4):
            F = FST[c & 1]
            for par in range(2):
                for qt in range(4):
                    d = ar(A_QACC + ((2*c+par)*4+qt)*4, 4)
                    mf.append(f"{MF} {d}, {vr(F+4*par, 4)}, {ar(A_HB+16*(t&1)+4*qt, 4)}, {d if t else 0}")
        if t + cfg.depth < 16:
            ad = adv(sWQOFF); gaps[0].append(ad[0]); gaps[1].append(ad[1])
            for j, x in enumerate(wq_load(t+cfg.depth, sWQOFF)): gaps[4*j+2].append(x)
        for c in range(4):
            g0 = 8*c
            pm = perms(t, c+1) if c < 3 else perms(t+1, 0) if t < 15 else []
            for k in (0, 1, 3, 4): gaps[g0+k] += pm[:2]; pm = pm[2:]
        if t < 15:
            hr = hreads(t+1)
            gaps[5] += hr[:2]; gaps[7] += hr[2:]
            gaps[23].append(wvm(f"wq{t+1}")); gaps[31].append(wlg(f"h{t+1}"))
        free = list(range(8, 32))
        for k in range(2, 31):
            if scal and not any(isscalar(x) or isvm(x) for x in gaps[k]) and k % 8 in (0, 1, 3, 4): gaps[k].insert(0, scal.pop(0))
        if t == 12: fill(gaps, list(range(32)), mmq); assert not mmq
        if t >= 13: fill(gaps, [k for k in range(32) if (t > 13 or k >= 12) and k % 4 in (1, 2)], late)
        if extra and extra[0] == "WAIT8" and t >= 8: extra.pop(0)
        k = extra.index("WAIT8") if "WAIT8" in extra else len(extra)
        part = extra[:k]; fill(gaps, free, part); extra = part + extra[k:]
        if t >= 14:
            assert not extra
            fill(gaps, list(range(32)), m2dot)
        if t in (4, 8, 12): stamp(f"q{t}", True)
        a(raw(f"; MARK q{t}"))
        a(template(mf, gaps))
    assert not extra
    print("left after Q projection:", len(late), len(m2dot))
    a("s_nop 1", [x if x != "GAP" else "s_nop 1" for x in m2dot], late)
    a(wvm("kv0"), wlg0(), "s_barrier")
    stamp("qproj")

def KF(u, kt, s): return A_KF + 32*(u & 1) + 16*kt + 4*s
def VF(u, dt): return A_VF + 32*(u & 1) + 4*dt
def OA(dt, qt): return V_O + (dt*4 + qt)*4
def QF(s, qt): return V_Q + (s*4 + qt)*4
def kreads(u):
    return [lg(f"ds_read_b128 {ar(KF(u, kt, s), 4)}, v{V_KR+s} offset:{(u&3)*8192+kt*4096}", f"k{u&1}") for s in range(4) for kt in range(2)]
def vreads(u):
    return [lg(f"ds_read_b64_tr_b16 {ar(VF(u, dt)+2*hh, 2)}, v{V_VR+dt} offset:{(u&3)*8192+hh*4096}", f"v{u&1}") for dt in range(8) for hh in range(2)]
def qk(n):
    u, qt = divmod(n, 4)
    o = []
    for s in range(4):
        for kt in range(2):
            d = vr(V_S + 8*(n & 1) + 4*kt, 4)
            o.append(f"{MF} {d}, {ar(KF(u, kt, s), 4)}, {vr(QF(s, qt), 4)}, {d if s else vr(V_NM+4*qt, 4)}")
    return o
def pv(n):
    u, qt = divmod(n, 4)
    p = vr(V_P + 4*(n & 1), 4)
    o = []
    for dt in range(8):
        d = vr(OA(dt, qt), 4)
        o.append(f"{MF} {d}, {ar(VF(u, dt), 4)}, {p}, {d if u else 0}")
    d = ar(A_L + 4*qt, 4)
    o.append(f"{MF} {d}, {ar(A_ONE, 4)}, {p}, {d if u else 0}")
    return o
def sreg(n, i):
    if n < 4: return OA(2*n + (i >> 2), 3) + (i & 3)
    return V_S + 8*(n & 1) + i
def expo(n):
    e = [f"v_exp_f32 v{sreg(n, i)}, v{sreg(n, i)}" for i in range(8)]
    c = [f"v_cvt_pk_bf16_f32 v{V_P+4*(n&1)+i}, v{sreg(n, 2*i)}, v{sreg(n, 2*i+1)}" for i in range(4)]
    pre = [f"v_add_f32 v{sreg(n, i)}, v{sreg(n, i)}, v{V_NM+4*n}" for i in range(8)] if n < 4 else []
    return pre, e, c
def frag_reads(n):
    u, ph = n // 4 + 1, n % 4
    if u > 15: return []
    kr, vrd = kreads(u), vreads(u)
    if n < 4: kr = []
    if ph < 2: return kr[4*ph:4*ph+4] + vrd[2*ph:2*ph+2]
    return vrd[4+6*(ph-2):10+6*(ph-2)]

MU_TEMPLATES = [
    dict(e=[0,2,4,6,8,10,12,14], c=[9,9,16,16], d=[1,1,3,3,5,5], w=15),
    dict(e=[0,2,4,6,8,10,12,14], c=[7,7,15,15], d=[1,1,3,3,5,5], w=13),
    dict(e=[0,2,4,6,8,10,12,14], c=[9,9,16,16], d=[1,1,5,5,11,11], w=15),
    dict(e=[0,2,4,6,9,11,13,15], c=[8,8,16,16], d=[1,1,3,3,5,5], w=14),
    dict(e=[0,1,3,4,7,8,10,11], c=[6,6,13,13], d=[2,2,5,5,9,9], w=15),
    dict(e=[0,2,4,6,8,10,12,14], c=[11,11,16,16], d=[1,1,3,3,7,7], w=15),
]
carry = []
def muslot(n, q=None, tail=()):
    has_qk = 4 <= n + 2 <= 63
    mf = (qk(n+2) if has_qk else []) + pv(n)
    pre, e, c = expo(n+1) if n + 1 <= 63 else ([], [], [])
    ds = frag_reads(n)
    endw = []
    if n % 4 == 1 and n + 3 <= 63: endw.append(wlg(f"k{((n+3)//4) & 1}"))
    if n % 4 == 3 and n < 63: endw.append(wlg(f"v{((n+1)//4) & 1}"))
    if has_qk and not pre and e:
        gaps = [[] for _ in range(17)]
        T = MU_TEMPLATES[cfg.mu]
        for i in range(8): gaps[T["e"][i]].append(e[i])
        for k, x in carry: gaps[k].append(x)
        del carry[:]
        for i in range(4):
            if T["c"][i] >= 0: gaps[T["c"][i]].append(c[i])
            elif n % 16 == 3 or n >= 61: gaps[16].append(c[i])
            else: carry.append((-T["c"][i], c[i]))
        for k in sorted(T["d"]):
            if ds: gaps[k].append(ds.pop(0))
        assert not ds
        if not tail: gaps[14] = endw + gaps[14]
        if q is not None: fill(gaps, [k for k in range(17) if not (tail and k == 16)], q)
        if tail: gaps[16] += list(tail)
        return template(mf, gaps)
    ev = list(pre)
    for i in range(len(e)):
        ev.append(e[i])
        if i >= 2 and i % 2 == 0: ev.append(c[i//2 - 1])
    if c: ev += ["s_nop 0", c[3]]
    oth = ds + (q or [])
    if q is not None: del q[:]
    out = [] if has_qk else [op("s_nop 1")]
    ev = [op(x) if isinstance(x, str) else x for x in ev]
    oth = [op(x) if isinstance(x, str) else x for x in oth]
    for k, m in enumerate(mf):
        out.append(op(m))
        left = len(mf) - k
        cap = max(2, -(-(sum(x.cost for x in ev) + sum(x.cost for x in oth)) // left))
        used = 0
        while used < cap and (ev or oth):
            src = None
            for L in ((ev, oth) if k % 2 == 0 else (oth, ev)):
                if L and used + L[0].cost <= cap:
                    if L is ev and L[0].text.startswith("v_cvt") and out[-1].text.startswith("v_exp"): continue
                    src = L; break
            if src is None: break
            x = src.pop(0); out.append(x); used += x.cost
    return out + ev + oth + endw + [op(x) if isinstance(x, str) else x for x in tail]

def stage_dma(sig):
    st = STAGES[sig % 6]
    if sig < 32:
        p, t = divmod(sig, 16); S, vb, base, off = S_WO, V_WD, sWOB, t*32768 + 128*p
    elif sig < 48:
        pos = sig - 32; tb = 4*((pos >> 1) & 3) + 2*(pos >> 3) + (pos & 1)
        S, vb, base, off = S_W1, V_W1D, sW1B, tb*32*3584
    else:
        p, t = divmod(sig - 48, 7); S, vb, base, off = S_W2, V_WD, sW2B, t*32768 + 128*p
    return [f"s_add_u32 s{sT3}, s{base}, {off}", f"s_add_u32 m0, s{sW4K}, {st}"] + \
           [vm(f"buffer_load_dwordx4 v{vb+i}, {srd(S)}, s{sT3} offen offset:{1024*i}{NT('r')} lds", f"st{sig}") for i in range(4)]

V_W1D, V_TR, V_LIN, V_PS, V_GA = 17, 8, 16, 21, 22
def normalize(qt):
    rl = V_NM + 2*qt
    o = [f"v_accvgpr_read_b32 v{rl}, a{A_L+4*qt}", f"v_cmp_nle_f32 vcc, v{rl}, v7", f"v_rcp_f32 v{rl}, v{rl}", "s_nop 0",
         f"s_or_b32 s{sBAD}, s{sBAD}, vcc_lo", f"s_or_b32 s{sBAD}, s{sBAD}, vcc_hi"]
    for u in range(4):
        x, y = OA(2*u, qt), OA(2*u+1, qt)
        for b in (x, x+2, y, y+2): o.append(f"v_pk_mul_f32 {vr(b, 2)}, {vr(b, 2)}, {vr(rl, 2)} op_sel_hi:[1,0]")
        o += [f"v_cvt_pk_bf16_f32 v{x}, v{x}, v{x+1}", f"v_cvt_pk_bf16_f32 v{x+1}, v{x+2}, v{x+3}",
              f"v_cvt_pk_bf16_f32 v{x+2}, v{y}, v{y+1}", f"v_cvt_pk_bf16_f32 v{x+3}, v{y+2}, v{y+3}"]
        o.append(lg(f"ds_write_b128 v1, {vr(x, 4)} offset:{u*4096+qt*1024}", "ow"))
    return o

def param_loads():
    x, y, z, c = 20, 21, 22, 23
    o = [f"v_bfe_u32 v{x}, v0, 4, 2", f"v_bfe_u32 v{y}, v0, 3, 1", f"v_and_b32 v{z}, 3, v0",
         f"v_lshlrev_b32 v{c}, 10, v{x}", f"v_lshl_or_b32 v{c}, v{y}, 8, v{c}", f"v_lshl_or_b32 v{c}, v{z}, 6, v{c}"]
    for p in range(2):
        for vec in range(4):
            o.append(vm(f"buffer_load_dwordx4 {ar(A_M2+16*p+4*vec, 4)}, v{c}, {srd(S_WS)}, s{sM2O} offen offset:{512*p+16*vec} sc1", "par"))
    o += [f"v_lshlrev_b32 v{c}, 8, v{x}", f"v_lshl_or_b32 v{c}, v{y}, 6, v{c}", f"v_lshl_or_b32 v{c}, v{z}, 3, v{c}", f"v_lshlrev_b32 v{x}, 3, v{x}"]
    for p in range(2):
        for h in range(2):
            o.append(vm(f"buffer_load_dwordx2 {ar(A_B2+4*p+2*h, 2)}, v{c}, {srd(S_TA)}, 0 offen offset:{128*p+32*h}{NT('p')}", "par"))
    o += [f"v_bfe_u32 v{y}, v0, 2, 1", f"v_lshl_or_b32 v{y}, v{y}, 10, v{c}"]
    for e in range(4):
        o.append(vm(f"buffer_load_dwordx2 {ar(A_B1+2*e, 2)}, v{x}, {srd(S_TB)}, s{sB1O} offen offset:{32*e}{NT('p')}", "par"))
    for p in range(2):
        for h in range(2):
            o.append(vm(f"buffer_load_dwordx2 {ar(A_XR+4*p+2*h, 2)}, v{y}, {srd(S_X)}, s{sXROW} offen offset:{128*p+32*h}{NT('p')}", "par"))
    o += [f"v_accvgpr_write_b32 a{A_OV}, v{y}"]
    return o

def flag_load(tmp, tag): return [f"v_lshlrev_b32 v{tmp}, 2, v0", f"v_and_b32 v{tmp}, 0xff, v{tmp}", vm(f"buffer_load_dword a{A_FL}, v{tmp}, {srd(S_DBG)}, 0 offen sc1", tag)]
def flag_check(tmp):
    a = P.add
    chk = [f"v_accvgpr_read_b32 v{tmp}, a{A_FL}", f"v_accvgpr_read_b32 v{tmp+1}, a{A_MSK}", f"v_and_b32 v{tmp}, v{tmp+1}, v{tmp}", f"v_cmp_ne_u32 vcc, v{tmp+1}, v{tmp}", "s_cbranch_vccz L_flagok"]
    a(wvm("fl"), chk)
    P.rare_begin()
    a(f"s_mov_b32 s{sSPIN}, {SPIN}", label("L_flagsp"), flag_load(tmp, "x"), wvm0(), chk,
      f"s_sub_u32 s{sSPIN}, s{sSPIN}, 1", f"s_cmp_lg_u32 s{sSPIN}, 0", "s_cbranch_scc1 L_flagsp")
    P.rare_end()
    a(label("L_flagok"))
def prefill(n):
    if cfg.nopf: return [f"s_nop 0" for i in range(n)] + [f"s_add_u32 s{sPF}, s{sPF}, {1024*n}"]
    o = [vm(f"buffer_store_dwordx4 {ar(A_SEN, 4)}, v{V_PF}, {srd(S_WS)}, s{sPF} offen offset:{1024*i} sc1", "pf") for i in range(n)]
    return o + [f"s_add_u32 s{sPF}, s{sPF}, {1024*n}"]

def attention():
    a = P.add
    a(kreads(0))
    a(m2_publish())
    T = 32
    def conv(qt):
        o = []
        for s in range(4):
            for mm in (0, 2):
                t = T + 4*((2*s + mm//2) & 3)
                for k in range(4): o.append(f"v_accvgpr_read_b32 v{t+k}, a{A_QACC+((2*mm+k)*4+qt)*4+s}")
                o += [f"v_cvt_pk_bf16_f32 v{QF(s, qt)+mm}, v{t}, v{t+1}", f"v_cvt_pk_bf16_f32 v{QF(s, qt)+mm+1}, v{t+2}, v{t+3}"]
        return o
    def s0(qt):
        o = []
        for s in range(4):
            for kt in range(2):
                d = vr(OA(2*qt+kt, 3), 4)
                o.append(f"{MF} {d}, {ar(KF(0, kt, s), 4)}, {vr(QF(s, qt), 4)}, {d if s else 0}")
        return o
    def maxred(qt):
        r = [sreg(qt, i) for i in range(8)]
        m, t = V_NM + 4*qt, V_NM + 4*qt + 1
        return [f"v_max3_f32 v{m}, v{r[0]}, v{r[1]}, v{r[2]}", f"v_max3_f32 v{t}, v{r[3]}, v{r[4]}, v{r[5]}", f"v_max3_f32 v{m}, v{m}, v{r[6]}, v{r[7]}",
                f"v_max_f32 v{m}, v{m}, v{t}", f"v_mov_b32 v{t}, v{m}", "s_nop 1", f"v_permlane16_swap_b32 v{m}, v{t}", f"v_max_f32 v{m}, v{m}, v{t}",
                f"v_mov_b32 v{t}, v{m}", "s_nop 1", f"v_permlane32_swap_b32 v{m}, v{t}", f"v_max_f32 v{m}, v{m}, v{t}",
                f"v_mul_f32 v{m}, -1.0, v{m}", f"v_mov_b32 v{m+1}, v{m}", f"v_mov_b32 v{m+2}, v{m}", f"v_mov_b32 v{m+3}, v{m}"]
    a(f"v_mov_b32 v{V_WD}, v253")
    for i in range(1, 4): a(f"v_add_u32 v{V_WD+i}, {7168*i}, v253")
    a(conv(0), kreads(1), wlg("k0"))
    for qt in range(4):
        fl = conv(qt+1) if qt < 3 else []
        a(interleave(s0(qt), fl, cap=6))
        if qt == 3: a(vreads(0))
        if qt >= 1: a(maxred(qt-1))
    a("v_and_b32 v7, 15, v0", "v_min_u32 v7, 10, v7", "v_lshlrev_b32 v7, 7, v7", f"s_lshl_b32 s{sT2}, s{sRHO}, 2", f"s_add_u32 s{sT2}, s{sT2}, s{sW}",
      f"s_lshl_b32 s{sT0}, s{sT2}, 13", f"s_add_u32 s{sIDX}, s{sT0}, s{sWOB}")
    a(maxred(3))
    pre, e, c = expo(0)
    a(pre, e, "s_nop 0", c, wlg("v0"))
    stamp("conv")
    def bar(tag, nxt=()): return [wlg0(), wvm(tag), op("s_barrier")] + list(nxt)
    pf = prefill(4)
    a(muslot(0, pf[:1]), muslot(1, pf[1:2]), muslot(2, pf[2:3]))
    a(muslot(3, pf[3:], tail=[f"s_mov_b32 s{sLOOP}, 3"]))
    a(raw(".p2align 6"))
    a(label("L_attn"))
    P.loop_begin(3)
    for half in range(2):
        u0 = 4 + 2*half
        if half == 0: a(bar("kv1"))
        kv = kv_items(u0, sKV0) + kv_items(u0+1, sKV1)
        a(kv.pop(0))
        q = kv + kv_adv()
        st = prefill(4)
        wp = [vm(f"buffer_load_dwordx4 v{V_WD+i}, {srd(S_WO)}, s{sWOP} offen offset:{1024*i}{NT('r')} lds", "wop") for i in range(4)]
        q += [vm(f"buffer_load_dword a{A_DUM}, v7, {srd(S_WO)}, s{sIDX} offen{NT('W')}", "dummy"), f"s_add_u32 s{sIDX}, s{sIDX}, 1408"]
        q += [f"s_add_u32 m0, s{sRING}, {16384*half}", st[0], wp[0], "BREAK", st[1], wp[1], "BREAK", st[2], wp[2], "BREAK", st[3], wp[3], st[4], f"s_add_u32 s{sWOP}, s{sWOP}, 32768"]
        if half == 1: q += [f"s_add_u32 s{sRING}, s{sRING}, s{sRD}", f"s_mul_i32 s{sRD}, s{sRD}, 3", f"s_sub_u32 s{sLOOP}, s{sLOOP}, 1"]
        for j in range(8):
            n = 4 + 8*half + j
            tail = ()
            if j == 7 and half == 0: tail = bar("kv0")
            if j == 7 and half == 1: tail = [f"s_cmp_lg_u32 s{sLOOP}, 0"]
            k = q.index("BREAK") if "BREAK" in q else len(q)
            part = q[:k]
            a(muslot(n, part, tail))
            q = part + (q[k:] if part else q[k+1:])
            if half == 0 and j == 3:
                a(f"s_lshl_b32 s{sT0}, s{sW}, 2", f"s_add_u32 s{sT0}, s{sT0}, s{sLOOP}", f"s_cmp_ge_u32 s{sT0}, 3", "s_cbranch_scc1 L_noflag")
                P.rare_begin()
                a("s_mov_b64 exec, 1", f"v_accvgpr_write_b32 a{A_FL}, s{sFLAG}",
                  vm(f"buffer_store_byte a{A_FL}, off, {srd(S_DBG)}, s{sPP} sc1", "x"), "s_mov_b64 exec, -1", f"s_or_b32 s{sFLAG}, s{sFLAG}, 0x80")
                P.rare_end()
                a(label("L_noflag"))
        assert not q, q
    a("s_cbranch_scc1 L_attn")
    P.loop_end()
    stamp("aloop", True)
    a(bar("kv1"))
    pf = prefill(3) + prefill(3)
    q = flag_load(20, "fl") + [f"v_mov_b32 v7, {f32(2.0**30) if not cfg.force_fallback else f32(1e-3)}"] + warmups()
    nrm = []
    for n in range(52, 64):
        tail = [wlg0(), op("s_barrier")] if n == 59 else ()
        if n == 55:
            assert not q
            flag_check(20)
            q = param_loads()
            for k, x in zip((8, 12, 16, 17, 24, 30, 36, 37), pf): q.insert(k, x)
        if n >= 61: nrm += normalize(n - 61)
        if n >= 62:
            take = nrm[:22]; nrm = nrm[22:]
            a(muslot(n, take))
        else:
            a(muslot(n, q, tail))
    assert not q
    a(nrm, "s_nop 2", normalize(3))
    a(f"s_cmp_lg_u32 s{sBAD}, 0", "s_cbranch_scc1 L_fallback")
    a(label("L_fb_ret"))
    a(ring_addr_setup())
    a(areads(0))
    a(wvm("wop", "pf", "par"), wlg0(), "s_barrier")
    stamp("attn")

A_AF, A_BF = 0, 32
ACCX, ACCY = 128, 192
G0, G1 = 64, 96
V_YR, V_YW, V_LB = 23, 24, 7
V_X1, V_B1F = 32, 48
AFB = [0, 16, 160, 176, 192, 208, 224]
def afb(sig):
    if 26 <= sig < 32: return AFB[(sig - 26 + (26 & 1)) if sig < 28 else sig - 26]
    if sig >= 48: return AFB[(sig - 48) % 7]
    return AFB[sig & 1]
def areads(sig):
    st = STAGES[sig % 6]
    hi = st >= L_E0
    off = st - (L_E0 if hi else 0)
    return [lg(f"ds_read_b64_tr_b16 {ar(afb(sig)+4*e+2*hh, 2)}, v{V_TR+4*hi+e} offset:{off+2048*hh}", f"a{sig}") for e in range(4) for hh in range(2)]
def bfb(sig, qt): return A_BF + 16*(sig & 1) + 4*qt
def breads(sig, qts=range(4)):
    if sig < 32: t, v = sig % 16, V_LB
    elif sig < 48: t, v = sig - 32, V_YR
    else: t, v = (sig - 48) % 7, V_LB
    return [lg(f"ds_read_b128 {ar(bfb(sig, qt), 4)}, v{v} offset:{t*4096+qt*1024}", f"a{sig}") for qt in qts]
def mfmas(sig, acc, first, cinit, qts):
    mf = []
    for e in range(4):
        for qt in qts:
            d = vr(acc + (e*4+qt)*4, 4)
            c = d if not first else (0 if cinit is None else vr(cinit + 4*e, 4))
            mf.append(f"{MF} {d}, {ar(afb(sig)+4*e, 4)}, {ar(bfb(sig, qt), 4)}, {c}")
    return mf
def gstep(sig, acc, first, cinit=None, q=None, nxt=True, dma=True, nq=range(4), end=()):
    mf = mfmas(sig, acc, first, cinit, range(4))
    gaps = [[] for _ in range(16)]
    if nxt:
        t_, b_ = areads(sig+1), breads(sig+1, nq) + [None]*4
        gaps[0] = t_[0:2]; gaps[1] = t_[2:4]
        for i, k in enumerate((3, 4, 5, 7)): gaps[k] = [t_[4+i]] + ([b_[i]] if b_[i] else [])
    if dma:
        d = stage_dma(sig+6)
        gaps[0].insert(0, d[0]); gaps[1].insert(0, d[1])
        for i, k in enumerate((2, 6, 10, 14)): gaps[k] = [d[2+i]]
    if nxt: gaps[15] = [wvm(f"st{sig+2}"), wlg(f"a{sig+1}")]
    gaps[15] += list(end)
    if q: fill(gaps, list(range(16)) if not nxt else [8, 9, 11, 12, 13] if dma else [2, 6, 8, 9, 10, 11, 12, 13, 14], q)
    return template(mf, gaps)
def hstep(sig, acc, first, half, rd, dq=None, q=None):
    mf = mfmas(sig, acc, first, None, (2*half, 2*half+1))
    gaps = [[] for _ in range(8)]
    rd = list(rd)
    tags = {x.tag for x in rd if x.kind == "lg"}
    for k in (0, 1, 3, 4, 5):
        while rd and rd[0].kind != "lg": gaps[k].append(rd.pop(0))
        gaps[k] += rd[:2]; rd = rd[2:]
    assert not rd
    if tags: gaps[7] = [wlg(*tags)]
    if dq:
        for k in (2, 6):
            j = k - 2
            while dq and not isvm(dq[0]):
                gaps[j].insert(0, dq.pop(0)); j += 1
            if dq: gaps[k].append(dq.pop(0))
    if q: fill(gaps, list(range(8)), q)
    return template(mf, gaps)

def pack_store(acc, p, mboff, halves=(0, 1), tag="ps"):
    o = []
    for qt in [2*h + i for h in halves for i in range(2)]:
        if qt % 2 == 0: o.append(f"s_add_u32 s{sPST}, s{sMB}, {mboff+8192*p+2048*qt}")
        for b in range(2):
            x, y = acc + (2*b*4+qt)*4, acc + ((2*b+1)*4+qt)*4
            o += [f"v_cvt_pk_bf16_f32 v{x}, v{x}, v{x+1}", f"v_cvt_pk_bf16_f32 v{x+1}, v{x+2}, v{x+3}",
                  f"v_cvt_pk_bf16_f32 v{x+2}, v{y}, v{y+1}", f"v_cvt_pk_bf16_f32 v{x+3}, v{y+2}, v{y+3}",
                  vm(f"buffer_store_dwordx4 {vr(x, 4)}, v{V_PS}, {srd(S_WS)}, s{sPST} offen offset:{(qt&1)*2048+b*1024} sc1", tag)]
    return o

def gather_loads(buf, n, voff, soffs, tag):
    o = []
    for i in range(n):
        o += [f"s_add_u32 s{sGAT}, s{sTEAM}, {soffs(i)}", vm(f"buffer_load_dwordx4 {vr(buf+4*i, 4)}, v{voff}, {srd(S_WS)}, s{sGAT} offen sc1", tag)]
    return o
def allmax(buf, n, tmp):
    o = [f"v_max3_u32 v{tmp}, v{buf}, v{buf+1}, v{buf+2}", f"v_max_u32 v{tmp+1}, v{buf+3}, v{buf+4}"]
    k = 5
    while k + 3 < 4*n:
        o += [f"v_max3_u32 v{tmp}, v{tmp}, v{buf+k}, v{buf+k+1}", f"v_max3_u32 v{tmp+1}, v{tmp+1}, v{buf+k+2}, v{buf+k+3}"]; k += 4
    assert 4*n - k == 3
    return o + [f"v_max3_u32 v{tmp}, v{tmp}, v{buf+k}, v{buf+k+1}", f"v_max3_u32 v{tmp}, v{tmp}, v{tmp+1}, v{buf+k+2}", f"v_cmp_eq_u32 vcc, -1, v{tmp}"]
def gather_check(buf, n, voff, soffs, tag, tmp, reduced=False):
    a = P.add
    ok, again = newlabel("gok"), newlabel("gre")
    if cfg.stamps and cfg.fine: a(f"s_mov_b32 s{sSPIN}, {SPIN+1}")
    if not reduced:
        a(wvm(tag))
        stamp("w_" + tag + str(uid[0]), True)
        a(allmax(buf, n, tmp))
    a(f"s_cbranch_vccz {ok}")
    P.rare_begin()
    a(f"s_mov_b32 s{sSPIN}, {SPIN}", label(again))
    if cfg.sleep: a(f"s_sleep {cfg.sleep}")
    for i in range(n):
        sk = newlabel("gsk")
        b = buf + 4*i
        a(f"v_max3_u32 v{tmp}, v{b}, v{b+1}, v{b+2}", f"v_max_u32 v{tmp}, v{tmp}, v{b+3}", f"v_cmp_eq_u32 vcc, -1, v{tmp}", f"s_cbranch_vccz {sk}",
          f"s_add_u32 s{sGAT}, s{sTEAM}, {soffs(i)}", vm(f"buffer_load_dwordx4 {vr(b, 4)}, v{voff}, {srd(S_WS)}, s{sGAT} offen sc1", "x"), label(sk))
    a(wvm0(), allmax(buf, n, tmp), f"s_cbranch_vccz {ok}", f"s_sub_u32 s{sSPIN}, s{sSPIN}, 1", f"s_cmp_lg_u32 s{sSPIN}, 0", f"s_cbranch_scc1 {again}")
    P.rare_end()
    a(label(ok))
    if cfg.stamps and cfg.fine:
        k = len(stamp_names); stamp_names.append("N_" + tag + str(uid[0]))
        a(f"s_sub_u32 s0, {SPIN+2}, s{sSPIN}", f"s_lshl_b64 exec, 1, {k}", f"v_accvgpr_write_b32 a{A_STAMP}, s0", f"v_accvgpr_write_b32 a{A_STAMP+1}, s0", "s_mov_b64 exec, -1")

def sum8(buf, dst, tmp):
    o = []
    for g in range(8):
        for d in range(4):
            if g == 0: o += unpack(dst+2*d, dst+2*d+1, buf+d)
            else:
                t = tmp + 2*d
                o += unpack(t, t+1, buf+4*g+d)
        if g:
            for d in range(4): o.append(f"v_pk_add_f32 {vr(dst+2*d, 2)}, {vr(dst+2*d, 2)}, {vr(tmp+2*d, 2)}")
    return o

def aunpack(dst, asrc, n, tmp):
    o = [f"v_accvgpr_read_b32 v{tmp+i}, a{asrc+i}" for i in range(n)]
    for i in range(n): o += unpack(dst+2*i, dst+2*i+1, tmp+i)
    return o

def rowstats(x, t):
    o = [f"v_pk_add_f32 {vr(t, 2)}, {vr(x, 2)}, {vr(x+2, 2)}", f"v_pk_mul_f32 {vr(t+2, 2)}, {vr(x, 2)}, {vr(x, 2)}",
         f"v_pk_add_f32 {vr(t+4, 2)}, {vr(x+4, 2)}, {vr(x+6, 2)}", f"v_pk_mul_f32 {vr(t+6, 2)}, {vr(x+2, 2)}, {vr(x+2, 2)}"]
    for k in range(4, 16, 2):
        if k >= 8: o.append(f"v_pk_add_f32 {vr(t+4*((k>>1)&1), 2)}, {vr(t+4*((k>>1)&1), 2)}, {vr(x+k, 2)}")
        o.append(f"v_pk_fma_f32 {vr(t+2+4*((k>>1)&1), 2)}, {vr(x+k, 2)}, {vr(x+k, 2)}, {vr(t+2+4*((k>>1)&1), 2)}")
    o += [f"v_pk_add_f32 {vr(t, 2)}, {vr(t, 2)}, {vr(t+4, 2)}", f"v_pk_add_f32 {vr(t+2, 2)}, {vr(t+2, 2)}, {vr(t+6, 2)}",
          f"v_add_f32 v{t}, v{t}, v{t+1}", f"v_add_f32 v{t+1}, v{t+2}, v{t+3}"]
    for m in ("quad_perm:[1,0,3,2]", "quad_perm:[2,3,0,1]", "row_ror:8"):
        o += ["s_nop 0", f"v_add_f32_dpp v{t}, v{t}, v{t} {m} row_mask:0xf bank_mask:0xf", f"v_add_f32_dpp v{t+1}, v{t+1}, v{t+1} {m} row_mask:0xf bank_mask:0xf"]
    for sw in ("v_permlane16_swap_b32", "v_permlane32_swap_b32"):
        o += [f"v_mov_b32 v{t+2}, v{t}", f"v_mov_b32 v{t+3}, v{t+1}", "s_nop 0", f"{sw} v{t}, v{t+2}", f"{sw} v{t+1}, v{t+3}",
              f"v_add_f32 v{t}, v{t}, v{t+2}", f"v_add_f32 v{t+1}, v{t+1}, v{t+3}"]
    o += [f"v_mul_f32 v{t+2}, {f32(1/512)}, v{t}", f"v_mul_f32 v{t+1}, {f32(1/512)}, v{t+1}", f"v_fma_f32 v{t}, -v{t+2}, v{t+2}, v{t+1}",
          f"v_max_f32 v{t}, 0, v{t}", f"v_add_f32 v{t}, {f32(1e-5)}, v{t}", f"v_rsq_f32 v{t}, v{t}", "s_nop 0", f"v_mul_f32 v{t+1}, -v{t+2}, v{t}"]
    return o

def ring_addr_setup():
    L, t0, t1, t2 = 31, 28, 29, 30
    o = [f"v_and_b32 v{L}, 63, v0"]
    o += [f"v_lshrrev_b32 v{t0}, 2, v{L}", f"v_bfe_u32 v{t1}, v{L}, 3, 2", f"v_and_b32 v{t2}, 3, v{L}", f"v_lshlrev_b32 v{t2}, 3, v{t2}",
          f"v_lshl_or_b32 v{t2}, v{t1}, 5, v{t2}", f"v_lshl_or_b32 v{t2}, v{t0}, 7, v{t2}", f"v_add_u32 v{V_TR}, s{sW4K}, v{t2}"]
    for e in range(1, 4): o.append(f"v_xor_b32 v{V_TR+e}, {32*e}, v{V_TR}")
    o += [f"v_lshlrev_b32 v{V_LIN}, 4, v{L}", f"v_add_u32 v{V_LB}, {L_B}, v{V_LIN}"]
    return o
def ring_addr_setup2():
    L, t0, t1, t2 = 31, 28, 29, 30
    o = []
    for e in range(4): o.append(f"v_add_u32 v{V_TR+4+e}, {L_E0}, v{V_TR+e}")
    o += [f"v_bfe_u32 v{t0}, v{L}, 1, 3", f"v_and_b32 v{t1}, 1, v{L}", f"v_lshrrev_b32 v{t2}, 4, v{L}", f"v_lshlrev_b32 v{V_PS}, 7, v{t0}",
          f"v_lshl_or_b32 v{V_PS}, v{t1}, 6, v{V_PS}", f"v_lshl_or_b32 v{V_PS}, v{t2}, 4, v{V_PS}"]
    o += [f"v_bfe_u32 v{t0}, v{L}, 3, 1", f"v_and_b32 v{t1}, 7, v{L}", f"v_mul_u32_u24 v{V_GA}, {MB_W}, v{t2}", f"v_lshl_add_u32 v{V_GA}, v{t0}, 10, v{V_GA}",
          f"v_lshl_add_u32 v{V_GA}, v{t1}, 4, v{V_GA}", f"s_lshl_b32 s{sT0}, s{sG}, 7", f"s_add_u32 s{sT0}, s{sT0}, s{sW2K}", f"v_add_u32 v{V_GA}, s{sT0}, v{V_GA}"]
    o += [f"v_accvgpr_read_b32 v{t0}, a{A_SW}", f"v_lshrrev_b32 v{t1}, 3, v{L}", f"v_mul_u32_u24 v{t1}, 3584, v{t1}", f"s_lshl_b32 s{sT0}, s{sW}, 7",
          f"v_add3_u32 v{V_W1D}, v{t0}, v{t1}, s{sT0}"]
    for i in range(1, 4): o.append(f"v_add_u32 v{V_W1D+i}, {(8*3584-1024)*i}, v{V_W1D}")
    o += [f"v_lshlrev_b32 v{t0}, 1, v{t2}", f"v_xor_b32 v{V_YR}, v{L}, v{t0}", f"v_lshlrev_b32 v{V_YR}, 4, v{V_YR}", f"v_add_u32 v{V_YR}, {L_B}, v{V_YR}"]
    o += [f"v_lshrrev_b32 v{t0}, 3, v{L}", f"v_and_b32 v{t1}, 3, v{L}", f"v_bfe_u32 v{t2}, v{L}, 2, 1", f"v_lshlrev_b32 v{V_YW}, 12, v{t0}",
          f"v_lshl_or_b32 v{V_YW}, v{t1}, 8, v{V_YW}", f"v_lshl_or_b32 v{V_YW}, v{t2}, 4, v{V_YW}", f"v_lshl_or_b32 v{V_YW}, v{t1}, 5, v{V_YW}",
          f"s_lshl_b32 s{sT0}, s{sW}, 10", f"s_add_u32 s{sT0}, s{sT0}, {L_B}", f"v_add_u32 v{V_YW}, s{sT0}, v{V_YW}"]
    for j in range(1, 4): o.append(f"v_xor_b32 v{V_YW+j}, {32*j}, v{V_YW}")
    o += [f"s_mul_i32 s{sT0}, s{sW}, {MB_W}", f"v_add_u32 v6, s{sT0}, v{V_LIN}"]
    return o

V_SUM, V_TMP, V_PA, V_PB = 128, 144, 160, 176
def masked(lo):
    return [f"s_cmp_lt_u32 s{sW}, 2", "s_cselect_b64 exec, -1, 0" if lo else "s_cselect_b64 exec, 0, -1"]
def last_gather(mboff):
    a = P.add
    gl = lambda tag: gather_loads(G1, 8, V_GA, lambda i: i*MB_SZ + mboff + 8192, tag)
    a(wvm("psA"), masked(True), gl("g1"), wvm("psB"), masked(False), gl("g1"), "s_mov_b64 exec, -1")
def oproj():
    a = P.add
    a(breads(0), wlg("a0"))
    ex = ring_addr_setup2() + aunpack(V_X1, A_XR, 8, G0) + aunpack(V_B1F, A_B1, 8, G0+8)
    for sig in range(26):
        p, t = divmod(sig, 16)
        if sig == 16:
            assert not ex
            ex = pack_store(ACCX, 0, MB_P1)
        if sig % 4 == 0: stamp(f"o{sig}", True)
        a(raw(f"; MARK o{sig}"))
        a(gstep(sig, ACCX if p == 0 else ACCY, t == 0, q=ex, nq=(range(4) if sig < 25 else (0, 1))))
    assert not ex
    stamp("oA", True)
    for sig in range(26, 32):
        rd = [wvm(f"st{sig+1}")] + areads(sig+1) + breads(sig+1, (0, 1)) if sig < 31 else breads(26, (2, 3))
        a(hstep(sig, ACCY, False, 0, rd))
    stamp("oB", True)
    st, gl = pack_store(ACCY, 1, MB_P1, (0,), "psA"), gather_loads(G0, 8, V_GA, lambda i: i*MB_SZ + MB_P1, "g0")
    ex = ["GAP", "GAP", "GAP"] + st + gl
    for sig in range(26, 32):
        a(hstep(sig, ACCY, False, 1, breads(sig+1, (2, 3)) if sig < 31 else [], q=ex))
    a(ex)
    stamp("o32", True)
    a("s_nop 3", pack_store(ACCY, 1, MB_P1, (1,), "psB"))
    stamp("o_st", True)

def ywrites(p): return [lg(f"ds_write_b128 v{V_YW+(j&3)}, {vr((G0, G1)[p]+4*j, 4)} offset:{128*(j>>2)+32768*p}", "yw") for j in range(8)]
def ln2():
    a = P.add
    a("s_barrier")
    for p in range(2): a(aunpack(V_PA+8*p, A_M2+16*p+0, 4, V_TMP))
    last_gather(MB_P1)
    stamp("oproj")
    gather_check(G0, 8, V_GA, lambda i: i*MB_SZ + MB_P1, "g0", V_TMP)
    stamp("g0ok", True)
    a(sum8(G0, V_SUM, V_TMP))
    G2, SB = 192, 208
    for p in range(2):
        a(aunpack(G2+8*p, A_M2+16*p+8, 4, V_TMP))
        a([f"v_add_f32 v{G2+8*p+i}, 1.0, v{G2+8*p+i}" for i in range(8)])
        a([f"v_cvt_pk_bf16_f32 v{V_TMP+i}, v{G2+8*p+2*i}, v{G2+8*p+2*i+1}" for i in range(4)])
        for i in range(4): a(unpack(G2+8*p+2*i, G2+8*p+2*i+1, V_TMP+i))
        a(aunpack(SB+8*p, A_M2+16*p+4, 4, V_TMP))
    gather_check(G1, 8, V_GA, lambda i: i*MB_SZ + MB_P1 + 8192, "g1", V_TMP)
    stamp("ex1")
    w1q = []
    for sig in range(32, 38):
        d = stage_dma(sig); w1q += [d[:2] + ["s_nop 0", d[2]], [d[3]], [d[4]], [d[5]]]
    s8 = sum8(G1, V_SUM+8, V_TMP)
    for i in range(0, len(s8), 12): a(w1q.pop(0), s8[i:i+12])
    for k in range(0, 16, 2): a(f"v_pk_fma_f32 {vr(V_X1+k, 2)}, {vr(V_SUM+k, 2)}, {vr(V_PA+k, 2)}, {vr(V_X1+k, 2)}")
    a(rowstats(V_X1, V_TMP))
    H = V_SUM
    for k in range(0, 16, 2): a(f"v_pk_fma_f32 {vr(H+k, 2)}, {vr(V_X1+k, 2)}, {vr(V_TMP, 2)}, {vr(V_TMP, 2)} op_sel:[0,0,1] op_sel_hi:[1,0,1]")
    for k in range(0, 16, 2): a(f"v_pk_fma_f32 {vr(H+k, 2)}, {vr(H+k, 2)}, {vr(G2+k, 2)}, {vr(SB+k, 2)}")
    a(rowstats(H, V_TMP))
    for k in range(0, 16, 2): a(f"v_pk_fma_f32 {vr(H+k, 2)}, {vr(H+k, 2)}, {vr(V_TMP, 2)}, {vr(V_TMP, 2)} op_sel:[0,0,1] op_sel_hi:[1,0,1]")
    a(f"s_add_u32 s{sT0}, s{sMB}, {MB_Y}")
    for p in range(2):
        for i in range(4): a(f"v_cvt_pk_bf16_f32 v{V_PB+4*p+i}, v{H+8*p+2*i}, v{H+8*p+2*i+1}")
        a(vm(f"buffer_store_dwordx4 {vr(V_PB+4*p, 4)}, v{V_LIN}, {srd(S_WS)}, s{sT0} offen offset:{1024*p} sc1", "ys"))
    stamp("ln2")
    a(w1q)
    if cfg.drain: a(wvm("ys"))
    for p, buf in ((0, G0), (1, G1)): a(gather_loads(buf, 8, 6, lambda i: i*MB_SZ + MB_Y + 1024*p, f"y{p}"))
    a(wvm("st32"), areads(32))
    gather_check(G0, 8, 6, lambda i: i*MB_SZ + MB_Y, "y0", V_TMP)
    a(ywrites(0), wlg0(), "s_barrier")
    stamp("y_in")

def mlp():
    a = P.add
    a(breads(32), wlg("a32"))
    k = 2*math.sqrt(2/math.pi)*math.log2(math.e)
    ex = []
    ex2 = [f"s_mov_b32 s{sC1}, {f32(-k*0.044715)}", f"s_mov_b32 s{sC1+1}, {f32(-k)}", f"s_lshl_b32 s{sT0}, s{sW}, 13", f"v_add_u32 v28, s{sT0}, v{V_LB}"]
    for sig in range(32, 48):
        end = ()
        if sig == 34: ex = [wvm("y1")] + allmax(G1, 8, 28)
        if sig == 36:
            assert not ex
            gather_check(G1, 8, 6, lambda i: i*MB_SZ + MB_Y + 1024, "y1", 28, reduced=True)
            ex = ywrites(1)
        if sig == 38: end = [wlg0(), op("s_barrier")]
        if sig == 40: ex = ex2
        a(gstep(sig, ACCX, sig == 32, cinit=V_B1F, q=ex, nxt=(sig != 47), end=end))
        if sig == 37: assert not ex
    stamp("mlp1")
    a(wvm("st48"), areads(48), "s_barrier")
    T = ACCY
    for b in range(2):
        for qt in range(4):
            x, y = ACCX + (2*b*4+qt)*4, ACCX + ((2*b+1)*4+qt)*4
            prs = [x, x+2, y, y+2]
            t = T + 8*(qt & 1)
            for i, z in enumerate(prs): a(f"v_pk_mul_f32 {vr(t+2*i, 2)}, {vr(z, 2)}, {vr(z, 2)}")
            for i, z in enumerate(prs): a(f"v_pk_fma_f32 {vr(t+2*i, 2)}, {vr(t+2*i, 2)}, s[{sC1}:{sC1+1}], s[{sC1}:{sC1+1}] op_sel:[0,0,1] op_sel_hi:[1,0,1]")
            for i, z in enumerate(prs): a(f"v_pk_mul_f32 {vr(t+2*i, 2)}, {vr(t+2*i, 2)}, {vr(z, 2)}")
            for i in range(8): a(f"v_exp_f32 v{t+i}, v{t+i}")
            for i in range(4): a(f"v_pk_add_f32 {vr(t+2*i, 2)}, {vr(t+2*i, 2)}, 1.0 op_sel_hi:[1,0]")
            for i in range(8): a(f"v_rcp_f32 v{t+i}, v{t+i}")
            for i, z in enumerate(prs): a(f"v_pk_mul_f32 {vr(z, 2)}, {vr(t+2*i, 2)}, {vr(z, 2)}")
            a(f"v_cvt_pk_bf16_f32 v{x}, v{x}, v{x+1}", f"v_cvt_pk_bf16_f32 v{x+1}, v{x+2}, v{x+3}",
              f"v_cvt_pk_bf16_f32 v{x+2}, v{y}, v{y+1}", f"v_cvt_pk_bf16_f32 v{x+3}, v{y+2}, v{y+3}")
            a(lg(f"ds_write_b128 v28, {vr(x, 4)} offset:{b*4096+qt*1024}", "hw"))
    a(wlg0(), "s_barrier")
    stamp("gelu")
    a(breads(48, (0, 1)), wlg("a48"))
    dq, ex = [], []
    for p in range(2):
        acc = (ACCX, ACCY)[p]
        for half in range(2):
            stamp(f"m{p}{half}", True)
            for t in range(7):
                sig = 48 + 7*p + t
                if half == 0:
                    if sig + 6 < 62: dq += stage_dma(sig+6)
                    rd = [wvm(f"st{sig+1}")] + areads(sig+1) + breads(sig+1, (0, 1)) if t < 6 else breads(48 + 7*p, (2, 3))
                else:
                    rd = breads(sig+1, (2, 3)) if t < 6 else ([wvm("st55")] + areads(55) + breads(55, (0, 1)) if p == 0 else [])
                a(hstep(sig, acc, t == 0, half, rd, dq, ex))
            assert not ex, ex
            if (p, half) != (1, 1):
                ex = ["GAP", "GAP", "GAP"] + pack_store(acc, p, MB_P2, (half,), "psA" if p else "ps")
    assert not dq
    stamp("m62", True)
    a("s_nop 3", pack_store(ACCY, 1, MB_P2, (1,), "psB"))
    stamp("m_st", True)
    a(gather_loads(G0, 8, V_GA, lambda i: i*MB_SZ + MB_P2, "g0"))
    last_gather(MB_P2)
    stamp("mlp2")

def final():
    a = P.add
    GB, B2 = V_PA, V_PB
    for p in range(2): a(aunpack(GB+8*p, A_M2+16*p+12, 4, V_TMP))
    a(aunpack(B2, A_B2, 8, V_TMP))
    a(f"v_accvgpr_read_b32 v28, a{A_OV}")
    for p, buf in ((0, G0), (1, G1)):
        gather_check(buf, 8, V_GA, lambda i: i*MB_SZ + MB_P2 + 8192*p, f"g{p}", V_TMP)
        S = V_SUM + 8*p
        a(sum8(buf, S, V_TMP))
        for k in range(0, 8, 2): a(f"v_pk_add_f32 {vr(S+k, 2)}, {vr(S+k, 2)}, {vr(B2+8*p+k, 2)}")
        for k in range(0, 8, 2): a(f"v_pk_fma_f32 {vr(S+k, 2)}, {vr(S+k, 2)}, {vr(GB+8*p+k, 2)}, {vr(V_X1+8*p+k, 2)}")
        for i in range(4): a(f"v_cvt_pk_bf16_f32 v{S+i}, v{S+2*i}, v{S+2*i+1}")
        for h in range(2): a(vm(f"buffer_store_dwordx2 {vr(S+2*h, 2)}, v28, {srd(S_OUT)}, s{sXROW} offen offset:{128*p+32*h}", "out"))
    if cfg.stamps:
        stamp("end")
        a(f"s_lshl_b32 s{sT0}, s2, 10", f"s_add_u32 s{sT0}, s{sT0}, {WS_STAMP}", "v_lshlrev_b32 v7, 2, v0",
          vm(f"buffer_store_dword a{A_STAMP}, v7, {srd(S_WS)}, s{sT0} offen", "st"), f"s_add_u32 s{sT0}, s{sT0}, 0x40000",
          vm(f"buffer_store_dword a{A_STAMP+1}, v7, {srd(S_WS)}, s{sT0} offen", "st"))
        if cfg.probe:
            nm, who = cfg.probe.split(":")
            k = stamp_names.index(nm)
            if who != "all": a(f"s_cmp_lg_u32 s{sPP}, {who}", "s_cbranch_scc1 L_exit")
            a(f"v_accvgpr_read_b32 v8, a{A_STAMP}", "s_nop 1", "v_readlane_b32 s60, v8, 63", f"v_readlane_b32 s61, v8, {k}", f"v_readlane_b32 s62, v8, {len(stamp_names)-1}", "s_nop 3",
              "s_sub_u32 s61, s61, s60", "s_lshl_b32 s61, s61, 3", "s_add_u32 s61, s61, s62", label("L_probe"), Ins("s_memrealtime s[62:63]", "op"), wlg0(),
              "s_sub_u32 s60, s62, s61", "s_cmp_lt_i32 s60, 0", "s_cbranch_scc1 L_probe")
        if cfg.dbgout is not None:
            a(f"s_lshl_b32 s{sT0}, s{sPP}, 2", f"s_add_u32 s{sT0}, s{sT0}, s{sW}", f"s_cmp_lg_u32 s{sT0}, {cfg.dbgout*4}", "s_cbranch_scc1 L_exit")
            a(f"v_accvgpr_read_b32 v8, a{A_STAMP}", "s_nop 1", "v_readlane_b32 s60, v8, 0", "s_nop 1", "v_subrev_u32 v8, s60, v8", "v_subrev_u32 v7, 4, v7",
              "s_mov_b64 exec, 0x1fffe", vm(f"buffer_store_dword v8, v7, {srd(S_DBG)}, 0 offen sc1", "st"))
    a(label("L_exit"), "s_endpgm")

def fallback():
    a = P.add
    P.rare_begin()
    a(label("L_fallback"), wall())
    L, KA = 32, 33
    a(f"v_and_b32 v{L}, 63, v0", f"v_and_b32 v{KA}, 15, v{L}", f"v_lshrrev_b32 v34, 4, v{L}", f"v_lshlrev_b32 v{KA}, 8, v{KA}", f"v_lshl_or_b32 v{KA}, v34, 6, v{KA}")
    a(f"v_and_b32 v36, 15, v{L}")
    for i in range(2):
        a(f"v_add_u32 v37, {4*i}, v34", f"v_lshlrev_b32 v37, 1, v37", f"v_xor_b32 v37, v37, v36", f"v_lshlrev_b32 v37, 4, v37", f"v_lshl_or_b32 v{20+i}, v34, 8, v37")
    a(f"s_lshl_b32 s{sT2}, s{sG}, 19", f"s_add_u32 s{sT2}, s{sT2}, {1536*256}", f"s_mov_b32 s{sT0}, s{sT2}", f"s_mov_b32 s{sLOOP}, 32")
    for qt in range(4): a(f"v_mov_b32 v{V_NM+4*qt}, 0xff800000")
    a(label("L_fb1"))
    for s in range(4): a(vm(f"buffer_load_dwordx4 {ar(A_KF+4*s, 4)}, v{KA}, {srd(S_K)}, s{sT0} offen offset:{16*s}", "x"))
    a(wvm0())
    for qt in range(4):
        for s in range(4): a(f"{MF} v[36:39], {ar(A_KF+4*s, 4)}, {vr(QF(s, qt), 4)}, {'v[36:39]' if s else 0}")
        a("s_nop 9", f"v_max3_f32 v{V_NM+4*qt}, v{V_NM+4*qt}, v36, v37", f"v_max3_f32 v{V_NM+4*qt}, v{V_NM+4*qt}, v38, v39", "s_nop 3")
    a(f"s_add_u32 s{sT0}, s{sT0}, 4096", f"s_sub_u32 s{sLOOP}, s{sLOOP}, 1", f"s_cmp_lg_u32 s{sLOOP}, 0", "s_cbranch_scc1 L_fb1")
    for qt in range(4):
        m, t = V_NM + 4*qt, V_NM + 4*qt + 1
        a(f"v_mov_b32 v{t}, v{m}", "s_nop 1", f"v_permlane16_swap_b32 v{m}, v{t}", f"v_max_f32 v{m}, v{m}, v{t}",
          f"v_mov_b32 v{t}, v{m}", "s_nop 1", f"v_permlane32_swap_b32 v{m}, v{t}", f"v_max_f32 v{m}, v{m}, v{t}",
          f"v_mul_f32 v{m}, -1.0, v{m}", f"v_mov_b32 v{m+1}, v{m}", f"v_mov_b32 v{m+2}, v{m}", f"v_mov_b32 v{m+3}, v{m}")
    for r in range(128): a(f"v_mov_b32 v{V_O+r}, 0")
    for r in range(16): a(f"v_accvgpr_write_b32 a{A_L+r}, 0")
    a(f"s_lshl_b32 s{sT1}, s{sW}, 14", f"s_add_u32 s{sT1}, s{sT1}, {L_B}", f"s_sub_u32 s{sT0}, s{sT1}, {L_V}")
    for dt in range(8): a(f"v_add_u32 v{V_VR+dt}, s{sT0}, v{V_VR+dt}")
    a(f"s_mov_b32 s{sT0}, s{sT2}", f"s_mov_b32 s{sLOOP}, 16")
    a(label("L_fb2"))
    for j in range(4):
        a(f"s_add_u32 m0, s{sT1}, {2048*j}", f"s_add_u32 s{sT3}, s{sT0}, {2048*j}",
          vm(f"buffer_load_dwordx4 v20, {srd(S_V)}, s{sT3} offen lds", "x"), vm(f"buffer_load_dwordx4 v21, {srd(S_V)}, s{sT3} offen offset:1024 lds", "x"))
    a(f"s_add_u32 s{sT3}, s{sT0}, 4096")
    for s in range(4):
        a(vm(f"buffer_load_dwordx4 {ar(KF(0, 0, s), 4)}, v{KA}, {srd(S_K)}, s{sT0} offen offset:{16*s}", "x"),
          vm(f"buffer_load_dwordx4 {ar(KF(0, 1, s), 4)}, v{KA}, {srd(S_K)}, s{sT3} offen offset:{16*s}", "x"))
    a(wvm0())
    a(vreads(0), wlg0())
    for qt in range(4):
        for s in range(4):
            for kt in range(2):
                d = vr(40 + 4*kt, 4)
                a(f"{MF} {d}, {ar(KF(0, kt, s), 4)}, {vr(QF(s, qt), 4)}, {d if s else vr(V_NM+4*qt, 4)}")
        a("s_nop 9")
        for i in range(8): a(f"v_exp_f32 v{40+i}, v{40+i}")
        a("s_nop 0")
        for i in range(4): a(f"v_cvt_pk_bf16_f32 v{V_P+i}, v{40+2*i}, v{41+2*i}")
        a("s_nop 1")
        for dt in range(8): a(f"{MF} {vr(OA(dt, qt), 4)}, {ar(VF(0, dt), 4)}, {vr(V_P, 4)}, {vr(OA(dt, qt), 4)}")
        a(f"{MF} {ar(A_L+4*qt, 4)}, {ar(A_ONE, 4)}, {vr(V_P, 4)}, {ar(A_L+4*qt, 4)}")
    a(f"s_add_u32 s{sT0}, s{sT0}, 8192", f"s_sub_u32 s{sLOOP}, s{sLOOP}, 1", f"s_cmp_lg_u32 s{sLOOP}, 0", "s_cbranch_scc1 L_fb2")
    a("s_nop 9")
    for qt in range(4): a(normalize(qt))
    a("s_branch L_fb_ret")
    P.rare_end()

HEADER = """; Fused adaLN-modulated block: cached sliding-window GQA attention + channel MLP, one persistent launch.
; @launch grid=(256,1,1) block=(256,1,1) lds=163840
.amdgcn_target "amdgcn-amd-amdhsa--gfx950"
.text
.globl {kn}
.p2align 8
.type {kn},@function
{kn}:
"""
FOOTER = """L_codeend:
.section .rodata,"a"
.p2align 6
.amdhsa_kernel {kn}
  .amdhsa_next_free_vgpr 512
  .amdhsa_next_free_sgpr 102
  .amdhsa_accum_offset 256
  .amdhsa_group_segment_fixed_size 0
  .amdhsa_kernarg_size 120
  .amdhsa_user_sgpr_count 2
  .amdhsa_user_sgpr_kernarg_segment_ptr 1
  .amdhsa_system_sgpr_workgroup_id_x 1
  .amdhsa_float_denorm_mode_32 3
.end_amdhsa_kernel
"""

def build():
    d = cfg.dump
    prologue()
    if d == "h": dump_lds_and_exit(0, 65536)
    qproj()
    if d == "q": dump_and_exit([f"a{i}" for i in range(128)])
    attention()
    if d == "o": dump_lds_and_exit(L_B, 65536)
    oproj()
    ln2()
    if d == "y": dump_lds_and_exit(L_B, 65536)
    mlp()
    final()
    fallback()
    for f in out_of_line: f()
    resolve_waits(P.items)
    merge_waits(P.items)
    errs = check(P.items)
    print("-- with rare regions inline")
    items2 = [x for x in P.items if x.kind not in ("rare_begin", "rare_end")]
    check(items2)
    return HEADER.format(kn=KN) + render(P.items) + FOOTER.format(kn=KN), errs

if __name__ == "__main__":
    ap = argparse.ArgumentParser()
    ap.add_argument("-o", default=f"cdna_kernels/{NAME}.s")
    ap.add_argument("--stamps", action="store_true")
    ap.add_argument("--dump")
    ap.add_argument("--probe")
    ap.add_argument("--nokvtouch", action="store_true")
    ap.add_argument("--sleep", type=int, default=0)
    ap.add_argument("--nodrain", action="store_true")
    ap.add_argument("--g0at", type=int, default=27)
    ap.add_argument("--depth", type=int, default=4)
    ap.add_argument("--notouch", action="store_true")
    ap.add_argument("--nopf", action="store_true")
    ap.add_argument("--dbgout", type=int, default=None)
    ap.add_argument("--mb", type=int, default=1)
    ap.add_argument("--nt", default=None)
    ap.add_argument("--mu", type=int, default=1)
    ap.add_argument("--fine", action="store_true")
    ap.add_argument("--force-fallback", action="store_true")
    args = ap.parse_args()
    cfg.stamps = args.stamps; cfg.dump = args.dump; cfg.probe = args.probe; cfg.kvtouch = not args.nokvtouch; cfg.sleep = args.sleep; cfg.drain = not args.nodrain; cfg.g0at = args.g0at; cfg.depth = args.depth; cfg.touch = not args.notouch; cfg.nopf = args.nopf; cfg.dbgout = args.dbgout; WS_MB = args.mb << 20; NT.on = set(args.nt) if args.nt is not None else NT.on; cfg.mu = args.mu; cfg.fine = args.fine; cfg.force_fallback = args.force_fallback
    txt, errs = build()
    if cfg.stamps: txt = "; STAMPS " + ",".join(stamp_names) + "\n" + txt
    open(args.o, "w").write(txt)
    print("wrote", args.o, len(txt), "bytes;", len(errs), "hazard reports")
```

```python
import sys, math, argparse, struct
from asmlib import *

NAME = "adaLN_cond__sliding_block_cached__mixer_channel_mlp__prompt"
KN = NAME + "_kernel"

WS_MODG = 0
WS_M2 = 4096
WS_MB = 1 << 20
MB_W = 34816
MB_SZ = 4*MB_W
MB_P1, MB_Y, MB_P2 = 0, 16384, 18432
WS_DUMP = 64 << 20
WS_STAMP = 60 << 20
WS_BYTES = 268435456
SPIN = 1 << 15

L_K = 65536
L_V = 98304
L_E0 = 131072
L_E1 = 147456
L_B = 65536
STAGES = [0, 16384, 32768, 49152, L_E0, L_E1]

sFLAG = 3
S_X, S_K, S_V, S_WQ, S_WO, S_W1, S_W2, S_WS, S_DBG, S_OUT, S_TA, S_TB = [4 + 4*i for i in range(12)]
S_B1P, S_B2P = 52, 54
sW, sG, sRB, sRHO = 56, 57, 58, 59
sT0, sT1, sT2, sT3 = 60, 61, 62, 63
sSELLO, sSELHI = 96, 97
sSTAMP = 98
sSPIN, sBAD = 100, 101
sCP = 101
sPP = 2
(sWQOFF, sKV0, sMB, sTEAM, sW4K, sW2K, sWOB, sW1B, sW2B, sPF, sLOOP, sPST, sGAT) = range(64, 77)
sEX = 78
sC1 = 80
sKV1, sWOP, sRING, sRD, sXROW, sB1O, sM2O, sIDX = range(82, 90)
def srd(b): return f"s[{b}:{b+3}]"
def vr(b, n=1): return f"v{b}" if n == 1 else f"v[{b}:{b+n-1}]"
def ar(b, n=1): return f"a{b}" if n == 1 else f"a[{b}:{b+n-1}]"
def f32(x): return "0x%08x" % struct.unpack("<I", struct.pack("<f", x))[0]

QSCALE = math.log2(math.e) / math.sqrt(128.0)
MF = "v_mfma_f32_16x16x32_bf16"

class Cfg:
    stamps = False
    fine = False
    min = False
    probe = None
    tplace = 0
    qtouch = 2
    sleep = 0
    drain = True
    g0at = 27
    qstart = 3
    touch = True
    nopf = False
    dbgout = None
    dump = None
    force_fallback = False
    mu = 1
cfg = Cfg()
P = Prog()
uid = [0]
def newlabel(s):
    uid[0] += 1
    return f"L_{s}_{uid[0]}"

A_STAMP = 252
stamp_names = []
def stamp(name, fine=False):
    if not cfg.stamps or (fine and not cfg.fine) or (cfg.min and name not in ("start", "end")): return
    k = len(stamp_names); stamp_names.append(str(name))
    assert k < 64
    P.add(Ins(f"s_memrealtime s[{sSTAMP}:{sSTAMP+1}]", "op"), Ins(f"s_memtime s[0:1]", "op"), wlg0(),
          f"s_lshl_b64 exec, 1, {k}",
          f"v_accvgpr_write_b32 a{A_STAMP}, s{sSTAMP}", f"v_accvgpr_write_b32 a{A_STAMP+1}, s0", "s_mov_b64 exec, -1")

def dump_and_exit(regs):
    P.add(wall(), "s_nop 15")
    P.add(f"s_lshl_b32 s{sT0}, s2, 18", f"s_add_u32 s{sT0}, s{sT0}, {WS_DUMP}")
    P.add("v_lshlrev_b32 v7, 2, v0")
    for i, r in enumerate(regs):
        P.add(vm(f"buffer_store_dword {r}, v7, {srd(S_WS)}, s{sT0} offen", "dump"), f"s_add_u32 s{sT0}, s{sT0}, 1024")
    P.add(wall(), "s_endpgm")

def dump_lds_and_exit(base, nbytes):
    P.add(wall(), "s_barrier")
    P.add(f"s_lshl_b32 s{sT0}, s2, 18", f"s_add_u32 s{sT0}, s{sT0}, {WS_DUMP}")
    P.add("v_lshlrev_b32 v7, 4, v0", f"v_add_u32 v6, {base}, v7")
    for i in range(nbytes // 4096):
        P.add(lg(f"ds_read_b128 v[8:11], v6", "d"), wlg0(),
              vm(f"buffer_store_dwordx4 v[8:11], v7, {srd(S_WS)}, s{sT0} offen", "dump"), f"s_add_u32 s{sT0}, s{sT0}, 4096",
              "v_add_u32 v6, 4096, v6", wvm0())
    P.add(wall(), "s_endpgm")

def mk_srd(b, p, nbytes):
    return [f"s_mov_b32 s{b}, s{p}", f"s_and_b32 s{b+1}, s{p+1}, 0xffff", f"s_mov_b32 s{b+2}, {nbytes}", f"s_mov_b32 s{b+3}, 0x20000"]

def unpack(dlo, dhi, src):
    return [f"v_lshlrev_b32 v{dlo}, 16, v{src}", f"v_and_b32 v{dhi}, 0xffff0000, v{src}"]

class _NT:
    on = set("")
    def __call__(self, k): return " nt" if k in self.on else ""
NT = _NT()

R = [32, 64, 96, 128, 160, 192]
XN = 128
FST = [224, 232]
V_WQ = 24
V_KD, V_VD = 20, 22
V_HR = 4
A_QACC = 0
A_HB = 128
V_KR, V_VR = 8, 12
V_P, V_S, V_NM, V_Q, V_O = 24, 32, 48, 64, 128
V_WD = 2
V_PF = 6
A_KF, A_VF, A_L, A_ONE, A_DUM, A_SEN, A_FL = 160, 0, 224, 240, 244, 248, 254
A_M2, A_XR, A_B2, A_B1 = 64, 96, 104, 112
A_OV, A_SW, A_MSK, A_TR = 120, 247, 255, 245
A_MM = 224

def wq_load(t, s):
    b = R[t % 6]
    return [vm(f"buffer_load_dwordx4 {vr(b+4*j, 4)}, v{V_WQ+j}, {srd(S_WQ)}, s{s} offen{NT('q')}", f"wq{t}") for j in range(8)]
def sg_addr(t, j):
    if t < 6:
        jj = 8*(t-4) + j
        return 0, L_K + 8192*(jj >> 1) + 1024*(jj & 1)
    return 1, L_E0 + 16384*(j >> 2) + 1024*(j & 3)
def sg_dma(t, s, sw2, sw4):
    o = []
    for j in range(8):
        sel, off = sg_addr(t, j)
        o.append([f"s_add_u32 m0, s{sw4 if sel else sw2}, {off}", "s_nop 0", vm(f"buffer_load_dwordx4 v{V_WQ+j}, {srd(S_WQ)}, s{s} offen{NT('q')} lds", f"sgd{t}")])
    return o
V_SG = 254
def sgreads(t):
    o = []
    for j in range(8):
        sel, off = sg_addr(t, j)
        o.append(lg(f"ds_read_b128 {vr(R[t % 6]+4*j, 4)}, v{V_SG+sel} offset:{off-(L_E0 if sel else L_K)}", f"sg{t}"))
    return o
def adv(s): return [f"s_add_u32 s{s}, s{s}, 262144", f"s_and_b32 s{s}, s{s}, 0x3fffff"]

out_of_line = []
def prologue():
    a = P.add
    if cfg.stamps: a(Ins("s_memrealtime s[94:95]", "op"))
    a(Ins("s_load_dwordx16 s[64:79], s[0:1], 0", "op"), Ins("s_load_dwordx8 s[80:87], s[0:1], 64", "op"),
      Ins("s_load_dwordx4 s[88:91], s[0:1], 96", "op"), Ins("s_load_dwordx2 s[92:93], s[0:1], 112", "op"))
    a("s_cmp_ge_u32 s2, 256", "s_cbranch_scc1 L_exit")
    a(f"s_getpc_b64 s[{S_TB}:{S_TB+1}]")
    a(label("L_pc"))
    a(f"s_mov_b32 s{S_TB+2}, L_codeend-L_pc", f"s_mov_b32 s{S_TB+3}, 0x20000", f"s_bfe_u32 s{sT0}, s2, 0x30003", f"s_lshl_b32 s{sT0}, s{sT0}, 13")
    a("v_lshrrev_b32 v1, 6, v0", "v_and_b32 v3, 15, v0", "v_and_b32 v2, 63, v0", "v_lshlrev_b32 v3, 7, v3", "v_lshl_or_b32 v4, v1, 11, v3")
    a(vm(f"buffer_load_dword a{A_DUM}, v4, {srd(S_TB)}, s{sT0} offen{NT('c')}", "dummy"))
    if cfg.stamps:
        a(f"v_accvgpr_write_b32 a{A_STAMP}, 0", f"v_accvgpr_write_b32 a{A_STAMP+1}, 0")
    a(f"s_and_b32 s{sT0}, s2, 3", f"v_readfirstlane_b32 s{sW}, v1")
    a(f"s_lshr_b32 s{sT1}, s2, 3", f"s_lshl_b32 s{sT0}, s{sT0}, 1", f"s_and_b32 s{sT2}, s{sT1}, 1", f"s_or_b32 s{sG}, s{sT0}, s{sT2}")
    a(f"s_lshr_b32 s{sRHO}, s{sT1}, 1", f"s_bfe_u32 s{sT2}, s2, 0x10002", f"s_lshl_b32 s{sT0}, s{sT2}, 4", f"s_or_b32 s{sRB}, s{sT0}, s{sRHO}")
    a(f"s_and_b32 s{sT0}, s2, 7", f"s_lshl_b32 s{sT2}, s{sT0}, 5", f"s_or_b32 s{sPP}, s{sT2}, s{sT1}")
    a(f"s_lshl_b32 s{sT0}, s{sT0}, 2", f"s_add_u32 s{sCP}, s{sT0}, s{sRHO}", f"s_and_b32 s{sT1}, s{sT1}, 0x19", f"s_mov_b32 s{sFLAG}, 0")
    a("v_lshrrev_b32 v4, 2, v0", "v_and_b32 v5, 3, v0", f"v_mul_u32_u24 v6, {8*6144}, v4", "v_lshlrev_b32 v5, 4, v5", f"s_lshl_b32 s{sT0}, s{sCP}, 6",
      f"v_add3_u32 v6, v6, v5, s{sT0}", "v_lshlrev_b32 v5, 4, v4", "v_lshlrev_b32 v7, 4, v2")
    a(f"s_lshl_b32 s{sT2}, s{sRB}, 2", f"s_add_u32 s{sT2}, s{sT2}, s{sW}", f"s_lshl_b32 s{sT2}, s{sT2}, 1", f"s_and_b32 s{sT0}, s{sG}, 1",
      f"s_or_b32 s{sT2}, s{sT2}, s{sT0}", f"s_lshl_b32 s{sT2}, s{sT2}, 13")
    a(wlg0())
    if cfg.stamps: a("s_lshl_b64 exec, 1, 63", f"v_accvgpr_write_b32 a{A_STAMP}, s94", "s_mov_b64 exec, -1")
    stamp("start")
    a(mk_srd(S_TB, 84, 1024), mk_srd(S_TA, 86, 512*6144), mk_srd(S_X, 64, 2097152))
    if cfg.touch:
        a(f"s_lshl_b32 s{sT0}, s{sPP}, 1", f"s_lshr_b32 s{sT3}, s{sW}, 1", f"s_add_u32 s{sT0}, s{sT0}, s{sT3}", f"s_mul_i32 s{sT0}, s{sT0}, 6144",
          f"s_and_b32 s{sT3}, s{sW}, 1", f"s_lshl_b32 s{sT3}, s{sT3}, 10", f"s_add_u32 s{sT0}, s{sT0}, s{sT3}", "v_and_b32 v8, 0x380, v3",
          vm(f"buffer_load_dword a{A_DUM}, v8, {srd(S_TA)}, s{sT0} offen", "dummy"))
    def xloads(tagged):
        o = []
        for i in range(16):
            if i and i % 4 == 0: o.append(op(f"s_xor_b32 s{sT2}, s{sT2}, {4096 if i % 8 else 12288}"))
            o.append(vm(f"buffer_load_dwordx4 {vr(XN+8*i+4, 4)}, v7, {srd(S_X)}, s{sT2} offen offset:{(i%4)*1024}{NT('x')}", f"x{i}" if tagged else "x"))
        return o
    rest = [mk_srd(S_WS, 92, WS_BYTES), mk_srd(S_DBG, 90, 256),
            mk_srd(S_WO, 72, 4194304), mk_srd(S_W1, 76, 512*3584), mk_srd(S_W2, 80, 1792*1024), mk_srd(S_OUT, 88, 2097152),
            f"s_mov_b64 s[{S_B1P}:{S_B1P+1}], s[78:79]", f"s_mov_b64 s[{S_B2P}:{S_B2P+1}], s[82:83]"]
    dpp = lambda r, rot: f"v_add_f32_dpp v{r}, v{r}, v{r} row_ror:{rot} row_mask:0xf bank_mask:0xf"
    xl = xloads(True)
    C0, SV, AC, T, RW = 8, 32, 40, 48, 64
    a(f"s_cmp_eq_u32 s{sT1}, 1", f"s_cselect_b32 s{sFLAG}, 1, 0", "s_cbranch_scc0 L_np0")
    P.rare_begin()
    a(vm(f"buffer_load_dwordx4 {vr(C0, 4)}, v5, {srd(S_TB)}, 0 offen{NT('m')}", "x"))
    for i in range(8):
        a(f"s_mov_b32 s{sT0}, {6144*i}", vm(f"buffer_load_dwordx4 {vr(RW+4*i, 4)}, v6, {srd(S_TA)}, s{sT0} offen{NT('m')}", "x"))
    a("s_branch L_j0")
    P.rare_end()
    a(label("L_np0"), xl[:9], label("L_j0"))
    a(mk_srd(S_WQ, 70, 4194304), mk_srd(S_K, 66, 4194304), mk_srd(S_V, 68, 4194304))
    a("v_lshrrev_b32 v12, 4, v2", "v_and_b32 v13, 15, v2", "v_lshlrev_b32 v12, 16, v12", "v_lshlrev_b32 v13, 4, v13")
    a(f"s_lshl_b32 s{sT0}, s{sG}, 10", f"s_lshl_b32 s{sT1}, s{sW}, 8", f"s_add_u32 s{sT0}, s{sT0}, s{sT1}")
    a(f"v_add3_u32 v{V_WQ}, v12, v13, s{sT0}")
    for j in range(1, 8): a(f"v_add_u32 v{V_WQ+j}, {8192*j}, v{V_WQ}")
    a(f"s_mov_b32 s{sSELLO}, 0x05040100", f"s_mov_b32 s{sSELHI}, 0x07060302", f"s_lshl_b32 s{sT3}, s{sRHO}, 18")
    a(f"s_cmp_lg_u32 s{sFLAG}, 0", "s_cbranch_scc1 L_j1")
    a(wq_load(0, sT3))
    if cfg.tplace: a(early_touches(12, cfg.tplace))
    a(label("L_j1"), rest)
    def producer():
        a(f"s_cmp_eq_u32 s{sFLAG}, 0", "s_cbranch_scc1 L_prodret")
        P.rare_begin()
        xq = xloads(False)[:9]
        a(f"s_lshl_b32 s{sT0}, s{sCP}, 7", f"s_add_u32 s{sT0}, s{S_WS}, s{sT0}", f"s_addc_u32 s{sT1}, s{S_WS+1}, 0")
        a(Ins(f"s_load_dwordx16 s[64:79], s[{sT0}:{sT1}], {WS_MODG}", "op"), Ins(f"s_load_dwordx16 s[80:95], s[{sT0}:{sT1}], {WS_MODG+64}", "op"))
        a("v_and_b32 v12, 3, v2", "v_bfe_u32 v13, v2, 4, 1", "v_lshrrev_b32 v14, 5, v2", "v_lshlrev_b32 v12, 5, v12", "v_lshlrev_b32 v13, 4, v13", "v_lshlrev_b32 v14, 3, v14")
        a(f"s_lshl_b32 s{sSPIN}, s{sW}, 7", "v_or_b32 v12, v12, v13", f"v_add3_u32 v12, v12, v14, s{sSPIN}", "v_and_b32 v13, 15, v2", "v_lshlrev_b32 v13, 3, v13")
        a(Ins("s_waitcnt vmcnt(8)", "xw"))
        for d in range(4): a(unpack(SV+2*d, SV+2*d+1, C0+d))
        for i in range(8): a(f"v_mul_f32 v{T+i}, {f32(-math.log2(math.e))}, v{SV+i}")
        for i in range(8): a(f"v_exp_f32 v{T+i}, v{T+i}")
        for i in range(8): a(f"v_add_f32 v{T+i}, 1.0, v{T+i}")
        for i in range(8): a(f"v_rcp_f32 v{T+i}, v{T+i}")
        for i in range(8): a(f"v_mul_f32 v{SV+i}, v{SV+i}, v{T+i}")
        for d in range(4): a(f"v_cvt_pk_bf16_f32 v{C0+d}, v{SV+2*d}, v{SV+2*d+1}")
        for d in range(4): a(unpack(SV+2*d, SV+2*d+1, C0+d))
        for i in range(8):
            a(Ins("s_waitcnt vmcnt(7)", "xw"))
            if xq[0].kind == "op": a(xq.pop(0))
            a(xq.pop(0))
            for c in range(4): a(unpack(T+2*c, T+2*c+1, RW+4*i+c))
            sel = "op_sel:[0,1] op_sel_hi:[1,1]" if i & 1 else "op_sel:[0,0] op_sel_hi:[1,0]"
            sel3 = "op_sel:[0,1,0] op_sel_hi:[1,1,1]" if i & 1 else "op_sel:[0,0,0] op_sel_hi:[1,0,1]"
            for c in range(4):
                if i == 0: a(f"v_pk_mul_f32 {vr(AC+2*c, 2)}, {vr(T+2*c, 2)}, {vr(SV+(i&~1), 2)} {sel}")
                else: a(f"v_pk_fma_f32 {vr(AC+2*c, 2)}, {vr(T+2*c, 2)}, {vr(SV+(i&~1), 2)}, {vr(AC+2*c, 2)} {sel3}")
        a(f"s_mov_b32 s{sSPIN}, 1", wlg0())
        for i in range(16):
            a(f"s_min_u32 s{sT0}, s{65+2*i}, 31", f"s_bitset1_b32 s{sSPIN}, s{sT0}", dpp(AC+(i&7), 4 if i < 8 else 8))
        a(f"s_ff0_i32_b32 s{sFLAG}, s{sSPIN}")
        for k in range(4): a(f"v_permlane16_swap_b32 v{AC+k}, v{AC+k+4}")
        for k in range(4): a(f"v_add_f32 v{AC+k}, v{AC+k}, v{AC+k+4}")
        a(f"v_mov_b32 v14, s{sFLAG}")
        for k in range(2): a(f"v_permlane32_swap_b32 v{AC+k}, v{AC+k+2}")
        for k in range(2): a(f"v_add_f32 v{AC+k}, v{AC+k}, v{AC+k+2}")
        a(lg(f"ds_write_b64 v12, {vr(AC, 2)}", "ms"))
        a(f"s_cmp_lg_u32 s{sW}, 0", "s_cbranch_scc1 L_noann")
        a("s_mov_b64 exec, 1", vm(f"buffer_store_byte v14, off, {srd(S_DBG)}, s{sPP} sc1", "x"), "s_mov_b64 exec, -1")
        a(label("L_noann"), wlg0(), "s_barrier")
        a(f"s_cmp_lg_u32 s{sW}, 3", "s_cbranch_scc1 L_prodwq")
        for w in range(4): a(lg(f"ds_read_b64 {vr(T+2*w, 2)}, v13 offset:{128*w}", "mr"))
        a(f"v_mov_b32 v{AC+1}, s{sFLAG}", f"s_lshl_b32 s{sT0}, s{sCP}, 7", wlg0())
        a(f"v_pk_add_f32 {vr(T, 2)}, {vr(T, 2)}, {vr(T+2, 2)}", f"v_pk_add_f32 {vr(T+4, 2)}, {vr(T+4, 2)}, {vr(T+6, 2)}",
          f"v_pk_add_f32 {vr(T, 2)}, {vr(T, 2)}, {vr(T+4, 2)}", f"v_cvt_pk_bf16_f32 v{AC}, v{T}, v{T+1}")
        a("s_mov_b64 exec, 0xffff", vm(f"buffer_store_dwordx2 {vr(AC, 2)}, v13, {srd(S_WS)}, s{sT0} offen sc1", "x"), "s_mov_b64 exec, -1", "s_nop 0")
        a(label("L_prodwq"), [Ins(x.text, x.kind, "x") for x in wq_load(0, sT3)])
        for _ in range({0: 0, 1: 2, 2: 3}[cfg.tplace]): a(vm(f"buffer_load_dword a{A_DUM}, off, {srd(S_TB)}, 0", "x"))
        P.rare_end()
        a(label("L_prodret"))
        stamp("pub")
    a("v_mov_b32 v19, v7")
    a(addr_early())
    producer()
    x2 = [Ins(x.text.replace(" v7,", " v19,"), x.kind, x.tag) for x in xl[9:]]
    pq = [x2[0:2]] + [[x] for x in x2[2:5]] + [x2[5:7]] + [[x] for x in x2[7:10]] + [[] for _ in range(8)]
    sS, sA, sB = sSPIN, sCP, sT2
    a(f"s_add_u32 s{sS}, s{sT3}, {4*262144}", f"s_and_b32 s{sS}, s{sS}, 0x3fffff", f"s_lshl_b32 s{sA}, s{sW}, 11")
    sg4, sg5, sg6 = sg_dma(4, sS, sA, sB), sg_dma(5, sS, sA, sB), sg_dma(6, sS, sA, sB)
    ST = R[2]
    TT = 4
    for i in range(16):
        b = XN + 8*i
        a(wvm(f"x{i}"))
        pass
        a(pq.pop(0))
        for d in range(4): a(unpack(b+2*d, b+2*d+1, b+4+d))
        t = TT + 16*(i & 1)
        a(f"v_pk_add_f32 {vr(t, 2)}, {vr(b, 2)}, {vr(b+2, 2)}", f"v_pk_mul_f32 {vr(t+2, 2)}, {vr(b, 2)}, {vr(b, 2)}",
          f"v_pk_add_f32 {vr(t, 2)}, {vr(t, 2)}, {vr(b+4, 2)}", f"v_pk_fma_f32 {vr(t+2, 2)}, {vr(b+2, 2)}, {vr(b+2, 2)}, {vr(t+2, 2)}",
          f"v_pk_add_f32 {vr(t, 2)}, {vr(t, 2)}, {vr(b+6, 2)}", f"v_pk_fma_f32 {vr(t+2, 2)}, {vr(b+4, 2)}, {vr(b+4, 2)}, {vr(t+2, 2)}",
          f"v_add_f32 v{ST+i}, v{t}, v{t+1}", f"v_pk_fma_f32 {vr(t+2, 2)}, {vr(b+6, 2)}, {vr(b+6, 2)}, {vr(t+2, 2)}",
          f"v_add_f32 v{ST+16+i}, v{t+2}, v{t+3}")
        if i >= 8: a(sg4.pop(0))
    stamp("x_in")
    a(adv(sS), f"s_lshl_b32 s{sB}, s{sW}, 12", adv(sT3))
    red = []
    for h in (0, 16): red += [f"v_permlane32_swap_b32 v{ST+h+i}, v{ST+h+i+8}" for i in range(8)]
    for h in (0, 16): red += [f"v_add_f32 v{ST+h+i}, v{ST+h+i}, v{ST+h+i+8}" for i in range(8)]
    for h in (0, 16): red += [f"v_permlane16_swap_b32 v{ST+h+i}, v{ST+h+i+4}" for i in range(4)]
    for h in (0, 16): red += [f"v_add_f32 v{ST+h+i}, v{ST+h+i}, v{ST+h+i+4}" for i in range(4)]
    for rot in (8, 4, 2, 1):
        for h in (0, 16): red += [dpp(ST+h+i, rot) for i in range(4)]
    red += [f"v_mul_f32 v{ST+i}, {f32(1/512)}, v{ST+i}" for i in range(4)]
    red += [f"v_mul_f32 v{ST+4+i}, v{ST+i}, v{ST+i}" for i in range(4)] + [f"s_mov_b32 s{sT0}, {f32(1/512)}"]
    red += [f"v_fma_f32 v{ST+4+i}, v{ST+16+i}, s{sT0}, -v{ST+4+i}" for i in range(4)]
    red += [f"v_max_f32 v{ST+4+i}, 0, v{ST+4+i}" for i in range(4)]
    red += [f"v_add_f32 v{ST+4+i}, {f32(1e-5)}, v{ST+4+i}" for i in range(4)]
    red += [f"v_rsq_f32 v{ST+4+i}, v{ST+4+i}" for i in range(4)]
    red += [f"v_mul_f32 v{ST+i}, -v{ST+i}, v{ST+4+i}" for i in range(4)]
    for G in range(4):
        for i in range(4):
            row = i + 4*G
            red += [f"v_readlane_b32 s{64+2*row}, v{ST+4+i}, {16*G}", f"v_readlane_b32 s{65+2*row}, v{ST+i}, {16*G}"]
    vq = [[x] for x in wq_load(1, sT3)] + sg5
    stp = len(red) // len(vq)
    for i, x in enumerate(red):
        if i % stp == 0 and vq: a(vq.pop(0))
        a(x)
    assert not vq
    def poll(tag): return [vm(f"buffer_load_dwordx4 v[4:7], v1, {srd(S_WS)}, 0 offen sc1", tag), vm(f"buffer_load_ubyte v8, v3, {srd(S_DBG)}, 0 offen sc1", tag)]
    a("v_lshlrev_b32 v1, 4, v0", "v_and_b32 v3, 0xe0, v0", "v_bfe_u32 v4, v0, 3, 2", "v_lshl_or_b32 v3, v4, 1, v3", "v_or_b32 v3, 1, v3", poll("pl"), adv(sS))
    for i in range(16):
        if i % 2 == 0: a(sg6.pop(0))
        for d in range(4):
            b = XN + 8*i + 2*d
            a(f"v_pk_fma_f32 {vr(b, 2)}, {vr(b, 2)}, s[{64+2*i}:{65+2*i}], s[{64+2*i}:{65+2*i}] op_sel:[0,0,1] op_sel_hi:[1,0,1]")
    a("v_lshrrev_b32 v23, 2, v2", f"v_subrev_u32 v23, s{sRHO}, v23", "v_and_b32 v23, 15, v23", "v_and_b32 v22, 1, v23", "v_lshlrev_b32 v23, 12, v23",
      "v_lshl_or_b32 v23, v22, 6, v23", "v_and_b32 v22, 3, v2", "v_lshl_or_b32 v23, v22, 8, v23", "v_lshl_or_b32 v23, v22, 4, v23",
      f"s_lshl_b32 s{sT0}, s{sW}, 3", f"s_and_b32 s{sT1}, s{sG}, 1", f"s_or_b32 s{sT0}, s{sT0}, s{sT1}", f"s_lshl_b32 s{sT0}, s{sT0}, 7", f"v_or_b32 v23, s{sT0}, v23")
    a(f"v_add_u32 v21, s{sB}, v19", "v_lshrrev_b32 v20, 5, v2", "v_and_b32 v22, 31, v2", "v_lshlrev_b32 v20, 12, v20", "v_lshl_or_b32 v20, v22, 5, v20",
      f"s_lshl_b32 s{sT0}, s{sW}, 10", f"v_add_u32 v20, s{sT0}, v20")
    a(f"s_mov_b32 s{sSPIN}, {SPIN}")
    a(f"s_cmp_ge_u32 s{sW}, 2", f"s_cselect_b32 s{sT2}, 1.0, 0", f"s_mov_b32 s{sWQOFF}, s{sT3}")
    stamp("ln1")
    chk = ["v_and_b32 v8, 31, v8", "v_cmp_ne_u32 vcc, v5, v8", f"v_cmp_ne_u32 s[{sT0}:{sT1}], v7, v8", f"v_cmp_eq_u32 s[{sEX}:{sEX+1}], 0, v8", "s_nop 1",
           f"s_or_b64 vcc, vcc, s[{sT0}:{sT1}]", f"s_or_b64 vcc, vcc, s[{sEX}:{sEX+1}]", "s_cbranch_vccz L_polld"]
    a(wvm("pl"), chk)
    P.rare_begin()
    a(label("L_poll"), poll("x"), wvm0(), chk, f"s_sub_u32 s{sSPIN}, s{sSPIN}, 1", f"s_cmp_lg_u32 s{sSPIN}, 0", "s_cbranch_scc1 L_poll")
    P.rare_end()
    a(label("L_polld"))
    stamp("mod_in")
    a(unpack(8, 9, 4), unpack(10, 11, 6))
    for i in range(4): a(f"v_add_f32 v{8+i}, s{sT2}, v{8+i}")
    a("v_cvt_pk_bf16_f32 v4, v8, v9", "v_cvt_pk_bf16_f32 v6, v10, v11", unpack(8, 9, 4), unpack(10, 11, 6))
    for i in range(4): a(f"v_mul_f32 v{8+i}, {f32(QSCALE)}, v{8+i}")
    a([lg(f"ds_write_b128 v21, v[8:11] offset:{1024*w}", "gs") for w in range(4)], wlg0(), "s_barrier")
    pass
    SA, GG = 4, 12
    a(lg(f"ds_read_b128 {vr(SA, 4)}, v20", "g"), lg(f"ds_read_b128 {vr(GG, 4)}, v20 offset:8192", "g"),
      lg(f"ds_read_b128 {vr(SA+4, 4)}, v20 offset:16", "g"), lg(f"ds_read_b128 {vr(GG+4, 4)}, v20 offset:8208", "g"), wlg0())
    a(adv(sWQOFF))
    vq = wq_load(2, sWQOFF) + wq_load(3, sWQOFF)
    for row in range(16):
        b = XN + 8*row
        if row: a(f"v_xor_b32 v{20+(row&1)}, {16*row}, v23")
        for d in range(4): a(f"v_pk_fma_f32 {vr(b+2*d, 2)}, {vr(b+2*d, 2)}, {vr(GG+2*d, 2)}, {vr(SA+2*d, 2)}")
        if row == 8: a(wlg("hw3"), adv(sWQOFF))
        a(vq.pop(0))
        for d in range(4): a(f"v_cvt_pk_bf16_f32 v{b+d}, v{b+2*d}, v{b+2*d+1}")
        a(lg(f"ds_write_b128 v{20+(row&1) if row else 23}, {vr(b, 4)}", f"hw{row}"))
    a("v_lshrrev_b32 v6, 4, v2", "v_xor_b32 v4, v2, v6", "v_lshlrev_b32 v4, 4, v4", "v_xor_b32 v5, 64, v4")
    a(f"s_lshl_b32 s{sW2K}, s{sW}, 11", f"s_lshl_b32 s{sW4K}, s{sW}, 12")
    a(f"s_add_u32 s{sWQOFF}, s{sWQOFF}, {3*262144}", f"s_add_u32 s{sT0}, s{sW2K}, {L_K}", f"s_add_u32 s{sT1}, s{sW4K}, {L_E0}", "v_lshlrev_b32 v7, 4, v2")
    a(wlg0(), wvm("wq0"), f"v_add_u32 v{V_SG}, s{sT0}, v7", f"v_add_u32 v{V_SG+1}, s{sT1}, v7", perms(0, 0), "s_barrier")
    stamp("h_done")

def early_touches(t, what):
    o = [f"v_and_b32 v{t}, 15, v2", f"v_lshlrev_b32 v{t}, 7, v{t}",
         f"s_lshl_b32 s{sT0}, s{sRHO}, 2", f"s_add_u32 s{sT0}, s{sT0}, s{sW}", f"s_lshl_b32 s{sT0}, s{sT0}, 11", f"s_lshl_b32 s{sT1}, s{sG}, 19",
         f"s_add_u32 s{sT0}, s{sT0}, s{sT1}", f"s_add_u32 s{sT0}, s{sT0}, {1536*256}",
         vm(f"buffer_load_dword a{A_DUM}, v{t}, {srd(S_K)}, s{sT0} offen{NT('w')}", "dummy"),
         vm(f"buffer_load_dword a{A_DUM}, v{t}, {srd(S_V)}, s{sT0} offen{NT('w')}", "dummy")]
    if what == 2:
        o += [f"v_bfe_u32 v{t+1}, v2, 2, 2", f"v_and_b32 v{t+2}, 3, v2", f"v_mul_u32_u24 v{t+1}, 6144, v{t+1}", f"v_lshl_add_u32 v{t+1}, v{t+2}, 7, v{t+1}",
              f"s_and_b32 s{sT0}, s{sPP}, 31", f"s_lshl_b32 s{sT0}, s{sT0}, 2", f"s_add_u32 s{sT0}, s{sT0}, s{sW}", f"s_mul_i32 s{sT0}, s{sT0}, {4*6144}",
              f"s_lshr_b32 s{sT1}, s{sPP}, 5", f"s_lshl_b32 s{sT1}, s{sT1}, 9", f"s_add_u32 s{sT0}, s{sT0}, s{sT1}", f"s_add_u32 s{sT0}, s{sT0}, 2048",
              vm(f"buffer_load_dword a{A_DUM}, v{t+1}, {srd(S_TA)}, s{sT0} offen{NT('m')}", "dummy")]
    return o
def m2_loads():
    return [f"v_mul_u32_u24 v250, {2*6144}, v0", f"s_lshl_b32 s{sT2}, s{sPP}, 4", f"s_add_u32 s{sT2}, s{sT2}, 2048", f"s_add_u32 s{sT1}, s{sT2}, 6144",
            vm(f"buffer_load_dwordx4 {ar(A_MM, 4)}, v250, {srd(S_TA)}, s{sT2} offen{NT('m')}", "mm"), vm(f"buffer_load_dwordx4 {ar(A_MM+4, 4)}, v250, {srd(S_TA)}, s{sT1} offen{NT('m')}", "mm")]
def m2_calc():
    RW, SV, T, AC = 240, 248, 32, list(range(40, 48))
    dpp = lambda r, rot: f"v_add_f32_dpp v{r}, v{r}, v{r} row_ror:{rot} row_mask:0xf bank_mask:0xf"
    L2E = f32(-math.log2(math.e))
    o = [f"v_accvgpr_read_b32 v{T}, a{A_MM+8}"] + unpack(SV, SV+1, T) + [f"v_mul_f32 v{T}, {L2E}, v{SV}", f"v_mul_f32 v{T+1}, {L2E}, v{SV+1}", f"v_exp_f32 v{T}, v{T}", f"v_exp_f32 v{T+1}, v{T+1}",
         "GAP", f"v_add_f32 v{T}, 1.0, v{T}", f"v_add_f32 v{T+1}, 1.0, v{T+1}", f"v_rcp_f32 v{T}, v{T}", f"v_rcp_f32 v{T+1}, v{T+1}", "GAP",
         f"v_mul_f32 v{SV}, v{SV}, v{T}", f"v_mul_f32 v{SV+1}, v{SV+1}, v{T+1}", f"v_cvt_pk_bf16_f32 v{T}, v{SV}, v{SV+1}"] + unpack(SV, SV+1, T)
    o += ["MARK", wvm("mm")] + [f"v_accvgpr_read_b32 v{RW+i}, a{A_MM+i}" for i in range(8)]
    for r in range(2):
        for d in range(4): o += unpack(T+2*d, T+2*d+1, RW+4*r+d)
        for k in range(8):
            o.append(f"v_mul_f32 v{AC[k]}, v{T+k}, v{SV}" if r == 0 else f"v_fmac_f32 v{AC[k]}, v{T+k}, v{SV+1}")
    o += ["v_lshrrev_b32 v48, 4, v2", f"s_add_u32 s{sT0}, s{sW4K}, {L_E0}", f"v_lshl_add_u32 v48, v48, 3, s{sT0}"]
    o += [f"v_permlane32_swap_b32 v{AC[k]}, v{AC[k+4]}" for k in range(4)] + [f"v_add_f32 v{AC[k]}, v{AC[k]}, v{AC[k+4]}" for k in range(4)]
    o += ["v_and_b32 v7, 1, v2"]
    o += [f"v_permlane16_swap_b32 v{AC[k]}, v{AC[k+2]}" for k in range(2)] + [f"v_add_f32 v{AC[k]}, v{AC[k]}, v{AC[k+2]}" for k in range(2)]
    for rot in (8, 4, 2, 1): o += ["GAP", dpp(AC[0], rot), dpp(AC[1], rot)]
    o += ["GAP", lg(f"ds_write_b64 v48, {vr(AC[0], 2)}", "ms"), f"v_lshlrev_b32 v49, 4, v7", f"v_add_u32 v49, {L_E0}, v49", "v_lshlrev_b32 v7, 6, v7"]
    return o
def m2_publish():
    T = 128
    o = [lg(f"ds_read_b128 {vr(T+4*w, 4)}, v49 offset:{4096*w}", "mr") for w in range(4)]
    o += [f"s_bfe_u32 s{sT0}, s{sPP}, 0x40002", f"s_lshl_b32 s{sT0}, s{sT0}, 8", f"s_lshr_b32 s{sT1}, s{sPP}, 6", f"s_lshl_b32 s{sT1}, s{sT1}, 4", f"s_add_u32 s{sT0}, s{sT0}, s{sT1}",
          f"s_and_b32 s{sT1}, s{sPP}, 1", f"s_lshl_b32 s{sT1}, s{sT1}, 7", f"s_add_u32 s{sT0}, s{sT0}, s{sT1}",
          f"s_bfe_u32 s{sT1}, s{sPP}, 0x10001", f"s_lshl_b32 s{sT1}, s{sT1}, 3", f"s_add_u32 s{sT0}, s{sT0}, s{sT1}", f"s_add_u32 s{sT0}, s{sT0}, {WS_M2}", wlg("mr")]
    for h in range(4): o += [f"v_add_f32 v{T+h}, v{T+h}, v{T+4+h}", f"v_add_f32 v{T+8+h}, v{T+8+h}, v{T+12+h}"]
    for h in range(4): o.append(f"v_add_f32 v{T+h}, v{T+h}, v{T+8+h}")
    o += [f"v_cvt_pk_bf16_f32 v{T}, v{T}, v{T+1}", f"v_cvt_pk_bf16_f32 v{T+1}, v{T+2}, v{T+3}",
          vm(f"buffer_store_dwordx2 {vr(T, 2)}, v7, {srd(S_WS)}, s{sT0} offen sc1", "m2s")]
    return o

def perms(t, c):
    b = R[t % 6]; F = FST[c & 1]
    o = []
    for par, sel in ((0, sSELLO), (1, sSELHI)):
        for m in range(4):
            o.append(f"v_perm_b32 v{F+4*par+m}, v{b+4*(2*m+1)+c}, v{b+4*(2*m)+c}, s{sel}")
    return o
def hreads(t):
    return [lg(f"ds_read_b128 {ar(A_HB+16*(t&1)+4*qt, 4)}, v{V_HR+(t&1)} offset:{t*4096+qt*1024}", f"h{t}") for qt in range(4)]
def kv_items(u, soff):
    s = u & 3
    tg = f"kv{u//2 & 1}"
    return [f"s_add_u32 m0, s{sW2K}, {L_K+8192*s}",
            vm(f"buffer_load_dwordx4 v{V_KD}, {srd(S_K)}, s{soff} offen{NT('k')} lds", tg),
            vm(f"buffer_load_dwordx4 v{V_KD+1}, {srd(S_K)}, s{soff} offen offset:1024{NT('k')} lds", tg),
            f"s_add_u32 m0, s{sW2K}, {L_V+8192*s}",
            vm(f"buffer_load_dwordx4 v{V_VD}, {srd(S_V)}, s{soff} offen{NT('k')} lds", tg),
            vm(f"buffer_load_dwordx4 v{V_VD+1}, {srd(S_V)}, s{soff} offen offset:1024{NT('k')} lds", tg)]
def kv_adv(): return [f"s_add_u32 s{sKV0}, s{sKV0}, 16384", f"s_add_u32 s{sKV1}, s{sKV1}, 16384"]

def fkey(dst, k, t1, t2):
    return [f"v_lshrrev_b32 v{t1}, 1, v{k}", f"v_xor_b32 v{t2}, v{t1}, v{k}", f"v_and_b32 v{t1}, 4, v{t1}", f"v_and_b32 v{t2}, 4, v{t2}",
            f"v_and_b32 v{dst}, 3, v{k}", f"v_lshl_or_b32 v{dst}, v{t2}, 1, v{dst}", f"v_or_b32 v{dst}, v{dst}, v{t1}"]

A_PK = 160
def addr_early():
    t0, t1, t2, t3, t4, d = 12, 13, 14, 15, 16, 17
    pk = lambda i: f"v_accvgpr_write_b32 a{A_PK+i}, v{d}"
    o = [f"v_lshrrev_b32 v{t0}, 4, v2", f"v_and_b32 v{t4}, 15, v2", f"s_lshl_b32 s{sT0}, s{sW}, 3", f"v_add_u32 v{t0}, s{sT0}, v{t0}"]
    for i in range(2):
        o += [f"v_add_u32 v{t3}, {4*i}, v{t0}", f"v_and_b32 v{t3}, 15, v{t3}"]
        o += fkey(d, t3, t1, t2)
        o += [f"v_xor_b32 v{d}, v{d}, v{t4}", f"v_lshlrev_b32 v{d}, 4, v{d}", f"v_lshl_or_b32 v{d}, v{t0}, 8, v{d}", pk(i)]
        o += [f"v_and_b32 v{t3}, 7, v{t3}", f"v_lshlrev_b32 v{t3}, 1, v{t3}", f"v_xor_b32 v{d}, v{t3}, v{t4}",
              f"v_lshlrev_b32 v{d}, 4, v{d}", f"v_lshl_or_b32 v{d}, v{t0}, 8, v{d}", pk(2+i)]
    o += fkey(t3, t4, t1, t2)
    o += [f"v_lshrrev_b32 v{t0}, 4, v2", f"v_lshlrev_b32 v{t1}, 2, v{t0}", f"v_xor_b32 v{t3}, v{t3}, v{t1}", f"v_lshlrev_b32 v{t3}, 4, v{t3}",
          f"v_lshl_or_b32 v{t3}, v{t4}, 8, v{t3}", f"v_add_u32 v{d}, {L_K}, v{t3}", pk(4)]
    o += [f"v_lshrrev_b32 v{t0}, 2, v2", f"v_and_b32 v{t1}, 7, v{t0}", f"v_and_b32 v{t2}, 3, v2", f"v_lshlrev_b32 v{t2}, 3, v{t2}",
          f"v_lshl_or_b32 v{t2}, v{t1}, 5, v{t2}", f"v_lshl_or_b32 v{t2}, v{t0}, 8, v{t2}", f"v_add_u32 v{d}, {L_V}, v{t2}", pk(5)]
    o += [f"v_mov_b32 v{t0}, 0x3f803f80"] + [f"v_accvgpr_write_b32 a{A_ONE+i}, v{t0}" for i in range(4)]
    o += [f"v_accvgpr_write_b32 a{A_SEN+i}, -1" for i in range(4)]
    o += [f"v_lshrrev_b32 v{t1}, 5, v2", f"v_and_b32 v{t2}, 7, v2", f"v_lshl_or_b32 v{t1}, v{t1}, 3, v{t2}",
          f"s_lshr_b32 s{sT0}, s{sRB}, 1", f"v_cmp_eq_u32 vcc, s{sT0}, v{t1}", f"s_and_b32 s{sT0}, s{sRB}, 1", f"s_lshl_b32 s{sT0}, s{sT0}, 4", f"s_lshl_b32 s{sT0}, 0x8080, s{sT0}",
          f"v_mov_b32 v{t2}, s{sT0}", f"v_cndmask_b32 v{t2}, 0, v{t2}, vcc", f"v_or_b32 v{t2}, 0x40404040, v{t2}", f"v_accvgpr_write_b32 a{A_MSK}, v{t2}"]
    o += [f"v_lshrrev_b32 v{t0}, 2, v2", f"v_bfe_u32 v{t1}, v2, 3, 2", f"v_and_b32 v{t2}, 3, v2", f"v_lshlrev_b32 v{t2}, 3, v{t2}",
          f"v_lshl_or_b32 v{t2}, v{t1}, 5, v{t2}", f"v_lshl_or_b32 v{t2}, v{t0}, 7, v{t2}", f"s_lshl_b32 s{sT0}, s{sW}, 12", f"v_add_u32 v{t2}, s{sT0}, v{t2}", f"v_accvgpr_write_b32 a{A_TR}, v{t2}"]
    o += [f"v_lshrrev_b32 v{t0}, 3, v2", f"v_lshrrev_b32 v{t1}, 4, v2", f"v_and_b32 v{t2}, 7, v2", f"v_lshlrev_b32 v{t1}, 1, v{t1}", f"v_xor_b32 v{t2}, v{t2}, v{t1}",
          f"v_lshlrev_b32 v{t2}, 4, v{t2}", f"v_accvgpr_write_b32 a{A_SW}, v{t2}", f"s_lshl_b32 s{sT0}, s{sW}, 8", f"v_lshl_or_b32 v{d}, v{t0}, 10, v{t2}", f"v_add_u32 v{d}, s{sT0}, v{d}", pk(6)]
    return o
def addr_setup():
    o = [f"v_accvgpr_read_b32 v{V_KD+i}, a{A_PK+i}" for i in range(4)] + ["MARK"]
    o += [f"v_accvgpr_read_b32 v{V_KR}, a{A_PK+4}", f"v_accvgpr_read_b32 v{V_VR}, a{A_PK+5}", f"v_accvgpr_read_b32 v253, a{A_PK+6}"]
    for s in range(1, 4): o += [f"v_xor_b32 v{V_KR+s}, {16*s}, v{V_KR}"]
    for dt in range(1, 8): o += [f"v_xor_b32 v{V_VR+dt}, {32*dt}, v{V_VR}"]
    o += [f"v_lshlrev_b32 v{V_PF}, 4, v2", f"s_lshl_b32 s{sT0}, s{sW}, 14", f"s_add_u32 s{sT0}, s{sT0}, {L_B}", f"v_add_u32 v1, s{sT0}, v{V_PF}"]
    return o

def scalar_setup():
    o = [f"s_lshl_b32 s{sKV0}, s{sG}, 19", f"s_add_u32 s{sKV0}, s{sKV0}, {1536*256}", f"s_add_u32 s{sKV1}, s{sKV0}, 8192"]
    o += [f"s_lshl_b32 s{sWOB}, s{sG}, 19", f"s_mul_i32 s{sW1B}, s{sG}, 448", f"s_mul_i32 s{sW2B}, s{sG}, {224*1024}"]
    o += [f"s_mul_i32 s{sTEAM}, s{sRB}, {8*MB_SZ}", f"s_add_u32 s{sTEAM}, s{sTEAM}, {WS_MB}",
          f"s_mul_i32 s{sEX}, s{sG}, {MB_SZ}", f"s_add_u32 s{sMB}, s{sTEAM}, s{sEX}",
          f"s_mul_i32 s{sEX}, s{sW}, {MB_W}", f"s_add_u32 s{sMB}, s{sMB}, s{sEX}", f"s_mov_b32 s{sPF}, s{sMB}", f"s_mov_b32 s{sBAD}, 0",
          f"s_mov_b32 s{sWOP}, s{sWOB}", f"s_mov_b32 s{sRING}, s{sW4K}", f"s_mov_b32 s{sRD}, 32768", f"s_or_b32 s{sFLAG}, s{sFLAG}, 0x40"]
    o += mk_srd(S_TA, S_B2P, 1024) + mk_srd(S_TB, S_B1P, 3584)
    o += [f"s_lshl_b32 s{sEX}, s{sRB}, 2", f"s_add_u32 s{sEX}, s{sEX}, s{sW}", f"s_lshl_b32 s{sEX}, s{sEX}, 3", f"s_add_u32 s{sEX}, s{sEX}, s{sG}",
          f"s_lshl_b32 s{sXROW}, s{sEX}, 11", f"s_lshl_b32 s{sB1O}, s{sW}, 7", f"s_add_u32 s{sB1O}, s{sB1O}, s{sW1B}", f"s_mov_b32 s{sM2O}, {WS_M2}"]
    return o

def warmups():
    return [f"v_lshlrev_b32 v50, 7, v2", f"s_lshl_b32 s{sT2}, s{sRHO}, 2", f"s_add_u32 s{sT2}, s{sT2}, s{sW}", f"s_lshl_b32 s{sT1}, s{sT2}, 13", f"s_add_u32 s{sT1}, s{sT1}, s{sWOB}",
            vm(f"buffer_load_dword a{A_DUM}, v50, {srd(S_WO)}, s{sT1} offen{NT('W')}", "dummy"),
            f"v_min_u32 v51, 27, v2", f"v_lshlrev_b32 v51, 7, v51", f"s_mul_i32 s{sT1}, s{sT2}, 3584", f"s_add_u32 s{sT1}, s{sT1}, s{sW2B}",
            f"v_bfe_u32 v52, v2, 2, 3", f"v_mul_u32_u24 v52, 3584, v52", f"v_and_b32 v50, 3, v2", f"v_lshl_add_u32 v52, v50, 7, v52",
            f"s_mul_i32 s{sT2}, s{sT2}, {8*3584}", f"s_and_b32 s{sEX}, s{sW1B}, 0xffffff80", f"s_add_u32 s{sT2}, s{sT2}, s{sEX}",
            vm(f"buffer_load_dword a{A_DUM}, v52, {srd(S_W1)}, s{sT2} offen{NT('W')}", "dummy"),
            vm(f"buffer_load_dword a{A_DUM}, v51, {srd(S_W2)}, s{sT1} offen{NT('W')}", "dummy")]

def qproj():
    a = P.add
    a(hreads(0))
    mc = m2_calc(); k = mc.index("MARK")
    silu = [x.replace("v32", "v240").replace("v33", "v241") if isinstance(x, str) else x for x in mc[:k]]
    et = early_touches(240, cfg.qtouch) if cfg.qtouch else []
    et += ["v_lshlrev_b32 v242, 2, v0", vm(f"buffer_load_dword a{A_MM+8}, v242, {srd(S_TB)}, 0 offen{NT('m')}", "c")]
    extra = et + [x for x in addr_setup() if x != "MARK"] + ["WAIT8", wvm("c")] + silu
    m2dot = mc[k+1:]
    scal = scalar_setup()
    tail_srd = mk_srd(S_TA, S_B2P, 1024) + mk_srd(S_TB, S_B1P, 3584)[:3]
    scal = [x for x in scal if x not in tail_srd]
    mmq = m2_loads() + tail_srd
    late = kv_items(0, sKV0) + kv_items(1, sKV1) + kv_adv() + kv_items(2, sKV0) + kv_items(3, sKV1) + kv_adv()
    wu = warmups()
    a(wlg("h0"))
    for t in range(16):
        mf, gaps = [], [[] for _ in range(32)]
        for c in range(4):
            F = FST[c & 1]
            for par in range(2):
                for qt in range(4):
                    d = ar(A_QACC + ((2*c+par)*4+qt)*4, 4)
                    mf.append(f"{MF} {d}, {vr(F+4*par, 4)}, {ar(A_HB+16*(t&1)+4*qt, 4)}, {d if t else 0}")
        tl = t - cfg.qstart + 7
        if 7 <= tl < 16:
            ad = adv(sWQOFF); gaps[0].append(ad[0]); gaps[1].append(ad[1])
            for j, x in enumerate(wq_load(tl, sWQOFF)): gaps[4*j+2].append(x)
        for c in range(4):
            g0 = 8*c
            pm = perms(t, c+1) if c < 3 else perms(t+1, 0) if t < 15 else []
            for k in (0, 1, 3, 4): gaps[g0+k] += pm[:2]; pm = pm[2:]
        if t < 15:
            hr = hreads(t+1)
            gaps[5] += hr[:2]; gaps[7] += hr[2:]
            gaps[23].append(wvm(f"wq{t+1}") if not 4 <= t+1 <= 6 else wlg(f"sg{t+1}")); gaps[31].append(wlg(f"h{t+1}"))
        if 1 <= t <= 3:
            sr = sgreads(t+3)
            gaps[12].insert(0, wvm(f"sgd{t+3}"))
            for k in (13, 15, 21, 29): gaps[k] += sr[:2]; sr = sr[2:]
        free = list(range(8, 32))
        for k in range(2, 31):
            if scal and not any(isscalar(x) or isvm(x) for x in gaps[k]) and k % 8 in (0, 1, 3, 4): gaps[k].insert(0, scal.pop(0))
        t0 = cfg.qstart + 9
        if t == t0: fill(gaps, list(range(32)), mmq); assert not mmq
        if t > t0: fill(gaps, [k for k in range(32) if (t > t0 + 1 or k >= 12) and k % 4 in (1, 2)], late)
        if extra and extra[0] == "WAIT8" and t >= 8: extra.pop(0)
        k = extra.index("WAIT8") if "WAIT8" in extra else len(extra)
        part = extra[:k]; fill(gaps, free, part); extra = part + extra[k:]
        if t >= t0 + 2:
            assert not extra
            fill(gaps, list(range(32)), m2dot)
        if not late and t > t0 + 1: fill(gaps, list(range(32)), wu)
        if t in (4, 8, 12): stamp(f"q{t}", True)
        a(raw(f"; MARK q{t}"))
        a(template(mf, gaps))
    assert not extra
    print("left after Q projection:", len(late), len(m2dot))
    a("s_nop 1", [x if x != "GAP" else "s_nop 1" for x in m2dot], late, wu)
    a(wvm("kv0"), wlg0(), "s_barrier")
    stamp("qproj")

def KF(u, kt, s): return A_KF + 32*(u & 1) + 16*kt + 4*s
def VF(u, dt): return A_VF + 32*(u & 1) + 4*dt
def OA(dt, qt): return V_O + (dt*4 + qt)*4
def QF(s, qt): return V_Q + (s*4 + qt)*4
def kreads(u):
    return [lg(f"ds_read_b128 {ar(KF(u, kt, s), 4)}, v{V_KR+s} offset:{(u&3)*8192+kt*4096}", f"k{u&1}") for s in range(4) for kt in range(2)]
def vreads(u):
    return [lg(f"ds_read_b64_tr_b16 {ar(VF(u, dt)+2*hh, 2)}, v{V_VR+dt} offset:{(u&3)*8192+hh*4096}", f"v{u&1}") for dt in range(8) for hh in range(2)]
def qk(n):
    u, qt = divmod(n, 4)
    o = []
    for s in range(4):
        for kt in range(2):
            d = vr(V_S + 8*(n & 1) + 4*kt, 4)
            o.append(f"{MF} {d}, {ar(KF(u, kt, s), 4)}, {vr(QF(s, qt), 4)}, {d if s else vr(V_NM+4*qt, 4)}")
    return o
def pv(n):
    u, qt = divmod(n, 4)
    p = vr(V_P + 4*(n & 1), 4)
    o = []
    for dt in range(8):
        d = vr(OA(dt, qt), 4)
        o.append(f"{MF} {d}, {ar(VF(u, dt), 4)}, {p}, {d if u else 0}")
    d = ar(A_L + 4*qt, 4)
    o.append(f"{MF} {d}, {ar(A_ONE, 4)}, {p}, {d if u else 0}")
    return o
def sreg(n, i):
    if n < 4: return OA(2*n + (i >> 2), 3) + (i & 3)
    return V_S + 8*(n & 1) + i
def expo(n):
    e = [f"v_exp_f32 v{sreg(n, i)}, v{sreg(n, i)}" for i in range(8)]
    c = [f"v_cvt_pk_bf16_f32 v{V_P+4*(n&1)+i}, v{sreg(n, 2*i)}, v{sreg(n, 2*i+1)}" for i in range(4)]
    pre = [f"v_add_f32 v{sreg(n, i)}, v{sreg(n, i)}, v{V_NM+4*n}" for i in range(8)] if n < 4 else []
    return pre, e, c
def frag_reads(n):
    u, ph = n // 4 + 1, n % 4
    if u > 15: return []
    kr, vrd = kreads(u), vreads(u)
    if n < 4: kr = []
    if ph < 2: return kr[4*ph:4*ph+4] + vrd[2*ph:2*ph+2]
    return vrd[4+6*(ph-2):10+6*(ph-2)]

MU_TEMPLATES = [
    dict(e=[0,2,4,6,8,10,12,14], c=[9,9,16,16], d=[1,1,3,3,5,5], w=15),
    dict(e=[0,2,4,6,8,10,12,14], c=[7,7,15,15], d=[1,1,3,3,5,5], w=13),
    dict(e=[0,2,4,6,8,10,12,14], c=[9,9,16,16], d=[1,1,5,5,11,11], w=15),
    dict(e=[0,2,4,6,9,11,13,15], c=[8,8,16,16], d=[1,1,3,3,5,5], w=14),
    dict(e=[0,1,3,4,7,8,10,11], c=[6,6,13,13], d=[2,2,5,5,9,9], w=15),
    dict(e=[0,2,4,6,8,10,12,14], c=[11,11,16,16], d=[1,1,3,3,7,7], w=15),
]
carry = []
def muslot(n, q=None, tail=()):
    has_qk = 4 <= n + 2 <= 63
    mf = (qk(n+2) if has_qk else []) + pv(n)
    pre, e, c = expo(n+1) if n + 1 <= 63 else ([], [], [])
    ds = frag_reads(n)
    endw = []
    if n % 4 == 1 and n + 3 <= 63: endw.append(wlg(f"k{((n+3)//4) & 1}"))
    if n % 4 == 3 and n < 63: endw.append(wlg(f"v{((n+1)//4) & 1}"))
    if has_qk and not pre and e:
        gaps = [[] for _ in range(17)]
        T = MU_TEMPLATES[cfg.mu]
        for i in range(8): gaps[T["e"][i]].append(e[i])
        for k, x in carry: gaps[k].append(x)
        del carry[:]
        for i in range(4):
            if T["c"][i] >= 0: gaps[T["c"][i]].append(c[i])
            elif n % 16 == 3 or n >= 61: gaps[16].append(c[i])
            else: carry.append((-T["c"][i], c[i]))
        for k in sorted(T["d"]):
            if ds: gaps[k].append(ds.pop(0))
        assert not ds
        if not tail: gaps[14] = endw + gaps[14]
        if q is not None: fill(gaps, [k for k in range(17) if not (tail and k == 16)], q)
        if tail: gaps[16] += list(tail)
        return template(mf, gaps)
    ev = list(pre)
    for i in range(len(e)):
        ev.append(e[i])
        if i >= 2 and i % 2 == 0: ev.append(c[i//2 - 1])
    if c: ev += ["s_nop 0", c[3]]
    oth = ds + (q or [])
    if q is not None: del q[:]
    out = [] if has_qk else [op("s_nop 1")]
    ev = [op(x) if isinstance(x, str) else x for x in ev]
    oth = [op(x) if isinstance(x, str) else x for x in oth]
    for k, m in enumerate(mf):
        out.append(op(m))
        left = len(mf) - k
        cap = max(2, -(-(sum(x.cost for x in ev) + sum(x.cost for x in oth)) // left))
        used = 0
        while used < cap and (ev or oth):
            src = None
            for L in ((ev, oth) if k % 2 == 0 else (oth, ev)):
                if L and used + L[0].cost <= cap:
                    if L is ev and L[0].text.startswith("v_cvt") and out[-1].text.startswith("v_exp"): continue
                    src = L; break
            if src is None: break
            x = src.pop(0)
            if x.kind == "vm" and " m0," in out[-1].text: out.append(op("s_nop 0"))
            out.append(x); used += x.cost
    return out + ev + oth + endw + [op(x) if isinstance(x, str) else x for x in tail]

def stage_dma(sig):
    st = STAGES[sig % 6]
    if sig < 32:
        p, t = divmod(sig, 16); S, vb, base, off = S_WO, V_WD, sWOB, t*32768 + 128*p
    elif sig < 48:
        pos = sig - 32; tb = 4*((pos >> 1) & 3) + 2*(pos >> 3) + (pos & 1)
        S, vb, base, off = S_W1, V_W1D, sW1B, tb*32*3584
    else:
        p, t = divmod(sig - 48, 7); S, vb, base, off = S_W2, V_WD, sW2B, t*32768 + 128*p
    return [f"s_add_u32 s{sT3}, s{base}, {off}", f"s_add_u32 m0, s{sW4K}, {st}"] + \
           [vm(f"buffer_load_dwordx4 v{vb+i}, {srd(S)}, s{sT3} offen offset:{1024*i}{NT('r')} lds", f"st{sig}") for i in range(4)]

V_W1D, V_TR, V_LIN, V_PS, V_GA = 17, 8, 16, 21, 22
def normalize(qt):
    rl = V_NM + 2*qt
    o = [f"v_accvgpr_read_b32 v{rl}, a{A_L+4*qt}", f"v_cmp_nle_f32 vcc, v{rl}, v7", f"v_rcp_f32 v{rl}, v{rl}", "s_nop 0",
         f"s_or_b32 s{sBAD}, s{sBAD}, vcc_lo", f"s_or_b32 s{sBAD}, s{sBAD}, vcc_hi"]
    for u in range(4):
        x, y = OA(2*u, qt), OA(2*u+1, qt)
        for b in (x, x+2, y, y+2): o.append(f"v_pk_mul_f32 {vr(b, 2)}, {vr(b, 2)}, {vr(rl, 2)} op_sel_hi:[1,0]")
        o += [f"v_cvt_pk_bf16_f32 v{x}, v{x}, v{x+1}", f"v_cvt_pk_bf16_f32 v{x+1}, v{x+2}, v{x+3}",
              f"v_cvt_pk_bf16_f32 v{x+2}, v{y}, v{y+1}", f"v_cvt_pk_bf16_f32 v{x+3}, v{y+2}, v{y+3}"]
        o.append(lg(f"ds_write_b128 v1, {vr(x, 4)} offset:{u*4096+qt*1024}", "ow"))
    return o

def param_loads():
    x, y, z, c = 20, 21, 22, 23
    o = [f"v_bfe_u32 v{x}, v0, 4, 2", f"v_bfe_u32 v{y}, v0, 3, 1", f"v_and_b32 v{z}, 3, v0"]
    o += [f"v_lshlrev_b32 v{c}, 8, v{x}", f"v_lshl_or_b32 v{c}, v{y}, 6, v{c}", f"v_lshl_or_b32 v{c}, v{z}, 3, v{c}", f"v_lshlrev_b32 v{x}, 3, v{x}"]
    for p in range(2):
        for h in range(2):
            o.append(vm(f"buffer_load_dwordx2 {ar(A_B2+4*p+2*h, 2)}, v{c}, {srd(S_TA)}, 0 offen offset:{128*p+32*h}{NT('p')}", "par"))
    o += [f"v_bfe_u32 v{y}, v0, 2, 1", f"v_lshl_or_b32 v{y}, v{y}, 10, v{c}"]
    for e in range(4):
        o.append(vm(f"buffer_load_dwordx2 {ar(A_B1+2*e, 2)}, v{x}, {srd(S_TB)}, s{sB1O} offen offset:{32*e}{NT('p')}", "par"))
    for p in range(2):
        for h in range(2):
            o.append(vm(f"buffer_load_dwordx2 {ar(A_XR+4*p+2*h, 2)}, v{y}, {srd(S_X)}, s{sXROW} offen offset:{128*p+32*h}{NT('p')}", "par"))
    o += [f"v_accvgpr_write_b32 a{A_OV}, v{y}"]
    return o

def m2_param_loads():
    x, y, c = 28, 29, 30
    o = [f"v_bfe_u32 v{x}, v0, 4, 2", f"v_bfe_u32 v{y}, v0, 3, 1", f"v_lshlrev_b32 v{c}, 10, v{x}", f"v_lshl_or_b32 v{c}, v{y}, 8, v{c}", f"v_and_b32 v{x}, 3, v0", f"v_lshl_or_b32 v{c}, v{x}, 6, v{c}"]
    for p in range(2):
        for vec in range(4):
            o.append(vm(f"buffer_load_dwordx4 {ar(A_M2+16*p+4*vec, 4)}, v{c}, {srd(S_WS)}, s{sM2O} offen offset:{512*p+16*vec} sc1", "m2p"))
    return o
def flag_load(tmp, tag): return [f"v_lshlrev_b32 v{tmp}, 2, v0", f"v_and_b32 v{tmp}, 0xff, v{tmp}", vm(f"buffer_load_dword a{A_FL}, v{tmp}, {srd(S_DBG)}, 0 offen sc1", tag)]
def flag_check(tmp):
    a = P.add
    chk = [f"v_accvgpr_read_b32 v{tmp}, a{A_FL}", f"v_accvgpr_read_b32 v{tmp+1}, a{A_MSK}", f"v_and_b32 v{tmp}, v{tmp+1}, v{tmp}", f"v_cmp_ne_u32 vcc, v{tmp+1}, v{tmp}", "s_cbranch_vccz L_flagok"]
    a(wvm("fl"), chk)
    P.rare_begin()
    a(f"s_mov_b32 s{sSPIN}, {SPIN}", label("L_flagsp"), flag_load(tmp, "x"), wvm0(), chk,
      f"s_sub_u32 s{sSPIN}, s{sSPIN}, 1", f"s_cmp_lg_u32 s{sSPIN}, 0", "s_cbranch_scc1 L_flagsp")
    P.rare_end()
    a(label("L_flagok"))
def prefill(n):
    if cfg.nopf: return [f"s_nop 0" for i in range(n)] + [f"s_add_u32 s{sPF}, s{sPF}, {1024*n}"]
    o = [vm(f"buffer_store_dwordx4 {ar(A_SEN, 4)}, v{V_PF}, {srd(S_WS)}, s{sPF} offen offset:{1024*i} sc1", "pf") for i in range(n)]
    return o + [f"s_add_u32 s{sPF}, s{sPF}, {1024*n}"]

def attention():
    a = P.add
    a(kreads(0))
    a(m2_publish())
    T = 32
    def conv(qt):
        o = []
        for s in range(4):
            for mm in (0, 2):
                t = T + 4*((2*s + mm//2) & 3)
                for k in range(4): o.append(f"v_accvgpr_read_b32 v{t+k}, a{A_QACC+((2*mm+k)*4+qt)*4+s}")
                o += [f"v_cvt_pk_bf16_f32 v{QF(s, qt)+mm}, v{t}, v{t+1}", f"v_cvt_pk_bf16_f32 v{QF(s, qt)+mm+1}, v{t+2}, v{t+3}"]
        return o
    def s0(qt):
        o = []
        for s in range(4):
            for kt in range(2):
                d = vr(OA(2*qt+kt, 3), 4)
                o.append(f"{MF} {d}, {ar(KF(0, kt, s), 4)}, {vr(QF(s, qt), 4)}, {d if s else 0}")
        return o
    def maxred(qt):
        r = [sreg(qt, i) for i in range(8)]
        m, t = V_NM + 4*qt, V_NM + 4*qt + 1
        return [f"v_max3_f32 v{m}, v{r[0]}, v{r[1]}, v{r[2]}", f"v_max3_f32 v{t}, v{r[3]}, v{r[4]}, v{r[5]}", f"v_max3_f32 v{m}, v{m}, v{r[6]}, v{r[7]}",
                f"v_max_f32 v{m}, v{m}, v{t}", f"v_mov_b32 v{t}, v{m}", "s_nop 1", f"v_permlane16_swap_b32 v{m}, v{t}", f"v_max_f32 v{m}, v{m}, v{t}",
                f"v_mov_b32 v{t}, v{m}", "s_nop 1", f"v_permlane32_swap_b32 v{m}, v{t}", f"v_max_f32 v{m}, v{m}, v{t}",
                f"v_mul_f32 v{m}, -1.0, v{m}", f"v_mov_b32 v{m+1}, v{m}", f"v_mov_b32 v{m+2}, v{m}", f"v_mov_b32 v{m+3}, v{m}"]
    a(f"v_mov_b32 v{V_WD}, v253")
    for i in range(1, 4): a(f"v_add_u32 v{V_WD+i}, {7168*i}, v253")
    a(conv(0), kreads(1), wlg("k0"))
    for qt in range(4):
        fl = conv(qt+1) if qt < 3 else []
        a(interleave(s0(qt), fl, cap=6))
        if qt == 3: a(vreads(0))
        if qt >= 1: a(maxred(qt-1))
    a(maxred(3))
    pre, e, c = expo(0)
    a(pre, e, "s_nop 0", c, wlg("v0"))
    stamp("conv")
    def bar(tag, nxt=()): return [wlg0(), wvm(tag), op("s_barrier")] + list(nxt)
    pf = prefill(4)
    a(muslot(0, pf[:1]), muslot(1, pf[1:2]), muslot(2, pf[2:3]))
    a(muslot(3, pf[3:], tail=[f"s_mov_b32 s{sLOOP}, 3"]))
    a(raw(".p2align 6"))
    a(label("L_attn"))
    P.loop_begin(3)
    for half in range(2):
        u0 = 4 + 2*half
        if half == 0: a(bar("kv1"))
        kv = kv_items(u0, sKV0) + kv_items(u0+1, sKV1)
        a(kv.pop(0))
        q = kv + kv_adv()
        st = prefill(3) + prefill(2)
        wp = [vm(f"buffer_load_dwordx4 v{V_WD+i}, {srd(S_WO)}, s{sWOP} offen offset:{1024*i}{NT('r')} lds", "wop") for i in range(4)]
        q += [f"s_add_u32 m0, s{sRING}, {16384*half}", st[0], wp[0], "BREAK", st[1], wp[1], "BREAK", st[2], st[3], wp[2], "BREAK", st[4], wp[3], "BREAK", st[5], st[6], f"s_add_u32 s{sWOP}, s{sWOP}, 32768"]
        if half == 1: q += [f"s_add_u32 s{sRING}, s{sRING}, s{sRD}", f"s_mul_i32 s{sRD}, s{sRD}, 3", f"s_sub_u32 s{sLOOP}, s{sLOOP}, 1"]
        for j in range(8):
            n = 4 + 8*half + j
            tail = ()
            if j == 7 and half == 0: tail = bar("kv0")
            if j == 7 and half == 1: tail = [f"s_cmp_lg_u32 s{sLOOP}, 0"]
            k = q.index("BREAK") if "BREAK" in q else len(q)
            part = q[:k]
            a(muslot(n, part, tail))
            q = part + (q[k:] if part else q[k+1:])
            if half == 0 and j == 3:
                a(f"s_lshl_b32 s{sT0}, s{sW}, 2", f"s_add_u32 s{sT0}, s{sT0}, s{sLOOP}", f"s_cmp_ge_u32 s{sT0}, 3", "s_cbranch_scc1 L_noflag")
                P.rare_begin()
                a("s_mov_b64 exec, 1", f"v_accvgpr_write_b32 a{A_FL}, s{sFLAG}",
                  vm(f"buffer_store_byte a{A_FL}, off, {srd(S_DBG)}, s{sPP} sc1", "x"), "s_mov_b64 exec, -1", f"s_or_b32 s{sFLAG}, s{sFLAG}, 0x80")
                P.rare_end()
                a(label("L_noflag"))
        assert not q, q
    a("s_cbranch_scc1 L_attn")
    P.loop_end()
    stamp("aloop", True)
    a(bar("kv1"))
    q = [f"v_mov_b32 v7, {f32(2.0**30) if not cfg.force_fallback else f32(1e-3)}"] + param_loads()
    for n in range(52, 64):
        tail = [wlg0(), op("s_barrier")] if n == 59 else ()
        if n == 58:
            assert not q
            q = tr_lo() + areads(0) + areads(1)
        if n == 60:
            q += areads(2) + areads(3) + [wlg("a1")] + stage_dma(6) + stage_dma(7) + [wlg("a3")] + stage_dma(8) + stage_dma(9)
        if n >= 62:
            take = q[:10]; q = q[10:]
            a(muslot(n, take))
        else:
            a(muslot(n, q, tail))
    nrm = normalize(0) + normalize(1) + normalize(2) + normalize(3)
    out = []
    for x in nrm:
        out.append(x)
        if isinstance(x, Ins) and x.kind == "lg":
            while q and not isvm(q[0]): out.append(q.pop(0))
            if q: out += ["s_nop 0", q.pop(0)] if isinstance(out[-1], str) and " m0," in out[-1] else [q.pop(0)]
    assert not q
    a(out)
    a(f"s_cmp_lg_u32 s{sBAD}, 0", "s_cbranch_scc1 L_fallback")
    a(label("L_fb_ret"))
    a(tr_hi(), f"v_mov_b32 v{V_LIN}, v{V_PF}", f"v_add_u32 v{V_LB}, {L_B}, v{V_PF}", wvm("wop"), areads(4))
    a(wvm("pf"), wlg0(), "s_barrier")
    stamp("attn")

A_AF, A_BF = 0, 32
ACCX, ACCY = 128, 192
G0, G1 = 64, 96
V_YR, V_YW, V_LB = 23, 24, 7
V_X1, V_B1F = 32, 48
AFB = [160, 176, 0, 16, 192, 208, 224]
def afb(sig): return AFB[(sig - 48) % 7] if sig >= 48 else AFB[sig % 6]
def areads(sig):
    st = STAGES[sig % 6]
    hi = st >= L_E0
    off = st - (L_E0 if hi else 0)
    return [lg(f"ds_read_b64_tr_b16 {ar(afb(sig)+4*e+2*hh, 2)}, v{V_TR+4*hi+e} offset:{off+2048*hh}", f"a{sig}") for e in range(4) for hh in range(2)]
def bfb(sig, qt): return A_BF + 16*(sig & 1) + 4*qt
def breads(sig, qts=range(4)):
    if sig < 32: t, v = sig % 16, V_LB
    elif sig < 48: t, v = sig - 32, V_YR
    else: t, v = (sig - 48) % 7, V_LB
    return [lg(f"ds_read_b128 {ar(bfb(sig, qt), 4)}, v{v} offset:{t*4096+qt*1024}", f"a{sig}") for qt in qts]
def mfmas(sig, acc, first, cinit, qts):
    mf = []
    for e in range(4):
        for qt in qts:
            d = vr(acc + (e*4+qt)*4, 4)
            c = d if not first else (0 if cinit is None else vr(cinit + 4*e, 4))
            mf.append(f"{MF} {d}, {ar(afb(sig)+4*e, 4)}, {ar(bfb(sig, qt), 4)}, {c}")
    return mf
def gstep(sig, acc, first, cinit=None, q=None, rd=1, dm=6, nq=range(4), end=(), nb=True):
    mf = mfmas(sig, acc, first, cinit, range(4))
    gaps = [[] for _ in range(16)]
    t_ = areads(sig+rd) if rd else []
    b_ = breads(sig+1, nq) if nb else []
    ds = t_[:4] + [x for p in zip(t_[4:], b_ + [None]*4) for x in p if x] if t_ else b_
    for k in (0, 1, 3, 4, 5, 7):
        gaps[k] = ds[:2]; ds = ds[2:]
    dma = dm is not None and sig + dm < 62
    if dma:
        d = stage_dma(sig+dm)
        gaps[0].insert(0, d[0]); gaps[1].insert(0, d[1])
        for i, k in enumerate((2, 6, 10, 14)): gaps[k] = [d[2+i]]
    gaps[15] = list(end)
    if q: fill(gaps, [k for k in range(15) if k >= 8 or not gaps[k]], q)
    return template(mf, gaps)
def hstep(sig, acc, first, half, rd, dq=None, q=None):
    mf = mfmas(sig, acc, first, None, (2*half, 2*half+1))
    gaps = [[] for _ in range(8)]
    rd = list(rd)
    tags = {x.tag for x in rd if x.kind == "lg"}
    for k in (0, 1, 3, 4, 5):
        while rd and rd[0].kind != "lg": gaps[k].append(rd.pop(0))
        gaps[k] += rd[:2]; rd = rd[2:]
    assert not rd
    if tags: gaps[7] = [wlg(*tags)]
    if dq:
        for k in (2, 6):
            j = k - 2
            while dq and not isvm(dq[0]):
                gaps[j].insert(0, dq.pop(0)); j += 1
            if dq: gaps[k].append(dq.pop(0))
    if q: fill(gaps, list(range(8)), q)
    return template(mf, gaps)

def pack_store(acc, p, mboff, halves=(0, 1), tag="ps"):
    o = []
    for qt in [2*h + i for h in halves for i in range(2)]:
        if qt % 2 == 0: o.append(f"s_add_u32 s{sPST}, s{sMB}, {mboff+8192*p+2048*qt}")
        for b in range(2):
            x, y = acc + (2*b*4+qt)*4, acc + ((2*b+1)*4+qt)*4
            o += [f"v_cvt_pk_bf16_f32 v{x}, v{x}, v{x+1}", f"v_cvt_pk_bf16_f32 v{x+1}, v{x+2}, v{x+3}",
                  f"v_cvt_pk_bf16_f32 v{x+2}, v{y}, v{y+1}", f"v_cvt_pk_bf16_f32 v{x+3}, v{y+2}, v{y+3}",
                  vm(f"buffer_store_dwordx4 {vr(x, 4)}, v{V_PS}, {srd(S_WS)}, s{sPST} offen offset:{(qt&1)*2048+b*1024} sc1", tag)]
    return o

def gather_loads(buf, n, voff, soffs, tag):
    o = []
    for i in range(n):
        o += [f"s_add_u32 s{sGAT}, s{sTEAM}, {soffs(i)}", vm(f"buffer_load_dwordx4 {vr(buf+4*i, 4)}, v{voff}, {srd(S_WS)}, s{sGAT} offen sc1", tag)]
    return o
def allmax(buf, n, tmp):
    o = [f"v_max3_u32 v{tmp}, v{buf}, v{buf+1}, v{buf+2}", f"v_max_u32 v{tmp+1}, v{buf+3}, v{buf+4}"]
    k = 5
    while k + 3 < 4*n:
        o += [f"v_max3_u32 v{tmp}, v{tmp}, v{buf+k}, v{buf+k+1}", f"v_max3_u32 v{tmp+1}, v{tmp+1}, v{buf+k+2}, v{buf+k+3}"]; k += 4
    assert 4*n - k == 3
    return o + [f"v_max3_u32 v{tmp}, v{tmp}, v{buf+k}, v{buf+k+1}", f"v_max3_u32 v{tmp}, v{tmp}, v{tmp+1}, v{buf+k+2}", f"v_cmp_eq_u32 vcc, -1, v{tmp}"]
def gather_check(buf, n, voff, soffs, tag, tmp, reduced=False):
    a = P.add
    ok, again = newlabel("gok"), newlabel("gre")
    if cfg.stamps and cfg.fine: a(f"s_mov_b32 s{sSPIN}, {SPIN+1}")
    if not reduced:
        a(wvm(tag))
        stamp("w_" + tag + str(uid[0]), True)
        a(allmax(buf, n, tmp))
    a(f"s_cbranch_vccz {ok}")
    P.rare_begin()
    a(f"s_mov_b32 s{sSPIN}, {SPIN}", label(again))
    if cfg.sleep: a(f"s_sleep {cfg.sleep}")
    for i in range(n):
        sk = newlabel("gsk")
        b = buf + 4*i
        a(f"v_max3_u32 v{tmp}, v{b}, v{b+1}, v{b+2}", f"v_max_u32 v{tmp}, v{tmp}, v{b+3}", f"v_cmp_eq_u32 vcc, -1, v{tmp}", f"s_cbranch_vccz {sk}",
          f"s_add_u32 s{sGAT}, s{sTEAM}, {soffs(i)}", vm(f"buffer_load_dwordx4 {vr(b, 4)}, v{voff}, {srd(S_WS)}, s{sGAT} offen sc1", "x"), label(sk))
    a(wvm0(), allmax(buf, n, tmp), f"s_cbranch_vccz {ok}", f"s_sub_u32 s{sSPIN}, s{sSPIN}, 1", f"s_cmp_lg_u32 s{sSPIN}, 0", f"s_cbranch_scc1 {again}")
    P.rare_end()
    a(label(ok))
    if cfg.stamps and cfg.fine:
        k = len(stamp_names); stamp_names.append("N_" + tag + str(uid[0]))
        a(f"s_sub_u32 s0, {SPIN+2}, s{sSPIN}", f"s_lshl_b64 exec, 1, {k}", f"v_accvgpr_write_b32 a{A_STAMP}, s0", f"v_accvgpr_write_b32 a{A_STAMP+1}, s0", "s_mov_b64 exec, -1")

def sum8(buf, dst, tmp):
    o = []
    for g in range(8):
        for d in range(4):
            if g == 0: o += unpack(dst+2*d, dst+2*d+1, buf+d)
            else:
                t = tmp + 2*d
                o += unpack(t, t+1, buf+4*g+d)
        if g:
            for d in range(4): o.append(f"v_pk_add_f32 {vr(dst+2*d, 2)}, {vr(dst+2*d, 2)}, {vr(tmp+2*d, 2)}")
    return o

def aunpack(dst, asrc, n, tmp):
    o = [f"v_accvgpr_read_b32 v{tmp+i}, a{asrc+i}" for i in range(n)]
    for i in range(n): o += unpack(dst+2*i, dst+2*i+1, tmp+i)
    return o

def rowstats(x, t):
    o = [f"v_pk_add_f32 {vr(t, 2)}, {vr(x, 2)}, {vr(x+2, 2)}", f"v_pk_mul_f32 {vr(t+2, 2)}, {vr(x, 2)}, {vr(x, 2)}",
         f"v_pk_add_f32 {vr(t+4, 2)}, {vr(x+4, 2)}, {vr(x+6, 2)}", f"v_pk_mul_f32 {vr(t+6, 2)}, {vr(x+2, 2)}, {vr(x+2, 2)}"]
    for k in range(4, 16, 2):
        if k >= 8: o.append(f"v_pk_add_f32 {vr(t+4*((k>>1)&1), 2)}, {vr(t+4*((k>>1)&1), 2)}, {vr(x+k, 2)}")
        o.append(f"v_pk_fma_f32 {vr(t+2+4*((k>>1)&1), 2)}, {vr(x+k, 2)}, {vr(x+k, 2)}, {vr(t+2+4*((k>>1)&1), 2)}")
    o += [f"v_pk_add_f32 {vr(t, 2)}, {vr(t, 2)}, {vr(t+4, 2)}", f"v_pk_add_f32 {vr(t+2, 2)}, {vr(t+2, 2)}, {vr(t+6, 2)}",
          f"v_add_f32 v{t}, v{t}, v{t+1}", f"v_add_f32 v{t+1}, v{t+2}, v{t+3}"]
    for m in ("quad_perm:[1,0,3,2]", "quad_perm:[2,3,0,1]", "row_ror:8"):
        o += ["s_nop 0", f"v_add_f32_dpp v{t}, v{t}, v{t} {m} row_mask:0xf bank_mask:0xf", f"v_add_f32_dpp v{t+1}, v{t+1}, v{t+1} {m} row_mask:0xf bank_mask:0xf"]
    for sw in ("v_permlane16_swap_b32", "v_permlane32_swap_b32"):
        o += [f"v_mov_b32 v{t+2}, v{t}", f"v_mov_b32 v{t+3}, v{t+1}", "s_nop 0", f"{sw} v{t}, v{t+2}", f"{sw} v{t+1}, v{t+3}",
              f"v_add_f32 v{t}, v{t}, v{t+2}", f"v_add_f32 v{t+1}, v{t+1}, v{t+3}"]
    o += [f"v_mul_f32 v{t+2}, {f32(1/512)}, v{t}", f"v_mul_f32 v{t+1}, {f32(1/512)}, v{t+1}", f"v_fma_f32 v{t}, -v{t+2}, v{t+2}, v{t+1}",
          f"v_max_f32 v{t}, 0, v{t}", f"v_add_f32 v{t}, {f32(1e-5)}, v{t}", f"v_rsq_f32 v{t}, v{t}", "s_nop 0", f"v_mul_f32 v{t+1}, -v{t+2}, v{t}"]
    return o

def tr_lo(): return [f"v_accvgpr_read_b32 v{V_TR}, a{A_TR}"] + [f"v_xor_b32 v{V_TR+e}, {32*e}, v{V_TR}" for e in range(1, 4)]
def tr_hi(): return [f"v_add_u32 v{V_TR+4+e}, {L_E0}, v{V_TR+e}" for e in range(4)]
def ring_addr_setup2():
    L, t0, t1, t2 = 31, 28, 29, 30
    o = [f"v_and_b32 v{L}, 63, v0"]
    o += [f"v_bfe_u32 v{t0}, v{L}, 1, 3", f"v_and_b32 v{t1}, 1, v{L}", f"v_lshrrev_b32 v{t2}, 4, v{L}", f"v_lshlrev_b32 v{V_PS}, 7, v{t0}",
          f"v_lshl_or_b32 v{V_PS}, v{t1}, 6, v{V_PS}", f"v_lshl_or_b32 v{V_PS}, v{t2}, 4, v{V_PS}"]
    o += [f"v_bfe_u32 v{t0}, v{L}, 3, 1", f"v_and_b32 v{t1}, 7, v{L}", f"v_mul_u32_u24 v{V_GA}, {MB_W}, v{t2}", f"v_lshl_add_u32 v{V_GA}, v{t0}, 10, v{V_GA}",
          f"v_lshl_add_u32 v{V_GA}, v{t1}, 4, v{V_GA}", f"s_lshl_b32 s{sT0}, s{sG}, 7", f"s_add_u32 s{sT0}, s{sT0}, s{sW2K}", f"v_add_u32 v{V_GA}, s{sT0}, v{V_GA}"]
    o += [f"v_accvgpr_read_b32 v{t0}, a{A_SW}", f"v_lshrrev_b32 v{t1}, 3, v{L}", f"v_mul_u32_u24 v{t1}, 3584, v{t1}", f"s_lshl_b32 s{sT0}, s{sW}, 7",
          f"v_add3_u32 v{V_W1D}, v{t0}, v{t1}, s{sT0}"]
    for i in range(1, 4): o.append(f"v_add_u32 v{V_W1D+i}, {(8*3584-1024)*i}, v{V_W1D}")
    o += [f"v_lshlrev_b32 v{t0}, 1, v{t2}", f"v_xor_b32 v{V_YR}, v{L}, v{t0}", f"v_lshlrev_b32 v{V_YR}, 4, v{V_YR}", f"v_add_u32 v{V_YR}, {L_B}, v{V_YR}"]
    o += [f"v_lshrrev_b32 v{t0}, 3, v{L}", f"v_and_b32 v{t1}, 3, v{L}", f"v_bfe_u32 v{t2}, v{L}, 2, 1", f"v_lshlrev_b32 v{V_YW}, 12, v{t0}",
          f"v_lshl_or_b32 v{V_YW}, v{t1}, 8, v{V_YW}", f"v_lshl_or_b32 v{V_YW}, v{t2}, 4, v{V_YW}", f"v_lshl_or_b32 v{V_YW}, v{t1}, 5, v{V_YW}",
          f"s_lshl_b32 s{sT0}, s{sW}, 10", f"s_add_u32 s{sT0}, s{sT0}, {L_B}", f"v_add_u32 v{V_YW}, s{sT0}, v{V_YW}"]
    for j in range(1, 4): o.append(f"v_xor_b32 v{V_YW+j}, {32*j}, v{V_YW}")
    o += [f"s_mul_i32 s{sT0}, s{sW}, {MB_W}", f"v_add_u32 v6, s{sT0}, v{V_LIN}"]
    return o

V_SUM, V_TMP, V_PA, V_PB = 128, 144, 160, 176
def masked(lo):
    return [f"s_cmp_lt_u32 s{sW}, 2", "s_cselect_b64 exec, -1, 0" if lo else "s_cselect_b64 exec, 0, -1"]
def last_gather(mboff):
    a = P.add
    gl = lambda tag: gather_loads(G1, 8, V_GA, lambda i: i*MB_SZ + mboff + 8192, tag)
    a(wvm("psA"), masked(True), gl("g1"), wvm("psB"), masked(False), gl("g1"), "s_mov_b64 exec, -1")
def oproj():
    a = P.add
    a(breads(0), wlg0())
    ex = ring_addr_setup2() + [wvm("par")] + aunpack(V_X1, A_XR, 8, G0) + aunpack(V_B1F, A_B1, 8, G0+8)
    for sig in range(26):
        p, t = divmod(sig, 16)
        if sig == 16:
            assert not ex
            ex = ["GAP"] + pack_store(ACCX, 0, MB_P1)
        if sig == 20:
            assert not ex
            ex = flag_load(28, "fl")
        if sig % 4 == 0: stamp(f"o{sig}", True)
        a(raw(f"; MARK o{sig}"))
        rd, dm = (5, 10) if sig < 16 else (None, None) if sig < 20 else (1, 6)
        nrd = sig + 1 + (5 if sig < 15 else 1)
        end = ([wvm(f"st{nrd}", *(["wop"] if sig == 0 else []))] if not 15 <= sig < 19 else []) + [wlg0()]
        a(gstep(sig, ACCX if p == 0 else ACCY, t == 0, q=ex, rd=rd, dm=dm, nq=(range(4) if sig < 25 else (0, 1)), end=end))
    assert not ex
    flag_check(28)
    mq = m2_param_loads()
    stamp("oA", True)
    for sig in range(26, 32):
        rd = [wvm(f"st{sig+1}")] + areads(sig+1) + breads(sig+1, (0, 1)) if sig < 31 else breads(26, (2, 3))
        a(hstep(sig, ACCY, False, 0, rd, q=mq))
    assert not mq
    stamp("oB", True)
    st, gl = pack_store(ACCY, 1, MB_P1, (0,), "psA"), gather_loads(G0, 8, V_GA, lambda i: i*MB_SZ + MB_P1, "g0")
    ex = ["GAP", "GAP", "GAP"] + st + gl
    for sig in range(26, 32):
        a(hstep(sig, ACCY, False, 1, breads(sig+1, (2, 3)) if sig < 31 else [], q=ex))
    a(ex)
    stamp("o32", True)
    a("s_nop 3", pack_store(ACCY, 1, MB_P1, (1,), "psB"))
    stamp("o_st", True)

def ywrites(p): return [lg(f"ds_write_b128 v{V_YW+(j&3)}, {vr((G0, G1)[p]+4*j, 4)} offset:{128*(j>>2)+32768*p}", "yw") for j in range(8)]
def ln2():
    a = P.add
    a("s_barrier")
    a(wvm("m2p"))
    for p in range(2): a(aunpack(V_PA+8*p, A_M2+16*p+0, 4, V_TMP))
    last_gather(MB_P1)
    stamp("oproj")
    gather_check(G0, 8, V_GA, lambda i: i*MB_SZ + MB_P1, "g0", V_TMP)
    stamp("g0ok", True)
    a(sum8(G0, V_SUM, V_TMP))
    G2, SB = 192, 208
    for p in range(2):
        a(aunpack(G2+8*p, A_M2+16*p+8, 4, V_TMP))
        a([f"v_add_f32 v{G2+8*p+i}, 1.0, v{G2+8*p+i}" for i in range(8)])
        a([f"v_cvt_pk_bf16_f32 v{V_TMP+i}, v{G2+8*p+2*i}, v{G2+8*p+2*i+1}" for i in range(4)])
        for i in range(4): a(unpack(G2+8*p+2*i, G2+8*p+2*i+1, V_TMP+i))
        a(aunpack(SB+8*p, A_M2+16*p+4, 4, V_TMP))
    gather_check(G1, 8, V_GA, lambda i: i*MB_SZ + MB_P1 + 8192, "g1", V_TMP)
    stamp("ex1")
    w1q = []
    for sig in range(32, 38):
        d = stage_dma(sig); w1q += [d[:2] + ["s_nop 0", d[2]], [d[3]], [d[4]], [d[5]]]
    s8 = sum8(G1, V_SUM+8, V_TMP)
    for i in range(0, len(s8), 12): a(w1q.pop(0), s8[i:i+12])
    for k in range(0, 16, 2): a(f"v_pk_fma_f32 {vr(V_X1+k, 2)}, {vr(V_SUM+k, 2)}, {vr(V_PA+k, 2)}, {vr(V_X1+k, 2)}")
    a(rowstats(V_X1, V_TMP))
    H = V_SUM
    for k in range(0, 16, 2): a(f"v_pk_fma_f32 {vr(H+k, 2)}, {vr(V_X1+k, 2)}, {vr(V_TMP, 2)}, {vr(V_TMP, 2)} op_sel:[0,0,1] op_sel_hi:[1,0,1]")
    for k in range(0, 16, 2): a(f"v_pk_fma_f32 {vr(H+k, 2)}, {vr(H+k, 2)}, {vr(G2+k, 2)}, {vr(SB+k, 2)}")
    a(rowstats(H, V_TMP))
    for k in range(0, 16, 2): a(f"v_pk_fma_f32 {vr(H+k, 2)}, {vr(H+k, 2)}, {vr(V_TMP, 2)}, {vr(V_TMP, 2)} op_sel:[0,0,1] op_sel_hi:[1,0,1]")
    a(f"s_add_u32 s{sT0}, s{sMB}, {MB_Y}")
    for p in range(2):
        for i in range(4): a(f"v_cvt_pk_bf16_f32 v{V_PB+4*p+i}, v{H+8*p+2*i}, v{H+8*p+2*i+1}")
        a(vm(f"buffer_store_dwordx4 {vr(V_PB+4*p, 4)}, v{V_LIN}, {srd(S_WS)}, s{sT0} offen offset:{1024*p} sc1", "ys"))
    stamp("ln2")
    a(w1q)
    if cfg.drain: a(wvm("ys"))
    for p, buf in ((0, G0), (1, G1)): a(gather_loads(buf, 8, 6, lambda i: i*MB_SZ + MB_Y + 1024*p, f"y{p}"))
    a(wvm("st32"), areads(32))
    gather_check(G0, 8, 6, lambda i: i*MB_SZ + MB_Y, "y0", V_TMP)
    a(ywrites(0), wlg0(), "s_barrier")
    stamp("y_in")

def mlp():
    a = P.add
    a(breads(32), wlg("a32"))
    k = 2*math.sqrt(2/math.pi)*math.log2(math.e)
    ex = []
    ex2 = [f"s_mov_b32 s{sC1}, {f32(-k*0.044715)}", f"s_mov_b32 s{sC1+1}, {f32(-k)}", f"s_lshl_b32 s{sT0}, s{sW}, 13", f"v_add_u32 v28, s{sT0}, v{V_LB}"]
    for sig in range(32, 48):
        end = ()
        if sig == 34: ex = [wvm("y1")] + allmax(G1, 8, 28)
        if sig == 36:
            assert not ex
            gather_check(G1, 8, 6, lambda i: i*MB_SZ + MB_Y + 1024, "y1", 28, reduced=True)
            ex = ywrites(1)
        if sig == 38: end = [wlg0(), op("s_barrier")]
        if sig == 40: ex = ex2
        end = ([wvm(f"st{sig+2}"), wlg(f"a{sig+1}")] if sig < 47 else []) + list(end)
        a(gstep(sig, ACCX, sig == 32, cinit=V_B1F, q=ex, rd=(1 if sig < 47 else None), nb=(sig < 47), end=end))
        if sig == 37: assert not ex
    stamp("mlp1")
    a(wvm("st48"), areads(48), "s_barrier")
    T = ACCY
    for b in range(2):
        for qt in range(4):
            x, y = ACCX + (2*b*4+qt)*4, ACCX + ((2*b+1)*4+qt)*4
            prs = [x, x+2, y, y+2]
            t = T + 8*(qt & 1)
            for i, z in enumerate(prs): a(f"v_pk_mul_f32 {vr(t+2*i, 2)}, {vr(z, 2)}, {vr(z, 2)}")
            for i, z in enumerate(prs): a(f"v_pk_fma_f32 {vr(t+2*i, 2)}, {vr(t+2*i, 2)}, s[{sC1}:{sC1+1}], s[{sC1}:{sC1+1}] op_sel:[0,0,1] op_sel_hi:[1,0,1]")
            for i, z in enumerate(prs): a(f"v_pk_mul_f32 {vr(t+2*i, 2)}, {vr(t+2*i, 2)}, {vr(z, 2)}")
            for i in range(8): a(f"v_exp_f32 v{t+i}, v{t+i}")
            for i in range(4): a(f"v_pk_add_f32 {vr(t+2*i, 2)}, {vr(t+2*i, 2)}, 1.0 op_sel_hi:[1,0]")
            for i in range(8): a(f"v_rcp_f32 v{t+i}, v{t+i}")
            for i, z in enumerate(prs): a(f"v_pk_mul_f32 {vr(z, 2)}, {vr(t+2*i, 2)}, {vr(z, 2)}")
            a(f"v_cvt_pk_bf16_f32 v{x}, v{x}, v{x+1}", f"v_cvt_pk_bf16_f32 v{x+1}, v{x+2}, v{x+3}",
              f"v_cvt_pk_bf16_f32 v{x+2}, v{y}, v{y+1}", f"v_cvt_pk_bf16_f32 v{x+3}, v{y+2}, v{y+3}")
            a(lg(f"ds_write_b128 v28, {vr(x, 4)} offset:{b*4096+qt*1024}", "hw"))
    a(wlg0(), "s_barrier")
    stamp("gelu")
    a(breads(48, (0, 1)), wlg("a48"))
    dq, ex = [], []
    for p in range(2):
        acc = (ACCX, ACCY)[p]
        for half in range(2):
            stamp(f"m{p}{half}", True)
            for t in range(7):
                sig = 48 + 7*p + t
                if half == 0:
                    if sig + 6 < 62: dq += stage_dma(sig+6)
                    rd = [wvm(f"st{sig+1}")] + areads(sig+1) + breads(sig+1, (0, 1)) if t < 6 else breads(48 + 7*p, (2, 3))
                else:
                    rd = breads(sig+1, (2, 3)) if t < 6 else ([wvm("st55")] + areads(55) + breads(55, (0, 1)) if p == 0 else [])
                a(hstep(sig, acc, t == 0, half, rd, dq, ex))
            assert not ex, ex
            if (p, half) != (1, 1):
                ex = ["GAP", "GAP", "GAP"] + pack_store(acc, p, MB_P2, (half,), "psA" if p else "ps")
    assert not dq
    stamp("m62", True)
    a("s_nop 3", pack_store(ACCY, 1, MB_P2, (1,), "psB"))
    stamp("m_st", True)
    a(gather_loads(G0, 8, V_GA, lambda i: i*MB_SZ + MB_P2, "g0"))
    last_gather(MB_P2)
    stamp("mlp2")

def final():
    a = P.add
    GB, B2 = V_PA, V_PB
    for p in range(2): a(aunpack(GB+8*p, A_M2+16*p+12, 4, V_TMP))
    a(aunpack(B2, A_B2, 8, V_TMP))
    a(f"v_accvgpr_read_b32 v28, a{A_OV}")
    for p, buf in ((0, G0), (1, G1)):
        gather_check(buf, 8, V_GA, lambda i: i*MB_SZ + MB_P2 + 8192*p, f"g{p}", V_TMP)
        S = V_SUM + 8*p
        a(sum8(buf, S, V_TMP))
        for k in range(0, 8, 2): a(f"v_pk_add_f32 {vr(S+k, 2)}, {vr(S+k, 2)}, {vr(B2+8*p+k, 2)}")
        for k in range(0, 8, 2): a(f"v_pk_fma_f32 {vr(S+k, 2)}, {vr(S+k, 2)}, {vr(GB+8*p+k, 2)}, {vr(V_X1+8*p+k, 2)}")
        for i in range(4): a(f"v_cvt_pk_bf16_f32 v{S+i}, v{S+2*i}, v{S+2*i+1}")
        for h in range(2): a(vm(f"buffer_store_dwordx2 {vr(S+2*h, 2)}, v28, {srd(S_OUT)}, s{sXROW} offen offset:{128*p+32*h}", "out"))
    if cfg.stamps:
        stamp("end")
        a(f"s_lshl_b32 s{sT0}, s2, 10", f"s_add_u32 s{sT0}, s{sT0}, {WS_STAMP}", "v_lshlrev_b32 v7, 2, v0",
          vm(f"buffer_store_dword a{A_STAMP}, v7, {srd(S_WS)}, s{sT0} offen", "st"), f"s_add_u32 s{sT0}, s{sT0}, 0x40000",
          vm(f"buffer_store_dword a{A_STAMP+1}, v7, {srd(S_WS)}, s{sT0} offen", "st"))
        if cfg.probe:
            nm0, nm, who, kind = cfg.probe.split(":")
            k0 = 63 if nm0 == "first" else stamp_names.index(nm0)
            k = stamp_names.index(nm)
            if who != "all": a(f"s_cmp_lg_u32 s{sPP}, {who}", "s_cbranch_scc1 L_exit")
            a(f"v_accvgpr_read_b32 v8, a{A_STAMP}", f"v_accvgpr_read_b32 v9, a{A_STAMP + (kind == 'c')}", "s_nop 1", f"v_readlane_b32 s60, v9, {k0}", f"v_readlane_b32 s61, v9, {k}",
              f"v_readlane_b32 s62, v8, {len(stamp_names)-1}", "s_nop 3",
              "s_sub_u32 s61, s61, s60", "s_lshl_b32 s61, s61, 4" if kind == "t" else "s_nop 0", "s_add_u32 s61, s61, s62", label("L_probe"), Ins("s_memrealtime s[62:63]", "op"), wlg0(),
              "s_sub_u32 s60, s62, s61", "s_cmp_lt_i32 s60, 0", "s_cbranch_scc1 L_probe")
        if cfg.dbgout is not None:
            a(f"s_lshl_b32 s{sT0}, s{sPP}, 2", f"s_add_u32 s{sT0}, s{sT0}, s{sW}", f"s_cmp_lg_u32 s{sT0}, {cfg.dbgout*4}", "s_cbranch_scc1 L_exit")
            a(f"v_accvgpr_read_b32 v8, a{A_STAMP}", "s_nop 1", "v_readlane_b32 s60, v8, 0", "s_nop 1", "v_subrev_u32 v8, s60, v8", "v_subrev_u32 v7, 4, v7",
              "s_mov_b64 exec, 0x1fffe", vm(f"buffer_store_dword v8, v7, {srd(S_DBG)}, 0 offen sc1", "st"))
    a(label("L_exit"), "s_endpgm")

def fallback():
    a = P.add
    P.rare_begin()
    a(label("L_fallback"), wall())
    L, KA = 32, 33
    a(f"v_and_b32 v{L}, 63, v0", f"v_and_b32 v{KA}, 15, v{L}", f"v_lshrrev_b32 v34, 4, v{L}", f"v_lshlrev_b32 v{KA}, 8, v{KA}", f"v_lshl_or_b32 v{KA}, v34, 6, v{KA}")
    a(f"v_and_b32 v36, 15, v{L}")
    for i in range(2):
        a(f"v_add_u32 v37, {4*i}, v34", f"v_lshlrev_b32 v37, 1, v37", f"v_xor_b32 v37, v37, v36", f"v_lshlrev_b32 v37, 4, v37", f"v_lshl_or_b32 v{20+i}, v34, 8, v37")
    a(f"s_lshl_b32 s{sT2}, s{sG}, 19", f"s_add_u32 s{sT2}, s{sT2}, {1536*256}", f"s_mov_b32 s{sT0}, s{sT2}", f"s_mov_b32 s{sLOOP}, 32")
    for qt in range(4): a(f"v_mov_b32 v{V_NM+4*qt}, 0xff800000")
    a(label("L_fb1"))
    for s in range(4): a(vm(f"buffer_load_dwordx4 {ar(A_KF+32+4*s, 4)}, v{KA}, {srd(S_K)}, s{sT0} offen offset:{16*s}", "x"))
    a(wvm0())
    for qt in range(4):
        for s in range(4): a(f"{MF} v[36:39], {ar(A_KF+32+4*s, 4)}, {vr(QF(s, qt), 4)}, {'v[36:39]' if s else 0}")
        a("s_nop 9", f"v_max3_f32 v{V_NM+4*qt}, v{V_NM+4*qt}, v36, v37", f"v_max3_f32 v{V_NM+4*qt}, v{V_NM+4*qt}, v38, v39", "s_nop 3")
    a(f"s_add_u32 s{sT0}, s{sT0}, 4096", f"s_sub_u32 s{sLOOP}, s{sLOOP}, 1", f"s_cmp_lg_u32 s{sLOOP}, 0", "s_cbranch_scc1 L_fb1")
    for qt in range(4):
        m, t = V_NM + 4*qt, V_NM + 4*qt + 1
        a(f"v_mov_b32 v{t}, v{m}", "s_nop 1", f"v_permlane16_swap_b32 v{m}, v{t}", f"v_max_f32 v{m}, v{m}, v{t}",
          f"v_mov_b32 v{t}, v{m}", "s_nop 1", f"v_permlane32_swap_b32 v{m}, v{t}", f"v_max_f32 v{m}, v{m}, v{t}",
          f"v_mul_f32 v{m}, -1.0, v{m}", f"v_mov_b32 v{m+1}, v{m}", f"v_mov_b32 v{m+2}, v{m}", f"v_mov_b32 v{m+3}, v{m}")
    for r in range(128): a(f"v_mov_b32 v{V_O+r}, 0")
    for r in range(16): a(f"v_accvgpr_write_b32 a{A_L+r}, 0")
    a(f"s_lshl_b32 s{sT1}, s{sW}, 14", f"s_add_u32 s{sT1}, s{sT1}, {L_B}", f"s_sub_u32 s{sT0}, s{sT1}, {L_V}")
    for dt in range(8): a(f"v_add_u32 v{V_VR+dt}, s{sT0}, v{V_VR+dt}")
    a(f"s_mov_b32 s{sT0}, s{sT2}", f"s_mov_b32 s{sLOOP}, 16")
    a(label("L_fb2"))
    for j in range(4):
        a(f"s_add_u32 m0, s{sT1}, {2048*j}", f"s_add_u32 s{sT3}, s{sT0}, {2048*j}",
          vm(f"buffer_load_dwordx4 v20, {srd(S_V)}, s{sT3} offen lds", "x"), vm(f"buffer_load_dwordx4 v21, {srd(S_V)}, s{sT3} offen offset:1024 lds", "x"))
    a(f"s_add_u32 s{sT3}, s{sT0}, 4096")
    for s in range(4):
        a(vm(f"buffer_load_dwordx4 {ar(KF(1, 0, s), 4)}, v{KA}, {srd(S_K)}, s{sT0} offen offset:{16*s}", "x"),
          vm(f"buffer_load_dwordx4 {ar(KF(1, 1, s), 4)}, v{KA}, {srd(S_K)}, s{sT3} offen offset:{16*s}", "x"))
    a(wvm0())
    a([Ins(x.text.replace("offset:8192", "offset:0").replace("offset:12288", "offset:4096"), x.kind, x.tag) for x in vreads(1)], wlg0())
    for qt in range(4):
        for s in range(4):
            for kt in range(2):
                d = vr(40 + 4*kt, 4)
                a(f"{MF} {d}, {ar(KF(1, kt, s), 4)}, {vr(QF(s, qt), 4)}, {d if s else vr(V_NM+4*qt, 4)}")
        a("s_nop 9")
        for i in range(8): a(f"v_exp_f32 v{40+i}, v{40+i}")
        a("s_nop 0")
        for i in range(4): a(f"v_cvt_pk_bf16_f32 v{V_P+i}, v{40+2*i}, v{41+2*i}")
        a("s_nop 1")
        for dt in range(8): a(f"{MF} {vr(OA(dt, qt), 4)}, {ar(VF(1, dt), 4)}, {vr(V_P, 4)}, {vr(OA(dt, qt), 4)}")
        a(f"{MF} {ar(A_L+4*qt, 4)}, {ar(A_ONE, 4)}, {vr(V_P, 4)}, {ar(A_L+4*qt, 4)}")
    a(f"s_add_u32 s{sT0}, s{sT0}, 8192", f"s_sub_u32 s{sLOOP}, s{sLOOP}, 1", f"s_cmp_lg_u32 s{sLOOP}, 0", "s_cbranch_scc1 L_fb2")
    a("s_nop 9")
    for qt in range(4): a(normalize(qt))
    a("s_branch L_fb_ret")
    P.rare_end()

HEADER = """; Fused adaLN-modulated block: cached sliding-window GQA attention + channel MLP, one persistent launch.
; @launch grid=(256,1,1) block=(256,1,1) lds=163840
.amdgcn_target "amdgcn-amd-amdhsa--gfx950"
.text
.globl {kn}
.p2align 8
.type {kn},@function
{kn}:
"""
FOOTER = """L_codeend:
.section .rodata,"a"
.p2align 6
.amdhsa_kernel {kn}
  .amdhsa_next_free_vgpr 512
  .amdhsa_next_free_sgpr 102
  .amdhsa_accum_offset 256
  .amdhsa_group_segment_fixed_size 0
  .amdhsa_kernarg_size 120
  .amdhsa_user_sgpr_count 2
  .amdhsa_user_sgpr_kernarg_segment_ptr 1
  .amdhsa_system_sgpr_workgroup_id_x 1
  .amdhsa_float_denorm_mode_32 3
.end_amdhsa_kernel
"""

def build():
    d = cfg.dump
    prologue()
    if d == "h": dump_lds_and_exit(0, 65536)
    qproj()
    if d == "q": dump_and_exit([f"a{i}" for i in range(128)])
    attention()
    if d == "o": dump_lds_and_exit(L_B, 65536)
    oproj()
    ln2()
    if d == "y": dump_lds_and_exit(L_B, 65536)
    mlp()
    final()
    fallback()
    for f in out_of_line: f()
    resolve_waits(P.items)
    merge_waits(P.items)
    errs = check(P.items)
    items2 = [x for x in P.items if x.kind not in ("rare_begin", "rare_end")]
    e2 = sorted(set(e for e in check(items2, verbose=False) if "pending load" not in e))
    for e in e2: print("HAZARD(rare)", e)
    return HEADER.format(kn=KN) + render(P.items) + FOOTER.format(kn=KN), errs

if __name__ == "__main__":
    ap = argparse.ArgumentParser()
    ap.add_argument("-o", default=f"cdna_kernels/{NAME}.s")
    ap.add_argument("--stamps", action="store_true")
    ap.add_argument("--dump")
    ap.add_argument("--min", action="store_true")
    ap.add_argument("--probe")
    ap.add_argument("--tplace", type=int, default=0)
    ap.add_argument("--qtouch", type=int, default=2)
    ap.add_argument("--sleep", type=int, default=0)
    ap.add_argument("--nodrain", action="store_true")
    ap.add_argument("--g0at", type=int, default=27)
    ap.add_argument("--qstart", type=int, default=3)
    ap.add_argument("--notouch", action="store_true")
    ap.add_argument("--nopf", action="store_true")
    ap.add_argument("--dbgout", type=int, default=None)
    ap.add_argument("--mb", type=int, default=1)
    ap.add_argument("--nt", default=None)
    ap.add_argument("--mu", type=int, default=1)
    ap.add_argument("--fine", action="store_true")
    ap.add_argument("--force-fallback", action="store_true")
    args = ap.parse_args()
    cfg.stamps = args.stamps; cfg.dump = args.dump; cfg.min = args.min; cfg.probe = args.probe; cfg.tplace = args.tplace; cfg.qtouch = args.qtouch; cfg.sleep = args.sleep; cfg.drain = not args.nodrain; cfg.g0at = args.g0at; cfg.qstart = args.qstart; cfg.touch = not args.notouch; cfg.nopf = args.nopf; cfg.dbgout = args.dbgout; WS_MB = args.mb << 20; NT.on = set(args.nt) if args.nt is not None else NT.on; cfg.mu = args.mu; cfg.fine = args.fine; cfg.force_fallback = args.force_fallback
    txt, errs = build()
    if cfg.stamps: txt = "; STAMPS " + ",".join(stamp_names) + "\n" + txt
    open(args.o, "w").write(txt)
    print("wrote", args.o, len(txt), "bytes;", len(errs), "hazard reports")
```
